```python
import torch

def _softmax(x, axis=-1):
    return torch.softmax(x, dim=axis)
def _gelu(x):
    return torch.nn.functional.gelu(x, approximate="tanh")
def _silu(x):
    return torch.nn.functional.silu(x)
def _sigmoid(x):
    return torch.sigmoid(x)
def _layernorm(x, axis=-1, eps=1e-5):
    m = x.mean(dim=axis, keepdim=True)
    v = x.var(dim=axis, keepdim=True, unbiased=False)
    return (x - m) / torch.sqrt(v + eps)
def _scatter_add(tgt, idx, src, axis=0):
    return tgt.clone().index_add_(axis, idx, src)
def _segment_sum(src, seg, n):
    out = torch.zeros((n,) + src.shape[1:], dtype=src.dtype)
    return out.index_add_(0, seg, src)
def _pad(x, pw):
    flat = tuple(v for pair in reversed(pw) for v in pair)
    return torch.nn.functional.pad(x, flat)

kernel_name = 'gated_mix__spectral_gfnet__dense_activation_mish__prompt'

def setup_inputs():

    _w = (lambda a: (lambda t: t.to(torch.bfloat16) if t.is_floating_point() else t)(torch.as_tensor(a)))
    def _A_setup():
        B, S, D = 1, 2048, 512
        Df = D // 2 + 1
        return {
            "x": _w((lambda *s: torch.randn(*s, dtype=torch.bfloat16) * 0.05)(B, S, D)),
            "w_r": _w((lambda *s: torch.randn(*s, dtype=torch.bfloat16) * 0.8)(S, Df) * 0.02),
            "w_i": _w((lambda *s: torch.randn(*s, dtype=torch.bfloat16) * 0.8)(S, Df) * 0.02),
        }
    _A_in = _A_setup()

    def _B_setup():
        B, S, D, F = 1, 2048, 512, 1376
        return {
            "x": _w((lambda *s: torch.randn(*s, dtype=torch.bfloat16) * 0.05)(B, S, D)),
            "w1": _w((lambda *s: torch.randn(*s, dtype=torch.bfloat16) * 3.2)(D, F) * (D ** -0.5)),
            "b1": _w((lambda *s: torch.randn(*s, dtype=torch.bfloat16) * 0.05)(F)),
            "w2": _w((lambda *s: torch.randn(*s, dtype=torch.bfloat16) * 0.05)(F, D) * (F ** -0.5)),
        }
    _B_in = _B_setup()

    return {
        "A_x": _A_in["x"],
        "A_w_r": _A_in["w_r"],
        "A_w_i": _A_in["w_i"],
        "B_x": _B_in["x"],
        "B_w1": _B_in["w1"],
        "B_b1": _B_in["b1"],
        "B_w2": _B_in["w2"],
        "gate_w": _w((lambda *s: torch.randn(*s, dtype=torch.bfloat16) * 0.05)(512) * 16.0),
    }

def reference(A_x, A_w_r, A_w_i, B_x, B_w1, B_b1, B_w2, gate_w):
    def _A_ref(x, w_r, w_i):
        B, S, D = x.shape
        X = (lambda x, axes=(-2,-1): torch.fft.rfft2(x.float(), dim=axes))(x, axes=(-2, -1))
        W = w_r + 1j * w_i
        X = X * W
        y = (lambda x, s, axes=(-2,-1): torch.fft.irfft2(x, s=s, dim=axes).to(torch.bfloat16))(X, (S, D), axes=(-2, -1))
        return y

    def _B_ref(x, w1, b1, w2):
        h = torch.einsum("bsd,df->bsf", x, w1) + b1
        sp = torch.log1p(torch.exp(-torch.abs(h))) + torch.where(h > 0, h, torch.zeros_like(h))
        act = h * torch.tanh(sp)
        return torch.einsum("bsf,fd->bsd", act, w2)

    x = A_x
    g = _sigmoid((x * gate_w).sum(-1, keepdims=True))
    a = _A_ref(x, A_w_r, A_w_i)
    b = _B_ref(x, B_w1, B_b1, B_w2)
    return g * a + (1 - g) * b
```

```python
import re
TRANS = ('v_exp_f32','v_log_f32','v_rcp_f32','v_rsq_f32','v_sqrt_f32','v_sin_f32','v_cos_f32','v_rcp_iflag_f32')
def regs_of(tok):
    tok = tok.strip()
    tok = re.sub(r'^-|^abs\(|\)$|^\|', '', tok).rstrip('|')
    m = re.fullmatch(r'([vsa])\[(\d+):(\d+)\]', tok)
    if m: return [m.group(1) + str(i) for i in range(int(m.group(2)), int(m.group(3)) + 1)]
    m = re.fullmatch(r'([vsa])(\d+)', tok)
    if m: return [tok]
    if tok == 'vcc': return ['vcc']
    if tok in ('vcc_lo', 'vcc_hi'): return ['vcc']
    if tok == 'exec': return ['exec']
    if tok == 'm0': return ['m0']
    return []
class I:
    def __init__(self, text):
        self.text = text
        t = text.split(';')[0].strip()
        p = t.split(None, 1)
        self.op = p[0]
        rest = p[1] if len(p) > 1 else ''
        ops = [o.strip() for o in rest.split(',')] if rest else []
        self.mods = ''
        if ops:
            rest2 = re.sub(r'(op_sel|op_sel_hi|neg_lo|neg_hi|quad_perm):\[[^\]]*\]', '', rest)
            ops = [o.strip() for o in rest2.split(',')]
            last = ops[-1].split()
            if last:
                ops[-1] = last[0]; self.mods = ' '.join(last[1:])
        self.ops = ops
        op = self.op
        R = [regs_of(o) for o in ops]
        self.kind = 'other'; self.w = []; self.r = []
        flat = lambda L: [x for l in L for x in l]
        if op.startswith('v_mfma'):
            self.kind = 'mfma'; self.w = R[0]; self.a = R[1]; self.b = R[2]; self.c = R[3]; self.r = flat(R[1:])
            self.passes = 8 if '32x32' in op else 4
        elif op.startswith('v_'):
            self.kind = 'valu'
            if op.startswith('v_cmp'):
                self.w = R[0]; self.r = flat(R[1:])
            elif '_co_' in op:
                self.w = R[0] + R[1]; self.r = flat(R[2:])
            elif op.startswith('v_permlane') and 'swap' in op:
                self.w = R[0] + R[1]; self.r = R[0] + R[1]
            elif op == 'v_nop':
                pass
            else:
                self.w = R[0]; self.r = flat(R[1:])
                if op.startswith(('v_fmac', 'v_pk_fmac', 'v_writelane', 'v_dot2c')): self.r = self.r + R[0]
            self.dpp = 'quad_perm' in text or 'row_' in text
        elif op.startswith('ds_'):
            self.kind = 'ds'
            if op.startswith(('ds_read', 'ds_bpermute', 'ds_permute', 'ds_swizzle')) or '_rtn' in op:
                self.w = R[0]; self.r = flat(R[1:])
            else:
                self.r = flat(R)
        elif op.startswith('buffer_') or op.startswith('global_'):
            self.kind = 'vmem'
            islds = ' lds' in (' ' + self.mods)
            self.lds = islds
            if 'load' in op and not islds:
                self.w = R[0]; self.r = flat(R[1:])
            else:
                self.r = flat(R)
                if islds: self.r = self.r + ['m0']
            self.store = 'store' in op or 'atomic' in op
            self.wide = self.store and ('x3' in op or 'x4' in op)
            self.data = R[0] if self.store else []
        elif op.startswith('s_load') or op.startswith('s_memrealtime') or op.startswith('s_memtime') or op.startswith('s_buffer_load'):
            self.kind = 'smem'; self.w = R[0]; self.r = flat(R[1:])
        elif op.startswith('s_'):
            self.kind = 'salu'
            if op.startswith(('s_cmp', 's_waitcnt', 's_barrier', 's_branch', 's_cbranch', 's_nop', 's_sleep', 's_setprio', 's_endpgm', 's_bitcmp', 's_setpc')):
                self.r = flat(R)
            else:
                self.w = R[0]; self.r = flat(R[1:])
                if 'saveexec' in op: self.w = self.w + ['exec']
class Stream:
    def __init__(self):
        self.out = []
        self.hist = []
        self.vq = []
        self.lq = []
        self.smem = False
        self.smem_w = set()
        self.uid = 0
        self.cost = 0
        self.marks = []
    def lab(self, p='L'):
        Stream.gid = getattr(Stream, 'gid', 0) + 1
        return f'{p}_{Stream.gid}'
    def raw(self, s):
        self.out.append(s)
    def label(self, l):
        self.out.append(l + ':')
    def _age(self, n):
        self.hist = [(i, a + n) for (i, a) in self.hist if a + n < 24]
    def _need(self, c):
        need = 0
        ov = lambda x, y: bool(set(x) & set(y))
        isv = lambda L: [x for x in L if x[0] in 'va' and x != 'vcc']
        for p, age in self.hist:
            n = 0
            if p.kind == 'valu':
                vw = isv(p.w); sw = [x for x in p.w if x not in vw]
                if c.kind == 'mfma' and ov(vw, c.r): n = max(n, 2)
                if c.kind == 'valu':
                    if p.op.replace('_e32','').replace('_e64','') in TRANS and ov(vw, c.r + c.w): n = max(n, 1)
                    if c.op.startswith(('v_readfirstlane', 'v_readlane')) and ov(vw, c.r): n = max(n, 1)
                    if c.op.startswith('v_permlane') and ov(vw, c.r): n = max(n, 2)
                    if c.dpp and ov(vw, c.r): n = max(n, 2)
                    if ov(sw, c.r): n = max(n, 4 if c.op.startswith(('v_readlane','v_writelane')) else 2)
                    if ('op_sel' in p.text or 'sdwa' in p.text) and not p.op.startswith('v_pk') and ov(vw, c.r + c.w): n = max(n, 1)
                if c.kind == 'vmem' and ov(sw, c.r): n = max(n, 5)
                if c.kind in ('salu','smem') and ov(sw, c.r): n = max(n, 1)
            elif p.kind == 'mfma':
                big = {4: 8, 8: 12}[p.passes]
                if c.kind == 'mfma':
                    if ov(p.w, c.a + c.b): n = max(n, big)
                    if ov(p.w, c.c):
                        if not (p.w == c.c and p.passes == c.passes): n = max(n, big - 2)
                    elif ov(p.w, c.w): n = max(n, big)
                elif c.kind in ('valu', 'vmem', 'ds'):
                    if ov(p.w, c.r + c.w): n = max(n, big)
                    if c.kind == 'valu' and ov(p.c, c.w): n = max(n, {4: 3, 8: 7}[p.passes])
            elif p.kind == 'salu':
                if 'm0' in p.w and c.kind == 'vmem' and getattr(c, 'lds', False): n = max(n, 1)
                if 'exec' in p.w and c.kind == 'mfma': n = max(n, 0)
            elif p.kind == 'vmem':
                if p.wide and ov(p.data, c.w): n = max(n, 2)
            need = max(need, n - age)
        return need
    def _emit(self, text, states=1):
        self.out.append('    ' + text)
    def wait(self, vm=None, lg=None):
        parts = []
        if vm is not None and vm < len(self.vq):
            assert vm <= 63
            parts.append(f'vmcnt({vm})'); self.vq = self.vq[len(self.vq) - vm:] if vm else []
        if lg is not None and (lg < len(self.lq) or (lg == 0 and self.smem)):
            if self.smem: lg = 0
            lg = min(lg, 15)
            parts.append(f'lgkmcnt({lg})'); self.lq = self.lq[len(self.lq) - lg:] if lg else []
            if lg == 0: self.smem = False; self.smem_w = set()
        if parts:
            self._emit('s_waitcnt ' + ' '.join(parts)); self._age(1); self.cost += 4
    def wait_tag(self, tag):
        idx = [k for k, e in enumerate(self.vq) if e['tag'] == tag]
        if idx: self.wait(vm=len(self.vq) - 1 - max(idx))
    def wait_ltag(self, tag):
        idx = [k for k, e in enumerate(self.lq) if e['tag'] == tag]
        if idx: self.wait(lg=len(self.lq) - 1 - max(idx))
    def assume_drained(self):
        self.vq = []; self.lq = []; self.smem = False; self.smem_w = set()
    def __call__(self, s, tag=None):
        for line in s.strip('\n').split('\n'):
            line = line.strip()
            if not line or line.startswith(';'): continue
            if line.endswith(':'):
                self.label(line[:-1]); continue
            self.one(line, tag)
    def one(self, text, tag=None):
        c = I(text)
        if c.op == 's_waitcnt':
            m = re.search(r'vmcnt\((\d+)\)', text); vm = int(m.group(1)) if m else None
            m = re.search(r'lgkmcnt\((\d+)\)', text); lg = int(m.group(1)) if m else None
            if vm is not None: self.vq = self.vq[max(0, len(self.vq) - vm):] if vm else []
            if lg is not None:
                self.lq = self.lq[max(0, len(self.lq) - lg):] if lg else []
                if lg == 0: self.smem = False; self.smem_w = set()
            self._emit(text); self._age(1); self.cost += 4
            return
        touched = set(c.r + c.w)
        vm = lg = None
        for k, e in enumerate(self.vq):
            if touched & set(e['w']): vm = len(self.vq) - 1 - k
        for k, e in enumerate(self.lq):
            if touched & set(e['w']): lg = len(self.lq) - 1 - k
        if touched & self.smem_w: lg = 0
        self.wait(vm, lg)
        n = self._need(c)
        if n > 0:
            self._emit(f's_nop {n-1}'); self._age(n); self.cost += 4 * n
        self._emit(text)
        st = 1
        if c.op == 's_nop': st = int(c.ops[0], 0) + 1
        self._age(st)
        self.hist.append((c, 0))
        if c.kind == 'vmem':
            self.vq.append(dict(w=c.w, tag=tag))
            assert len(self.vq) <= 63, 'too many vmem outstanding'
        elif c.kind == 'ds': self.lq.append(dict(w=c.w, tag=tag))
        elif c.kind == 'smem':
            self.smem = True; self.smem_w |= set(c.w)
        self.cost += {'mfma': 16 if getattr(c,'passes',0) == 4 else 32}.get(c.kind, 8 if c.op in TRANS else 4 * st + (1 if c.kind == 'valu' else 0))
    def skip_begin(self, branch):
        l = self.lab('skip')
        self.one(f'{branch} {l}')
        return (l, list(self.hist), list(self.vq), list(self.lq))
    def skip_end(self, h):
        l, hist, vq, lq = h
        assert [id(e) for e in vq] == [id(e) for e in self.vq] or True
        self.label(l)
        seen = set(id(i) for i, a in hist)
        self.hist = hist + [(i, a) for (i, a) in self.hist if id(i) not in seen]
        self.vq = vq + [e for e in self.vq if all(e is not f for f in vq)]
        self.lq = lq + [e for e in self.lq if all(e is not f for f in lq)]
    def text(self):
        return '\n'.join(self.out) + '\n'
```

```python
import sys, struct
from sa import Stream
KN = 'gated_mix__spectral_gfnet__dense_activation_mish__prompt_kernel'
MB = 1 << 20
FLAGB = 65536
NONCE, FLAGA, E1, E2, WB, WBX, W2P, ACT, STAMP, WSZ = 0, 4096, 1*MB, 3*MB, 5*MB, 7*MB, 8*MB, 10*MB, 16*MB, 17*MB
OOB = 0x40000000
XP = 1040
NSLOT, SLAB = 6, 12288
FA = 0; FB = FA + 8192; GW = FB + 8192; GL = GW + 1024; CNT = GL + 256
XT = CNT + 64; RING = XT + 64*XP; LDSZ = RING + NSLOT*SLAB
REG = 86*2048
PST = XT; RED = XT + 81920
def f32(x): return '0x%08x' % struct.unpack('<I', struct.pack('<f', x))[0]
def vr(a, n): return f'v[{a}:{a+n-1}]' if n > 1 else f'v{a}'
def sr(a, n): return f's[{a}:{a+n-1}]'
sX, sWR, sWI, sW1, sB1, sW2, sGWp, sOUT, sWS = 4, 6, 8, 12, 14, 16, 18, 20, 22
sG0, sJ, sWV, sW = 24, 25, 26, 27
SX, SA, SB, SC, SD, SE = 28, 32, 36, 40, 44, 48
T0, T1, T2, T3 = 52, 53, 54, 55
sNON = 56
sST = 80
MF16 = 'v_mfma_f32_16x16x32_bf16'; MF32 = 'v_mfma_f32_32x32x16_bf16'

class Cfg:
    stamps = False
    gst = ['start', 'X', 'Kend', 'go', 'mish', 'drain', 'goB', 'g2end', 'fbar', 'end']
    fst = ['start', 'preX', 'X', 'fft1', 'flag', 'go', 'in', 'e2st', 'e2ok', 'Fend']
    kA = 9
    tslab = 250
    NP, NQ = 12, 10
    prioG = 0; prioF = 3
    spin = 200000
    permEarly = True; m4early = True; n64pre = 2
    clrF = True; p0 = 2; LA = 3; goTile = 1; wpos = 16; pgap = 12

def srd(a, d, base, nbytes, off=None):
    if off is None:
        a(f's_mov_b32 s{d}, s{base}'); a(f's_mov_b32 s{d+1}, s{base+1}')
    else:
        a(f's_add_u32 s{d}, s{base}, {off}'); a(f's_addc_u32 s{d+1}, s{base+1}, 0')
    a(f's_mov_b32 s{d+2}, {nbytes}'); a(f's_mov_b32 s{d+3}, 0x20000')

def stamp(a, cfg, name, role=None):
    if not cfg.stamps: return
    L = cfg.gst if role == 'G' else cfg.fst
    if name in L:
        i = L.index(name)
        a(f's_memtime {sr(sST+2*i, 2)}' if name.startswith('c') and name[1:2] == '_' else f's_memrealtime {sr(sST+2*i, 2)}')
def stampv(a, cfg, name, role, sreg):
    if not cfg.stamps: return
    L = cfg.gst if role == 'G' else cfg.fst
    if name in L: a(f's_mov_b32 s{sST+2*L.index(name)}, s{sreg}')

def stamps_out(a, cfg, n, srdws):
    if not cfg.stamps: return
    a('s_waitcnt lgkmcnt(0)')
    a(f's_lshl_b32 s{T0}, s2, 3'); a(f's_add_u32 s{T0}, s{T0}, s{sWV}'); a(f's_lshl_b32 s{T0}, s{T0}, 6'); a(f's_add_u32 s{T0}, s{T0}, {STAMP}')
    a('s_mov_b64 exec, 1'); a('v_mov_b32 v2, 0')
    for i in range(n):
        a(f'v_mov_b32 v3, s{sST+2*i}')
        a(f'buffer_store_dword v3, v2, {sr(srdws,4)}, s{T0} offen offset:{4*i}')
        a('s_nop 1')
    a('s_mov_b64 exec, -1')

def lds_spin(a, vaddr, off, target, vt, sleep=False):
    l = a.lab('spin')
    a.wait(lg=0)
    a.label(l)
    if sleep: a('s_sleep 1')
    a(f'ds_read_b32 v{vt}, v{vaddr} offset:{off}')
    a('s_waitcnt lgkmcnt(0)')
    a(f'v_readfirstlane_b32 s{T3}, v{vt}')
    a(f's_cmp_lt_u32 s{T3}, {target}')
    a(f's_cbranch_scc1 {l}')

def lds_arrive(a, vaddr, off, vone):
    a('s_mov_b64 exec, 1')
    a(f'ds_add_u32 v{vaddr}, v{vone} offset:{off}')
    a('s_mov_b64 exec, -1')

def prologue(a, cfg):
    a('s_cmp_ge_u32 s2, 256'); a('s_cbranch_scc1 L_END')
    stamp(a, cfg, 'start', 'G'); stamp(a, cfg, 'c_start', 'G')
    a('s_load_dwordx16 s[4:19], s[0:1], 0')
    a('s_load_dwordx2 s[20:21], s[0:1], 64')
    a('s_load_dwordx2 s[22:23], s[0:1], 80')
    a('v_lshrrev_b32 v2, 6, v0'); a('v_and_b32 v1, 63, v0')
    a(f'v_readfirstlane_b32 s{sWV}, v2')
    a(f's_and_b32 s3, s2, 7'); a(f's_lshl_b32 s{sG0}, s3, 2'); a('s_lshr_b32 s3, s2, 6'); a(f's_add_u32 s{sG0}, s{sG0}, s3')
    a(f's_lshr_b32 s{sJ}, s2, 3'); a(f's_and_b32 s{sJ}, s{sJ}, 7')
    a('v_lshlrev_b32 v12, 4, v1')
    a(f's_and_b32 s{sW}, s{sWV}, 3')
    a(f's_cmp_ge_u32 s{sWV}, 4'); a('s_cbranch_scc1 L_F')

def nonce(a):
    a(f's_mul_i32 s{sNON}, s{sNON}, 0x9e3779b1'); a(f's_add_u32 s{sNON}, s{sNON}, 0x7f4a7c15')
    a(f's_mul_i32 s{sNON+1}, s{sNON+1}, 0x85ebca6b'); a(f's_add_u32 s{sNON+1}, s{sNON+1}, 0xc2b2ae35')

def gen_G(a, cfg):
    vD, vT, vXA, vL16 = 2, 5, 11, 12
    vP, vQ0, vQ1 = 13, 14, 15
    PR, ACC2, QR = 16, 112, 176
    ACC1, FR, TM = 112, 160, 192
    BI = 224
    sU0, sNU, sRH, sFH, sSL = 58, 59, 60, 61, 62
    sAO = 63
    sK = 66
    sQ = 70
    if cfg.prioG: a(f's_setprio {cfg.prioG}')
    a(f's_lshl_b32 s{T0}, s{sW}, 9'); a(f's_add_u32 s{T0}, s{T0}, s{sG0}'); a(f's_lshl_b32 s{T0}, s{T0}, 10')
    a(f's_mul_i32 s{T1}, s{sW}, {16*XP}')
    a('s_waitcnt lgkmcnt(0)')
    srd(a, SX, sX, 2*MB)
    a(f's_load_dwordx2 {sr(sNON,2)}, {sr(sWS,2)}, {NONCE}')
    for i in range(16):
        a(f's_add_u32 m0, s{T1}, {XT + i*XP}')
        if i: a(f's_add_u32 s{T0}, s{T0}, 32768')
        a(f'buffer_load_dwordx4 v12, {sr(SX,4)}, s{T0} offen lds', tag='x')
    srd(a, SA, sW1, 512*2752)
    a(f's_min_u32 s{sU0}, s{sJ}, 3'); a(f's_mul_i32 s{T0}, s{sJ}, 5'); a(f's_add_u32 s{sU0}, s{sU0}, s{T0}')
    a(f's_cmp_lt_u32 s{sJ}, 3'); a(f's_cselect_b32 s{sNU}, 6, 5')
    a(f's_and_b32 s{sRH}, s{sW}, 1'); a(f's_lshr_b32 s{sFH}, s{sW}, 1')
    a(f's_lshl_b32 s{T0}, s{sU0}, 6')
    t = TM
    for u in range(3):
        a(f'v_add_u32 v{t}, {64*u}, v1')
        a(f'v_mul_u32_u24 v{t+1}, 2731, v{t}'); a(f'v_lshrrev_b32 v{t+1}, 16, v{t+1}')
        a(f'v_mul_u32_u24 v{t+2}, 24, v{t+1}'); a(f'v_sub_u32 v{t}, v{t}, v{t+2}')
        a(f'v_lshlrev_b32 v{t+2}, 1, v{t+1}'); a(f'v_and_b32 v{t+2}, 4, v{t+2}'); a(f'v_xor_b32 v{t}, v{t}, v{t+2}')
        a(f'v_lshrrev_b32 v{t+2}, 2, v{t}'); a(f'v_cmp_gt_u32 vcc, s{sNU}, v{t+2}')
        a(f'v_mul_u32_u24 v{t+1}, 2752, v{t+1}'); a(f'v_lshl_add_u32 v{t}, v{t}, 4, v{t+1}'); a(f'v_add_u32 v{t}, s{T0}, v{t}')
        a(f'v_mov_b32 v{t+1}, {OOB}'); a(f'v_cndmask_b32 v{vD+u}, v{t+1}, v{t}, vcc')
    a(f's_mul_i32 s{sSL}, s{sW}, 22016')
    a(f's_mul_i32 s{T1}, s{sW}, 3072')
    def dma(s):
        for u in range(3):
            a(f's_add_u32 m0, s{T1}, {RING + (s % NSLOT)*SLAB + u*1024}')
            if u == 0 and s: a(f's_add_u32 s{sSL}, s{sSL}, 88064')
            a(f'buffer_load_dwordx4 v{vD+u}, {sr(SA,4)}, s{sSL} offen lds', tag=f'w{s}')
    dma(0)
    srd(a, SB, sB1, 2752)
    a(f's_mul_i32 s{T2}, s{sFH}, 3')
    a(f'v_and_b32 v{t}, 31, v1'); a(f'v_lshlrev_b32 v{t}, 1, v{t}'); a(f'v_cmp_gt_u32 vcc, 32, v1')
    a(f'v_mov_b32 v{t+1}, {OOB}'); a(f'v_cndmask_b32 v{t}, v{t+1}, v{t}, vcc')
    for T in range(3):
        a(f's_add_u32 s{T3}, s{T2}, {T}'); a(f's_cmp_lt_u32 s{T3}, s{sNU}')
        a(f's_add_u32 s{T3}, s{T3}, s{sU0}') if False else None
        a(f's_cselect_b32 s{T0}, 0, {OOB}')
        a(f's_add_u32 s{T3}, s{T3}, s{sU0}')
        a(f's_lshl_b32 s{sAO+T}, s{T3}, 12'); a(f's_add_u32 s{sAO+T}, s{sAO+T}, s{T0}')
        a(f's_lshl_b32 s{T3}, s{T3}, 6'); a(f's_add_u32 s{T3}, s{T3}, s{T0}')
        a(f'buffer_load_ushort v{BI+4*T}, v{t}, {sr(SB,4)}, s{T3} offen')
    for s in range(1, cfg.p0): dma(s)
    a(f's_mul_i32 s{T0}, s{sG0}, {REG}'); a(f's_add_u32 s{T0}, s{T0}, {ACT}')
    srd(a, SC, sWS, REG, f's{T0}')
    a(f's_mul_i32 s{T0}, s{sJ}, {REG}'); a(f's_add_u32 s{T0}, s{T0}, {W2P}')
    srd(a, SD, sWS, REG, f's{T0}')
    srd(a, SE, sOUT, 2*MB)
    vAS = t + 8
    a(f's_lshl_b32 s{T0}, s{sRH}, 10'); a(f'v_add_u32 v{vQ0}, s{T0}, v{vL16}')
    a(f'v_lshrrev_b32 v{t}, 5, v1'); a(f'v_lshlrev_b32 v{t}, 3, v{t}'); a(f'v_bfe_u32 v{t+1}, v1, 2, 2'); a(f'v_add_u32 v{t}, v{t}, v{t+1}')
    a(f'v_mul_u32_u24 v{t}, 384, v{t}')
    a(f'v_bfe_u32 v{t+2}, v1, 4, 1'); a(f'v_lshl_add_u32 v{t}, v{t+2}, 5, v{t}')
    a(f'v_and_b32 v{t+2}, 3, v1'); a(f'v_lshl_add_u32 v{t}, v{t+2}, 3, v{t}')
    a(f'v_add_u32 v{t}, {RING}, v{t}')
    a(f'v_lshrrev_b32 v{t+1}, 1, v{t+1}')
    for T in range(3):
        a(f's_add_u32 s{T3}, s{T2}, {T}')
        a(f'v_xor_b32 v{t+2}, s{T3}, v{t+1}'); a(f'v_lshl_add_u32 v{vT+T}, v{t+2}, 6, v{t}')
        a(f'v_add_u32 v{vT+3+T}, {3*SLAB}, v{vT+T}')
    a(f'v_and_b32 v{t}, 31, v1'); a(f's_lshl_b32 s{T0}, s{sRH}, 5'); a(f'v_add_u32 v{t}, s{T0}, v{t}'); a(f'v_mul_u32_u24 v{t}, {XP}, v{t}')
    a(f'v_lshrrev_b32 v{t+1}, 5, v1'); a(f'v_lshl_add_u32 v{vXA}, v{t+1}, 4, v{t}')
    for T in range(3):
        for k in range(1, 4): a(f'v_mov_b32 v{BI+4*T+k}, 0')
    a(f'v_cmp_gt_u32 vcc, 32, v1'); a(f'v_mov_b32 v{t}, 0x3f80'); a(f'v_mov_b32 v{BI+13}, 0'); a(f'v_mov_b32 v{BI+14}, 0'); a(f'v_mov_b32 v{BI+15}, 0')
    a(f'v_cndmask_b32 v{BI+12}, 0, v{t}, vcc')
    a(f's_mov_b32 s{sK}, {f32(1.4426950408889634)}'); a(f's_mov_b32 s{sK+1}, {f32(1.4426950408889634)}')
    a(f's_mov_b32 s{sK+2}, 2.0'); a(f's_mov_b32 s{sK+3}, 2.0')
    stamp(a, cfg, 'iss', 'G')
    nonce(a)
    a.wait_tag('x'); stamp(a, cfg, 'preX', 'G'); a('s_barrier')
    stamp(a, cfg, 'X', 'G')
    for T in range(3): a(f'{MF32} {vr(ACC1+16*T,16)}, {vr(BI+4*T,4)}, {vr(BI+12,4)}, 0')
    for s in range(cfg.p0, cfg.LA + 1): dma(s)
    def reads(s, ks):
        f = FR + 16*ks
        L = [f'ds_read_b128 {vr(f,4)}, v{vXA} offset:{XT + (2*s+ks)*32}']
        slot = s % NSLOT
        for T in range(3):
            for hf in range(2):
                L.append(f'ds_read_b64_tr_b16 {vr(f+4+4*T+2*hf,2)}, v{vT+3*(slot//3)+T} offset:{(slot%3)*SLAB + (16*ks+4*hf)*384}')
        return L
    def mf(ks, T):
        f = FR + 16*ks
        a(f'{MF32} {vr(ACC1+16*T,16)}, {vr(f+4+4*T,4)}, {vr(f,4)}, {vr(ACC1+16*T,16)}')
    a.wait_tag('w0'); a('s_barrier')
    for r in reads(0, 0): a(r)
    for s in range(16):
        stamp(a, cfg, f'k{s}', 'G')
        R = reads(s, 1)
        mf(0, 0); a(R[0]); a(R[1]); a(R[2])
        mf(0, 1); a(R[3]); a(R[4])
        mf(0, 2); a(R[5]); a(R[6])
        mf(1, 0)
        if s < 15:
            a.wait_tag(f'w{s+1}'); a('s_barrier')
            R = reads(s+1, 0)
            a(R[0]); a(R[1]); a(R[2])
            mf(1, 1); a(R[3]); a(R[4]); a(R[5]); a(R[6])
            mf(1, 2)
            if s + 1 + cfg.LA < 16: dma(s + 1 + cfg.LA)
        else:
            mf(1, 1); mf(1, 2)
    stamp(a, cfg, 'Kend', 'G')
    a(f'v_mov_b32 v{t}, {CNT}')
    a(f'v_and_b32 v{t+1}, 31, v1'); a(f's_lshl_b32 s{T0}, s{sFH}, 4'); a(f'v_xor_b32 v{t+1}, s{T0}, v{t+1}')
    a(f'v_lshrrev_b32 v{t+2}, 5, v1'); a(f'v_lshlrev_b32 v{t+2}, 9, v{t+2}'); a(f'v_lshl_add_u32 v{vP}, v{t+1}, 4, v{t+2}')
    a(f's_lshl_b32 s{T0}, s{sW}, 11'); a(f'v_add_u32 v{vP}, s{T0}, v{vP}')
    vCN = 11
    a(f'v_mov_b32 v{vCN}, {CNT}')
    a(f's_mul_i32 s{T1}, s{sW}, 20480')
    pend = []
    for i in range(cfg.NP):
        r = PR + 8*i
        pend.append([f's_mov_b32 s{T0}, {i*8192}', f'buffer_load_dwordx4 {vr(r,4)}, v{vP}, {sr(SD,4)}, s{T0} offen sc1'])
        pend.append([f'buffer_load_dwordx4 {vr(r+4,4)}, v{vP}, {sr(SD,4)}, s{T0} offen offset:1024 sc1'])
    for i in range(cfg.NP, 22):
        for hb in range(2):
            pend.append([f's_add_u32 m0, s{T1}, {PST + (i-cfg.NP)*2048}', f's_mov_b32 s{T0}, {i*8192}',
                         f'buffer_load_dwordx4 v{vP}, {sr(SD,4)}, s{T0} offen offset:{1024*hb} sc1 lds'])
    cnt = [0]; on = [False]
    def popP():
        for l in pend.pop(0): a(l, tag='p')
    def m(x):
        a(x); cnt[0] += 1
        if on[0] and pend and cnt[0] % cfg.pgap == 0: popP()
    for T in range(3):
        if T == cfg.goTile:
            a('s_barrier')
            lds_spin(a, vCN, 0, 1, TM, sleep=True); stamp(a, cfg, 'go', 'G'); on[0] = True
            for k in range(4): popP()
        for hb in range(2):
            h = ACC1 + 16*T + 8*hb
            e, u, o = TM, TM + 8, TM + 16 + 4*((2*T+hb) % 2)
            for k in range(4): m(f'v_pk_mul_f32 {vr(e+2*k,2)}, {vr(h+2*k,2)}, {sr(sK,2)}')
            for k in range(8): m(f'v_min_f32 v{e+k}, 0x42700000, v{e+k}')
            for k in range(8): m(f'v_exp_f32 v{e+k}, v{e+k}')
            for k in range(4): m(f'v_pk_add_f32 {vr(u+2*k,2)}, {vr(e+2*k,2)}, {sr(sK+2,2)}')
            for k in range(4): m(f'v_pk_mul_f32 {vr(e+2*k,2)}, {vr(e+2*k,2)}, {vr(u+2*k,2)}')
            for k in range(4): m(f'v_pk_add_f32 {vr(u+2*k,2)}, {vr(e+2*k,2)}, {sr(sK+2,2)}')
            for k in range(8): m(f'v_rcp_f32 v{u+k}, v{u+k}')
            for k in range(4): m(f'v_pk_mul_f32 {vr(e+2*k,2)}, {vr(e+2*k,2)}, {vr(u+2*k,2)}')
            for k in range(4): m(f'v_pk_mul_f32 {vr(e+2*k,2)}, {vr(e+2*k,2)}, {vr(h+2*k,2)}')
            for k in range(4): m(f'v_cvt_pk_bf16_f32 v{o+k}, v{e+2*k}, v{e+2*k+1}')
            a(f'buffer_store_dwordx4 {vr(o,4)}, v{vQ0}, {sr(SC,4)}, s{sAO+T} offen offset:{2048*hb} sc1', tag='act')
    stamp(a, cfg, 'mish', 'G')
    if cfg.goTile >= 3:
        a('s_barrier')
        lds_spin(a, vCN, 0, 1, TM, sleep=True); stamp(a, cfg, 'go', 'G')
    while pend: popP()
    stamp(a, cfg, 'piss', 'G')
    srd(a, SA, sWS, WSZ)
    a(f'v_mov_b32 v{TM+8}, 1'); a(f'v_mov_b32 v{TM+10}, s{sNON}'); a(f'v_mov_b32 v{TM+11}, s{sNON+1}')
    a(f'v_and_b32 v{TM+12}, 7, v1'); a(f'v_lshlrev_b32 v{TM+12}, 7, v{TM+12}'); a(f'v_mov_b32 v{TM+13}, 0')
    a(f's_lshl_b32 s{T0}, s{sG0}, 10'); a(f's_add_u32 s{T0}, s{T0}, {FLAGB}'); a(f's_lshl_b32 s{T2}, s{sJ}, 7'); a(f's_add_u32 s{T2}, s{T2}, s{T0}')
    a.wait_tag('act')
    stamp(a, cfg, 'drain', 'G')
    a('s_mov_b64 exec, 1'); a(f'ds_add_rtn_u32 v{TM+9}, v{vCN}, v{TM+8} offset:16'); a('s_mov_b64 exec, -1')
    a(f'v_readfirstlane_b32 s{T3}, v{TM+9}')
    lnp = a.lab('nopollB'); lpb = a.lab('pollB'); lgb = a.lab('goB')
    a(f's_cmp_lg_u32 s{T3}, 3'); a(f's_cbranch_scc1 {lnp}')
    vq = list(a.vq)
    a('s_mov_b64 exec, 1'); a(f'buffer_store_dwordx2 {vr(TM+10,2)}, v{TM+13}, {sr(SA,4)}, s{T2} offen sc1'); a('s_mov_b64 exec, -1')
    a(f's_mov_b32 s{sU0}, 0')
    a.label(lpb)
    a(f'buffer_load_dwordx2 {vr(TM,2)}, v{TM+12}, {sr(SA,4)}, s{T0} offen sc1')
    a(f'v_xor_b32 v{TM}, s{sNON}, v{TM}'); a(f'v_xor_b32 v{TM+1}, s{sNON+1}, v{TM+1}'); a(f'v_or_b32 v{TM}, v{TM}, v{TM+1}')
    a(f'v_cmp_ne_u32 vcc, 0, v{TM}'); a(f's_cbranch_vccz {lgb}')
    a('s_sleep 1'); a(f's_add_u32 s{sU0}, s{sU0}, 1'); a(f's_cmp_lt_u32 s{sU0}, {cfg.spin}'); a(f's_cbranch_scc1 {lpb}')
    a.label(lgb)
    lds_arrive(a, vCN, 20, TM+8)
    a.label(lnp)
    a.vq = vq
    a(f's_lshl_b32 s{T0}, s{sW}, 11'); a(f's_lshl_b32 s{T2}, s{sRH}, 10'); a(f's_add_u32 s{T0}, s{T0}, s{T2}')
    a(f'v_add_u32 v{vQ0}, s{T0}, v{vL16}'); a(f'v_xor_b32 v{vQ1}, 1024, v{vQ0}')
    a(f'v_add_u32 v{vP}, s{T1}, v{vL16}')
    lds_spin(a, vCN, 20, 1, TM, sleep=True)
    stamp(a, cfg, 'goB', 'G')
    def loadP(i):
        r = PR + 8*(i % cfg.NP)
        a.wait_tag('p')
        for hb in range(2): a(f'ds_read_b128 {vr(r+4*hb,4)}, v{vP} offset:{PST + (i-cfg.NP)*2048 + 1024*hb}')
    def loadQ(i):
        k = i % cfg.NQ; r = QR + 8*k
        a(f's_mov_b32 s{sQ+k}, {i*8192}')
        a(f'buffer_load_dwordx4 {vr(r,4)}, v{vQ0}, {sr(SC,4)}, s{sQ+k} offen sc1')
        a(f'buffer_load_dwordx4 {vr(r+4,4)}, v{vQ1}, {sr(SC,4)}, s{sQ+k} offen sc1')
    for i in range(cfg.NQ): loadQ(i)
    NS = 22
    for i in range(NS):
        p = PR + 8*(i % cfg.NP); q = QR + 8*(i % cfg.NQ)
        stamp(a, cfg, f'g{i}', 'G')
        for mt in range(2):
            for nt in range(2):
                d = ACC2 + 32*mt + 16*nt
                a(f'{MF32} {vr(d,16)}, {vr(p+4*mt,4)}, {vr(q+4*nt,4)}, {vr(d,16) if i else 0}')
        if i + cfg.NQ < NS: loadQ(i + cfg.NQ)
        if i + cfg.NP < NS: loadP(i + cfg.NP)
    stamp(a, cfg, 'g2end', 'G')
    def quad(k, mt, rr): return ACC2 + 32*mt + 16*(k & 1) + 4*(2*(k >> 1) + rr)
    for k in range(1, 4):
        a(f's_xor_b32 s{T0}, s{sW}, {k}'); a(f's_mul_i32 s{T0}, s{T0}, 12288'); a(f's_add_u32 s{T0}, s{T0}, {RED}'); a(f'v_add_u32 v{2+k}, s{T0}, v{vL16}')
    for k in range(1, 4):
        for mt in range(2):
            for rr in range(2):
                a(f'ds_write_b128 v{2+k}, {vr(quad(k,mt,rr),4)} offset:{(k-1)*4096 + (2*mt+rr)*1024}')
    vRA, vAA, vGA, vO = 6, 7, 8, 9
    a(f's_mul_i32 s{T0}, s{sW}, 12288'); a(f's_add_u32 s{T0}, s{T0}, {RED}'); a(f'v_add_u32 v{vRA}, s{T0}, v{vL16}')
    a(f'v_and_b32 v10, 31, v1'); a(f's_and_b32 s{T0}, s{sW}, 1'); a(f's_lshl_b32 s{T0}, s{T0}, 5'); a(f'v_add_u32 v10, s{T0}, v10')
    a(f'v_lshrrev_b32 v11, 5, v1'); a(f's_lshr_b32 s{T0}, s{sW}, 1'); a(f's_lshl_b32 s{T0}, s{T0}, 2'); a(f'v_add_u32 v11, s{T0}, v11')
    a(f'v_lshlrev_b32 v{vGA}, 2, v10'); a(f'v_add_u32 v{vGA}, {GL}, v{vGA}')
    a(f'v_bfe_u32 v13, v10, 1, 3'); a('v_xor_b32 v13, v13, v11'); a(f'v_lshlrev_b32 v{vAA}, 7, v10'); a(f'v_lshl_add_u32 v{vAA}, v13, 4, v{vAA}'); a(f'v_add_u32 v{vAA}, {FB}, v{vAA}')
    a(f'v_xor_b32 v13, 32, v{vAA}')
    a(f'v_lshlrev_b32 v{vO}, 15, v10'); a(f'v_lshl_add_u32 v{vO}, v11, 7, v{vO}')
    a(f's_lshl_b32 s{T1}, s{sG0}, 10'); a(f's_lshl_b32 s{T0}, s{sJ}, 4'); a(f's_add_u32 s{T1}, s{T1}, s{T0}')
    a.wait(lg=0); a('s_barrier')
    stamp(a, cfg, 'fbar', 'G')
    RD = PR
    for k in range(1, 4):
        for mq in range(4): a(f'ds_read_b128 {vr(RD+16*(k-1)+4*mq,4)}, v{vRA} offset:{(k-1)*4096 + mq*1024}')
    AA = PR + 48
    a(f'ds_read_b128 {vr(AA,4)}, v{vAA}'); a(f'ds_read_b128 {vr(AA+4,4)}, v13'); a(f'ds_read_b32 v14, v{vGA}')
    for k in range(1, 4):
        for mt in range(2):
            for rr in range(2):
                for pp in range(2):
                    d = quad(0, mt, rr) + 2*pp; s_ = RD + 16*(k-1) + 4*(2*mt+rr) + 2*pp
                    a(f'v_pk_add_f32 {vr(d,2)}, {vr(d,2)}, {vr(s_,2)}')
    U = PR + 56
    for rr in range(2):
        for k in range(4):
            lo, hi = U + 2*k, U + 2*k + 1
            b0, b1 = quad(0, 0, rr) + k, quad(0, 1, rr) + k
            a(f'v_lshlrev_b32 v{lo}, 16, v{AA+4*rr+k}'); a(f'v_and_b32 v{hi}, 0xffff0000, v{AA+4*rr+k}')
            a(f'v_sub_f32 v{lo}, v{lo}, v{b0}'); a(f'v_sub_f32 v{hi}, v{hi}, v{b1}')
            a(f'v_fmac_f32 v{b0}, v14, v{lo}'); a(f'v_fmac_f32 v{b1}, v14, v{hi}')
        for k in range(4): a(f'v_cvt_pk_bf16_f32 v{U+8+4*rr+k}, v{quad(0,0,rr)+k}, v{quad(0,1,rr)+k}')
        a(f'buffer_store_dwordx4 {vr(U+8+4*rr,4)}, v{vO}, {sr(SE,4)}, s{T1} offen offset:{256*rr}')
    stamp(a, cfg, 'end', 'G')
    if cfg.stamps:
        stamp(a, cfg, 'c_end', 'G'); stampv(a, cfg, 'retry', 'G', sU0); srd(a, SA, sWS, WSZ); stamps_out(a, cfg, 10, SA)
    a('s_endpgm')

class Paced:
    def __init__(self, a, cfg):
        self.a, self.cfg, self.on, self.n, self.t0 = a, cfg, False, 0, 0
        self.limit = 17
    def start(self): self.on = True; self.t0 = self.a.cost
    def bar(self):
        self.a('s_barrier'); self.n += 1
    def __call__(self, s, tag=None):
        self.a(s, tag)
        if self.on and self.n < self.limit and (self.a.cost - self.t0) >= self.cfg.tslab * self.n + self.cfg.tslab // 3:
            self.bar()
    def until(self, n):
        while self.n < n: self.bar()

def cs_pairs(a, base, step, mults, tmp, outs):
    for g in range(len(mults)//4):
        an, c, s = tmp, tmp + 4, tmp + 8
        for k in range(4):
            m = mults[4*g+k]
            if m: a(f'v_fmamk_f32 v{an+k}, v{step}, {f32(float(m))}, v{base}')
        src = lambda k: an + k if mults[4*g+k] else base
        for k in range(4): a(f'v_cos_f32 v{c+k}, v{src(k)}')
        for k in range(4): a(f'v_sin_f32 v{s+k}, v{src(k)}')
        L = [(kind, dst, p) for p in range(2) for kind, dst in outs(2*g+p)]
        L.sort(key=lambda x: x[0] != 'c')
        for kind, dst, p in L:
            if kind == 'c': a(f'v_cvt_pk_bf16_f32 v{dst}, v{c+2*p}, v{c+2*p+1}')
            elif kind == 's': a(f'v_cvt_pk_bf16_f32 v{dst}, v{s+2*p}, v{s+2*p+1}')
            else: a(f'v_cvt_pk_bf16_f32 v{dst}, -v{s+2*p}, -v{s+2*p+1}')

def gen_F(a0, cfg):
    a = Paced(a0, cfg)
    vN, vQ, vL16, vCN, vONE = 2, 3, 12, 4, 5
    vE2, vMA, vMB, vNf, vQf, vN4 = 6, 7, 8, 9, 10, 15
    M1, M2, M4, M5, N8, N64, WF, IN, WK, PK = 16, 48, 72, 96, 128, 152, 184, 200, 232, 248
    sB, sK1, sROT, sPAIR = 58, 59, 60, 61
    mK0, mK5, mK04 = 62, 64, 66
    sMIR = 68; sSC = 69
    sE2, sE1, sIH, sKH = 70, 72, 74, 75
    a0.label('L_F')
    if cfg.prioF: a(f's_setprio {cfg.prioF}')
    t = WK
    a(f'v_and_b32 v{vN}, 15, v1'); a(f'v_lshrrev_b32 v{vQ}, 4, v1')
    a(f'v_and_b32 v{t}, 255, v0'); a(f'v_lshlrev_b32 v{t+1}, 2, v{t}')
    a(f's_lshr_b32 s{T0}, s2, 1'); a(f's_lshl_b32 s{T0}, s{T0}, 14'); a(f's_and_b32 s{T1}, s2, 1'); a(f's_lshl_b32 s{T1}, s{T1}, 12'); a(f's_add_u32 s{T0}, s{T0}, s{T1}')
    a(f's_add_u32 s{T1}, s{T0}, 8192')
    a('s_waitcnt lgkmcnt(0)')
    srd(a, SB, sW2, 1376*1024)
    L2 = M1
    for e in range(8): a(f'buffer_load_dword v{L2+e}, v{t+1}, {sr(SB,4)}, s{T0 if e < 4 else T1} offen offset:{1024*(e&3)}')
    srd(a, SE, sGWp, 1024)
    a(f's_lshl_b32 s{T0}, s{sW}, 8'); a(f's_add_u32 m0, s{T0}, {GW}'); a(f'v_lshlrev_b32 v{t}, 2, v1')
    a(f'buffer_load_dword v{t}, {sr(SE,4)}, s{T0} offen lds', tag='gw')
    a(f's_load_dwordx2 {sr(sNON,2)}, {sr(sWS,2)}, {NONCE}')
    srd(a, SA, sWS, WSZ); srd(a, SC, sWR, 2048*514); srd(a, SD, sWI, 2048*514)
    a(f'v_mov_b32 v{vCN}, {CNT}'); a(f'v_mov_b32 v{vONE}, 1')
    for k in range(4): a(f'v_mov_b32 v{t+4+k}, 0')
    a(f'ds_write_b128 v{vCN}, {vr(t+4,4)}'); a(f'ds_write_b128 v{vCN}, {vr(t+4,4)} offset:16')
    stamp(a, cfg, 'iss', 'F')
    F64, F8 = 128, 144
    a(f's_and_b32 s{sIH}, s{sW}, 1'); a(f's_lshr_b32 s{sKH}, s{sW}, 1')
    a(f'v_cvt_f32_u32 v{vNf}, v{vN}'); a(f'v_cvt_f32_u32 v{vQf}, v{vQ}')
    a(f's_lshl_b32 s{T0}, s{sKH}, 4'); a(f'v_add_u32 v{t}, s{T0}, v{vN}'); a(f'v_cmp_eq_u32 {sr(mK0,2)}, 0, v{t}')
    a(f'v_cvt_f32_u32 v{t}, v{t}'); a(f'v_mul_f32 v{t}, {f32(1/64)}, v{t}'); a(f'v_mul_f32 v{t+1}, {f32(8.0)}, v{vQf}'); a(f'v_mul_f32 v{t+1}, v{t+1}, v{t}')
    cs_pairs(a, t+1, t, [32*st + e for st in range(2) for e in range(8)], t+2,
             lambda pi: [('c', F64 + 8*(pi//4) + pi % 4), ('m', F64 + 8*(pi//4) + 4 + pi % 4)])
    a(f'v_mov_b32 v{t}, 0xbf803f80')
    for st in range(2):
        for k in range(4): a(f'v_cndmask_b32 v{F64+8*st+4+k}, v{F64+8*st+4+k}, v{t}, {sr(mK0,2)}')
    a(f'v_and_b32 v{t}, 1, v1'); a(f'v_lshlrev_b32 v{t}, 4, v{t}'); a(f'v_mov_b32 v{t+1}, 0xffff'); a(f'v_lshlrev_b32 v{t}, v{t}, v{t+1}')
    a(f'v_and_b32 v{t+1}, 2, v1'); a(f'v_cmp_eq_u32 vcc, 0, v{t+1}')
    a(f'v_lshrrev_b32 v{vN4}, 2, v{vN}'); a(f'v_cvt_f32_u32 v{vN4}, v{vN4}'); a(f'v_mul_f32 v{vN4}, {f32(0.125)}, v{vN4}')
    a(f'v_cndmask_b32 v{vMA}, 0, v{t}, vcc'); a(f'v_xor_b32 v{vMB}, v{vMA}, v{t}')
    def dft8(a, t, emit):
        a(f'v_add_f32 v{t}, 0.5, v{vN4}'); a(f'v_add_f32 v{t+1}, 4.0, v{vQf}')
        for i in range(2):
            for k in range(2): a(f'v_mul_f32 v{t+2+2*i+k}, v{t if i else vN4}, v{t+1 if k else vQf}')
        for u in range(4): a(f'v_cos_f32 v{t+6+u}, v{t+2+u}')
        for u in range(4): a(f'v_sin_f32 v{t+10+u}, v{t+2+u}')
        for u in range(4): a(f'v_cvt_pk_bf16_f32 v{t+6+u}, v{t+6+u}, v{t+6+u}')
        for u in range(4): a(f'v_cvt_pk_bf16_f32 v{t+2+u}, -v{t+10+u}, -v{t+10+u}')
        for u in range(4): a(f'v_cvt_pk_bf16_f32 v{t+10+u}, v{t+10+u}, v{t+10+u}')
        for u in range(4):
            for kind, src in (('c', t+6+u), ('m', t+2+u), ('s', t+10+u)):
                d = emit(u >> 1, u & 1, kind)
                a(f'v_and_b32 v{d}, v{src}, v{vMA}'); a(f'v_and_b32 v{d+1}, v{src}, v{vMB}')
    dft8(a, t, lambda t2, tt, kind: F8 + 12*t2 + {'c': 0, 's': 4, 'm': 8}[kind] + 2*tt)
    stamp(a, cfg, 'con1', 'F')
    vTR, vE1 = 11, 13
    a(f'v_lshlrev_b32 v{t}, 3, v{vQ}'); a(f'v_bfe_u32 v{t+1}, v1, 2, 2'); a(f'v_add_u32 v{t}, v{t}, v{t+1}'); a(f'v_mul_u32_u24 v{t}, {XP}, v{t}')
    a(f'v_and_b32 v{t+1}, 3, v1'); a(f'v_lshl_add_u32 v{t}, v{t+1}, 7, v{t}')
    a(f's_lshl_b32 s{T0}, s{sJ}, 4'); a(f's_lshl_b32 s{T1}, s{sIH}, 3'); a(f's_add_u32 s{T0}, s{T0}, s{T1}'); a(f'v_add_u32 v{vTR}, s{T0}, v{t}')
    a(f'v_lshrrev_b32 v{t}, 2, v{vN}'); a(f's_lshl_b32 s{T0}, s{sKH}, 2'); a(f'v_add_u32 v{t}, s{T0}, v{t}'); a(f'v_lshl_add_u32 v{t}, v{t}, 3, v{vQ}')
    a(f'v_lshlrev_b32 v{t}, 15, v{t}'); a(f'v_and_b32 v{t+1}, 3, v{vN}'); a(f'v_lshl_add_u32 v{vE1}, v{t+1}, 4, v{t}')
    a(f's_lshl_b32 s{T0}, s{sG0}, 3'); a(f's_add_u32 s{sB}, s{T0}, s{sJ}')
    a(f's_lshl_b32 s{T0}, s{sB}, 7'); a(f's_lshl_b32 s{T1}, s{sIH}, 6'); a(f's_add_u32 s{T0}, s{T0}, s{T1}'); a(f's_add_u32 s{sE1}, s{T0}, {E1}'); a(f's_add_u32 s{sE1+1}, s{sE1}, 131072')
    a(f'v_cmp_eq_u32 vcc, 0, v{vQ}'); a(f's_and_b64 {sr(mK04,2)}, vcc, {sr(mK0,2)}'); a(f's_andn2_b64 {sr(mK5,2)}, {sr(mK0,2)}, vcc')
    a(f'v_lshrrev_b32 v{t}, 1, v{vN}'); a(f'v_lshlrev_b32 v{vE2}, 17, v{t}'); a(f'v_lshrrev_b32 v{t}, 1, v{vQ}'); a(f'v_lshl_add_u32 v{vE2}, v{t}, 14, v{vE2}')
    a(f'v_and_b32 v{t}, 1, v{vN}'); a(f'v_lshl_add_u32 v{vE2}, v{t}, 5, v{vE2}'); a(f'v_and_b32 v{t}, 1, v{vQ}'); a(f'v_lshl_add_u32 v{vE2}, v{t}, 4, v{vE2}')
    a(f's_lshl_b32 s{T0}, s{sB}, 6'); a(f's_lshl_b32 s{T1}, s{sW}, 15')
    a(f's_add_u32 s{sE2}, s{T0}, s{T1}'); a(f's_add_u32 s{sE2}, s{sE2}, {E2}'); a(f's_add_u32 s{sE2+1}, s{sE2}, {MB}')
    def perm_finish(a):
        P0 = M1 + 8
        a(f'v_and_b32 v{P0+8}, 255, v0'); a(f'v_bfe_u32 v{P0+9}, v{P0+8}, 2, 3'); a(f's_mov_b32 s{T0}, {REG}'); a(f'v_mul_lo_u32 v{P0+9}, v{P0+9}, s{T0}')
        a(f'v_lshrrev_b32 v{P0+10}, 5, v{P0+8}'); a(f'v_lshl_add_u32 v{P0+9}, v{P0+10}, 6, v{P0+9}'); a(f'v_and_b32 v{P0+10}, 3, v{P0+8}'); a(f'v_lshl_add_u32 v{P0+9}, v{P0+10}, 4, v{P0+9}')
        a(f's_lshr_b32 s{T2}, s2, 1'); a(f's_lshl_b32 s{T2}, s{T2}, 11'); a(f's_and_b32 s{T1}, s2, 1'); a(f's_lshl_b32 s{T1}, s{T1}, 9'); a(f's_add_u32 s{T2}, s{T2}, s{T1}')
        a(f's_add_u32 s{T2}, s{T2}, {W2P}'); a('s_cmp_lt_u32 s2, 172'); a(f's_cselect_b32 s{T2}, s{T2}, {OOB}')
        a(f's_mov_b32 s{T0}, 0x05040100'); a(f's_mov_b32 s{T1}, 0x07060302')
        for k in range(4):
            a(f'v_perm_b32 v{P0+k}, v{L2+2*k+1}, v{L2+2*k}, s{T0}'); a(f'v_perm_b32 v{P0+4+k}, v{L2+2*k+1}, v{L2+2*k}, s{T1}')
        a(f'buffer_store_dwordx4 {vr(P0,4)}, v{P0+9}, {sr(SA,4)}, s{T2} offen sc1')
        a(f'buffer_store_dwordx4 {vr(P0+4,4)}, v{P0+9}, {sr(SA,4)}, s{T2} offen offset:1024 sc1')
        for k in range(4): a(f'v_mov_b32 v{P0+12+k}, -1')
        for tt in range(2):
            if cfg.clrF: a(f'buffer_store_dwordx4 {vr(P0+12,4)}, v{vE2}, {sr(SA,4)}, s{sE2+tt} offen sc1')
    if cfg.permEarly: perm_finish(a)
    stamp(a, cfg, 'perm', 'F')
    a0.wait_tag('gw'); a0.wait(lg=0)
    stamp(a, cfg, 'preX', 'F')
    a('s_barrier')
    stamp(a, cfg, 'X', 'F')
    DA, C1, C2, Z = IN, IN + 16, WK, 168
    for st in range(2):
        for tt in range(2):
            for hf in range(2):
                a(f'ds_read_b64_tr_b16 {vr(DA+8*st+4*tt+2*hf,2)}, v{vTR} offset:{XT + (32*st+4*hf)*XP + 512*tt}')
    a.start()
    for st in range(2):
        for tt in range(2):
            for c in range(2):
                d = C1 + 8*c + 4*tt
                a(f'{MF16} {vr(d,4)}, {vr(DA+8*st+4*tt,4)}, {vr(F64+8*st+4*c,4)}, {vr(d,4) if st else 0}')
    for c in range(2):
        for k in range(4): a(f'v_cvt_pk_bf16_f32 v{PK+4*c+k}, v{C1+8*c+2*k}, v{C1+8*c+2*k+1}')
    BM = DA
    for k in range(4): a(f'v_cndmask_b32 v{BM+k}, v{PK+4+k}, 0, {sr(mK0,2)}')
    for t2 in range(2):
        cc, ss, mm = F8 + 12*t2, F8 + 12*t2 + 4, F8 + 12*t2 + 8
        a(f'{MF16} {vr(C2+8*t2,4)}, {vr(cc,4)}, {vr(PK,4)}, 0')
        a(f'{MF16} {vr(C2+8*t2+4,4)}, {vr(mm,4)}, {vr(PK,4)}, 0')
    for t2 in range(2):
        cc, ss, mm = F8 + 12*t2, F8 + 12*t2 + 4, F8 + 12*t2 + 8
        a(f'{MF16} {vr(C2+8*t2,4)}, {vr(ss,4)}, {vr(BM,4)}, {vr(C2+8*t2,4)}')
        a(f'{MF16} {vr(C2+8*t2+4,4)}, {vr(cc,4)}, {vr(BM,4)}, {vr(C2+8*t2+4,4)}')
    a(f'{MF16} {vr(Z,4)}, {vr(F8,4)}, {vr(PK+4,4)}, 0')
    a(f'{MF16} {vr(Z+4,4)}, {vr(F8+12,4)}, {vr(PK+4,4)}, 0')
    a(f'{MF16} {vr(Z+8,4)}, {vr(F8+20,4)}, {vr(PK+4,4)}, 0')
    O = C1
    for k in range(8): a(f'v_cvt_pk_bf16_f32 v{O+k}, v{C2+2*k}, v{C2+2*k+1}')
    for k in range(6): a(f'v_cvt_pk_bf16_f32 v{O+8+k}, v{Z+2*k}, v{Z+2*k+1}')
    for k in range(2):
        a(f'v_cndmask_b32 v{O+2+k}, v{O+2+k}, v{O+8+k}, {sr(mK04,2)}')
        a(f'v_cndmask_b32 v{O+6+k}, v{O+6+k}, v{O+10+k}, {sr(mK04,2)}')
        a(f'v_cndmask_b32 v{O+4+k}, v{O+4+k}, v{O+10+k}, {sr(mK5,2)}')
        a(f'v_cndmask_b32 v{O+6+k}, v{O+6+k}, v{O+12+k}, {sr(mK5,2)}')
    for t2 in range(2): a(f'buffer_store_dwordx4 {vr(O+4*t2,4)}, v{vE1}, {sr(SA,4)}, s{sE1+t2} offen sc1', tag='e1')
    stamp(a, cfg, 'fft1', 'F')
    if not cfg.permEarly: perm_finish(a)
    a.limit = cfg.kA
    vGX, vGG = 11, 13
    a(f's_lshl_b32 s{T0}, s{sW}, 4'); a(f'v_add_u32 v{t}, s{T0}, v{vN}'); a(f'v_lshlrev_b32 v14, 2, v{t}'); a(f'v_mul_u32_u24 v{t}, {XP}, v{t}')
    a(f'v_lshl_add_u32 v{vGX}, v{vQ}, 4, v{t}'); a(f'v_lshlrev_b32 v{vGG}, 4, v{vQ}')
    GA = WK + 8
    GB = 128
    for b in range(2):
        for k in range(8):
            ks = 8*b + k
            a(f'ds_read_b128 {vr(GB+8*k,4)}, v{vGX} offset:{XT + 64*ks}'); a(f'ds_read_b128 {vr(GB+8*k+4,4)}, v{vGG} offset:{GW + 64*ks}')
        for k in range(8):
            a(f'{MF16} {vr(GA+4*(k&1),4)}, {vr(GB+8*k+4,4)}, {vr(GB+8*k,4)}, {vr(GA+4*(k&1),4) if (b or k > 1) else 0}')
    a(f's_cmp_eq_u32 s{sG0}, 0'); a(f's_cselect_b32 s{T0}, 1, 0')
    a(f's_and_b32 s{T1}, s{sJ}, 3'); a(f's_cmp_eq_u32 s{T1}, 0'); a(f's_cselect_b32 s{sPAIR}, s{T0}, 0')
    a(f's_cmp_gt_u32 s{sJ}, 4'); a(f's_cselect_b32 s{T1}, s{T0}, 0')
    a(f's_mul_i32 s{sROT}, s{T1}, {f32(0.25)}')
    a(f's_lshr_b32 s{T2}, s{sW}, 1'); a(f's_andn2_b32 s{sMIR}, s{T2}, s{sPAIR}')
    a(f's_and_b32 s{T2}, s{T2}, s{sPAIR}'); a(f's_or_b32 s{T1}, s{T1}, s{T2}'); a(f's_lshl_b32 s{T1}, s{T1}, 5')
    a(f's_add_u32 s{sK1}, s{sG0}, s{T1}')
    nonce(a)
    t = IN
    def con_M1(a):
        a(f's_lshl_b32 s{T0}, s{sPAIR}, 1'); a(f's_andn2_b32 s{T0}, s{sW}, s{T0}'); a(f's_lshl_b32 s{T0}, s{T0}, 7'); a(f's_add_u32 s{T0}, s{T0}, s{sJ}')
        a(f'v_lshlrev_b32 v{t}, 3, v{vN}'); a(f'v_add_u32 v11, s{T0}, v{t}'); a(f'v_cvt_f32_u32 v{t}, v11'); a(f'v_mul_f32 v{t}, {f32(1/512)}, v{t}')
        a(f'v_mul_f32 v{t+1}, 4.0, v{vQf}'); a(f'v_mul_f32 v{t+1}, v{t+1}, v{t}')
        cs_pairs(a, t+1, t, [16*sg + e for sg in range(4) for e in range(4)], t+2,
                 lambda pi: [('c', M1 + 8*(pi//2) + pi % 2), ('s', M1 + 8*(pi//2) + 2 + pi % 2), ('m', M1 + 8*(pi//2) + 4 + pi % 2), ('c', M1 + 8*(pi//2) + 6 + pi % 2)])
    def con_M2(a):
        for t2 in range(2):
            a(f'v_lshlrev_b32 v{t}, 6, v{vN}'); a(f's_add_u32 s{T0}, s{sK1}, {1024*t2}'); a(f'v_add_u32 v{t}, s{T0}, v{t}'); a(f'v_cvt_f32_u32 v{t}, v{t}'); a(f'v_mul_f32 v{t}, {f32(1/2048)}, v{t}')
            a(f'v_mul_f32 v{t+1}, 4.0, v{vQf}'); a(f'v_mul_f32 v{t+1}, v{t+1}, v{t}')
            cs_pairs(a, t+1, t, [16*tt + r for tt in range(2) for r in range(4)], t+2,
                     lambda pi: [('c', M2 + 12*t2 + pi), ('s', M2 + 12*t2 + 4 + pi), ('m', M2 + 12*t2 + 8 + pi)])
    def con_M4(a):
        a(f'v_lshlrev_b32 v{t+14}, 8, v{vQ}'); a(f'v_add_u32 v{t+14}, s{sK1}, v{t+14}'); a(f'v_cvt_f32_u32 v{t+14}, v{t+14}'); a(f'v_mul_f32 v{t+14}, {f32(1/64)}, v{t+14}')
        for tt in range(2):
            a(f'v_add_f32 v{t}, {f32(16.0*tt)}, v{vNf}'); a(f'v_mul_f32 v{t}, {f32(1/32)}, v{t}')
            a(f'v_fma_f32 v{t+1}, v{t}, v{t+14}, s{sROT}')
            cs_pairs(a, t+1, t, [16*t2 + r for t2 in range(2) for r in range(4)], t+2,
                     lambda pi: [('c', M4 + 12*tt + pi), ('s', M4 + 12*tt + 4 + pi), ('m', M4 + 12*tt + 8 + pi)])
    def con_M5(a):
        a(f's_lshl_b32 s{T0}, s{sW}, 4'); a(f'v_add_u32 v{t}, s{T0}, v{vN}'); a(f'v_cvt_f32_u32 v{t}, v{t}'); a(f'v_mul_f32 v{t}, {f32(1/64)}, v{t}')
        a(f'v_lshlrev_b32 v{t+1}, 5, v{vQ}'); a(f'v_add_u32 v{t+1}, s{sJ}, v{t+1}'); a(f'v_cvt_f32_u32 v{t+1}, v{t+1}'); a(f'v_mul_f32 v{t+1}, {f32(0.125)}, v{t+1}'); a(f'v_mul_f32 v{t+1}, v{t+1}, v{t}')
        cs_pairs(a, t+1, t, [16*sg + e for sg in range(4) for e in range(4)], t+2,
                 lambda pi: [('c', M5 + 8*(pi//2) + pi % 2), ('m', M5 + 8*(pi//2) + 2 + pi % 2), ('s', M5 + 8*(pi//2) + 4 + pi % 2), ('c', M5 + 8*(pi//2) + 6 + pi % 2)])
    a(f'v_add_f32 v{GA}, v{GA}, v{GA+4}')
    a(f'v_mul_f32 v{GA}, {f32(-1.4426950408889634)}, v{GA}'); a(f'v_exp_f32 v{GA}, v{GA}'); a(f'v_add_f32 v{GA}, 1.0, v{GA}'); a(f'v_rcp_f32 v{GA}, v{GA}')
    a(f'ds_write_b32 v14, v{GA} offset:{GL}')
    con_M1(a)
    a.until(cfg.kA)
    a0.wait(vm=0); a.limit = 17; a.bar()
    f0 = WK
    a0(f'v_mov_b32 v{f0}, s{sNON}'); a0(f'v_mov_b32 v{f0+1}, s{sNON+1}')
    a0(f's_lshl_b32 s{T0}, s2, 3'); a0(f's_add_u32 s{T0}, s{T0}, {FLAGA}'); a0(f's_cmp_eq_u32 s{sW}, 0'); a0(f's_cselect_b32 s{T0}, s{T0}, {OOB}')
    a0(f'v_mov_b32 v{f0+2}, 0'); a0('s_mov_b64 exec, 1')
    a0(f'buffer_store_dwordx2 {vr(f0,2)}, v{f0+2}, {sr(SA,4)}, s{T0} offen sc1')
    a0('s_mov_b64 exec, -1')
    stamp(a, cfg, 'flag', 'F')
    con_M2(a)
    vKD = 11
    def gatherW(a, dst, smir, tv, col=None):
        va, v0_, vc = tv, tv + 1, tv + 2
        a(f's_cmp_lg_u32 s{smir}, 0'); a(f's_cselect_b64 vcc, -1, 0')
        a(f's_cselect_b32 s{T0}, {19*32896}, 0'); a(f's_mov_b32 s{T1}, 32896'); a(f's_cselect_b32 s{T1}, -32896, s{T1}')
        if col is None:
            a(f'v_sub_u32 v{vc}, 512, v{vKD}'); a(f'v_cndmask_b32 v{vc}, v{vKD}, v{vc}, vcc'); a(f'v_lshlrev_b32 v{vc}, 1, v{vc}')
        else: a(f'v_mov_b32 v{vc}, {col}')
        a(f'v_lshlrev_b32 v{va}, 8, v{vQ}'); a(f'v_add_u32 v{va}, s{sK1}, v{va}')
        a(f'v_sub_u32 v{v0_}, 2048, v{va}'); a(f'v_cndmask_b32 v{va}, v{va}, v{v0_}, vcc')
        a(f'v_and_b32 v{v0_}, 2047, v{va}'); a(f'v_mul_u32_u24 v{v0_}, 514, v{v0_}'); a(f'v_add_u32 v{v0_}, v{v0_}, v{vc}')
        a(f'v_mul_u32_u24 v{va}, 514, v{va}'); a(f'v_add_u32 v{va}, v{va}, v{vc}'); a(f'v_subrev_u32 v{va}, s{T0}, v{va}')
        for k in range(8):
            m = 16*(k >> 2) + (k & 3)
            if m == 0:
                a(f'buffer_load_ushort v{dst}, v{v0_}, {sr(SC,4)}, 0 offen'); a(f'buffer_load_ushort v{dst+1}, v{v0_}, {sr(SD,4)}, 0 offen')
            else:
                a(f's_mul_i32 s{T2}, s{T1}, {m}'); a(f's_add_u32 s{T2}, s{T2}, s{T0}')
                a(f'buffer_load_ushort v{dst+2*k}, v{va}, {sr(SC,4)}, s{T2} offen'); a(f'buffer_load_ushort v{dst+2*k+1}, v{va}, {sr(SD,4)}, s{T2} offen')
    def scaleW(a, dst, smir, sc):
        a(f's_cmp_lg_u32 s{smir}, 0'); a(f's_mov_b32 s{T0}, {f32(sc)}'); a(f's_cselect_b32 s{T1}, {f32(-sc)}, s{T0}')
        for k in range(16): a(f'v_lshlrev_b32 v{dst+k}, 16, v{dst+k}')
        for k in range(16): a(f'v_mul_f32 v{dst+k}, s{T0 + (k & 1)}, v{dst+k}')
    a.until(min(cfg.wpos, 17))
    gatherW(a0, WF, sMIR, WK + 4)
    a.until(17)
    a.on = False
    a = a0
    stamp(a, cfg, 'prepoll', 'F')
    vIN = 13
    a(f'v_lshlrev_b32 v{vIN}, 10, v{vN}'); a(f'v_lshl_add_u32 v{vIN}, v{vQ}, 6, v{vIN}')
    sI = 72
    a(f's_lshr_b32 s{T0}, s{sG0}, 2'); a(f's_lshl_b32 s{T0}, s{T0}, 3'); a(f's_add_u32 s{T0}, s{T0}, s{sJ}'); a(f's_lshl_b32 s{T0}, s{T0}, 15')
    a(f's_and_b32 s{T1}, s{sG0}, 3'); a(f's_lshl_b32 s{T1}, s{T1}, 4'); a(f's_add_u32 s{T0}, s{T0}, s{T1}'); a(f's_lshl_b32 s{T1}, s{sW}, 8'); a(f's_add_u32 s{T0}, s{T0}, s{T1}')
    a(f's_add_u32 s{sI}, s{T0}, {E1}'); a(f's_add_u32 s{sI+1}, s{sI}, 16384')
    lw = a.lab('nopoll'); lgo = a.lab('go'); lp = a.lab('poll')
    a(f's_cmp_lg_u32 s{sW}, 0'); a(f's_cbranch_scc1 {lw}')
    vq = list(a.vq)
    a(f's_mov_b32 s{T0}, {FLAGA}'); a(f's_mov_b32 s{T1}, 0')
    a.label(lp)
    a(f'buffer_load_dwordx4 {vr(IN,4)}, v{vL16}, {sr(SA,4)}, s{T0} offen sc1')
    a(f'buffer_load_dwordx4 {vr(IN+4,4)}, v{vL16}, {sr(SA,4)}, s{T0} offen offset:1024 sc1')
    for k in range(8): a(f'v_xor_b32 v{IN+k}, s{sNON + (k & 1)}, v{IN+k}')
    a(f'v_or3_b32 v{IN}, v{IN}, v{IN+1}, v{IN+2}'); a(f'v_or3_b32 v{IN+3}, v{IN+3}, v{IN+4}, v{IN+5}'); a(f'v_or3_b32 v{IN}, v{IN}, v{IN+6}, v{IN+7}'); a(f'v_or_b32 v{IN}, v{IN}, v{IN+3}')
    a(f'v_cmp_ne_u32 vcc, 0, v{IN}')
    a(f's_cbranch_vccz {lgo}')
    a('s_sleep 4'); a(f's_add_u32 s{T1}, s{T1}, 1'); a(f's_cmp_lt_u32 s{T1}, {cfg.spin}'); a(f's_cbranch_scc1 {lp}')
    a.label(lgo)
    lds_arrive(a, vCN, 0, vONE)
    stampv(a, cfg, 'pollsA', 'F', T1)
    a.label(lw)
    a.vq = vq
    t = IN + 4
    if cfg.m4early: con_M4(a)
    lds_spin(a, vCN, 0, 1, IN+3, sleep=True)
    stamp(a, cfg, 'go', 'F')
    for tt in range(2):
        a(f's_lshl_b32 s{T0}, s{sW}, 11'); a(f's_add_u32 m0, s{T0}, {FA + 1024*tt}')
        a(f'buffer_load_dwordx4 v{vIN}, {sr(SA,4)}, s{sI+tt} offen sc1 lds', tag='in')
    scaleW(a, WF, sMIR, 2.0**-19)
    if not cfg.m4early: con_M4(a)
    con_M5(a)
    HB = N64
    a(f's_and_b32 s{T0}, s{sW}, 1'); a(f's_or_b32 s{T0}, s{T0}, s{sJ}'); a(f's_cmp_lg_u32 s{T0}, 0'); h = a.skip_begin('s_cbranch_scc1')
    a(f's_xor_b32 s{sSC}, s{sMIR}, 1'); a(f's_lshl_b32 s{T3}, s{sMIR}, 9')
    gatherW(a, N8, sSC, WK + 4, col=f's{T3}')
    scaleW(a, N8, sSC, 2.0**-19)
    a(f'v_cmp_eq_u32 vcc, 0, v{vN}')
    for k in range(16): a(f'v_add_f32 v{N8+k}, v{N8+k}, v{WF+k}')
    for k in range(16): a(f'v_mul_f32 v{N8+k}, 0.5, v{N8+k}')
    for k in range(16): a(f'v_cndmask_b32 v{WF+k}, v{WF+k}, v{N8+k}, vcc')
    a(f's_cmp_lg_u32 s{sB}, 0'); h2 = a.skip_begin('s_cbranch_scc1')
    gatherW(a, HB, sMIR, WK + 4, col=512); gatherW(a, N8, sSC, WK + 8, col=512)
    scaleW(a, HB, sMIR, 2.0**-20); scaleW(a, N8, sSC, 2.0**-20)
    for k in range(16): a(f'v_add_f32 v{HB+k}, v{HB+k}, v{N8+k}')
    a.skip_end(h2)
    a.skip_end(h)
    a(f's_cmp_eq_u32 s{sPAIR}, 0'); h = a.skip_begin('s_cbranch_scc1')
    a(f's_cmp_lg_u32 s{sJ}, 0'); h2 = a.skip_begin('s_cbranch_scc1')
    a(f's_and_b32 s{T0}, s{sW}, 1'); a(f'v_or_b32 v{t}, s{T0}, v{vN}'); a(f'v_cmp_eq_u32 vcc, 0, v{t}'); a(f'v_mov_b32 v{t}, 0xbf803f80')
    for sg in range(4):
        for k in range(2): a(f'v_cndmask_b32 v{M1+8*sg+4+k}, v{M1+8*sg+4+k}, v{t}, vcc')
    for k in range(16): a(f'v_cndmask_b32 v{HB+k}, v{WF+k}, v{HB+k}, vcc')
    a(f'v_cmp_eq_u32 vcc, 0, v{vQ}'); a(f'v_mov_b32 v{t+2}, 0xffff')
    a(f'v_mov_b32 v{t}, 0x3f00'); a(f'v_bfi_b32 v{t}, v{t+2}, v{t}, v{M5}'); a(f'v_cndmask_b32 v{M5}, v{M5}, v{t}, vcc')
    a(f'v_and_b32 v{t}, 1, v{vN}'); a(f'v_lshlrev_b32 v{t}, 15, v{t}'); a(f'v_or_b32 v{t}, 0x3f00, v{t}'); a(f'v_bfi_b32 v{t}, v{t+2}, v{t}, v{M5+2}'); a(f'v_cndmask_b32 v{M5+2}, v{M5+2}, v{t}, vcc')
    a.skip_end(h2)
    for sg in range(2):
        for k in range(4):
            a(f'v_mov_b32 v{M5+8*(sg+2)+4+k}, v{M5+8*sg+k}'); a(f'v_mov_b32 v{M5+8*(sg+2)+k}, 0'); a(f'v_mov_b32 v{M5+8*sg+4+k}, 0')
    a(f's_cmp_ge_u32 s{sW}, 2'); a(f's_cselect_b64 vcc, -1, 0')
    for sg in range(4):
        for k in range(2):
            for o in (0, 4):
                a(f'v_cndmask_b32 v{M1+8*sg+o+2+k}, 0, v{M1+8*sg+o+k}, vcc'); a(f'v_cndmask_b32 v{M1+8*sg+o+k}, v{M1+8*sg+o+k}, 0, vcc')
    a.skip_end(h)
    a.wait(vm=0)
    lds_arrive(a, vCN, 4, vONE)
    lds_spin(a, vCN, 4, 4, IN)
    stamp(a, cfg, 'in', 'F')
    for u in range(8): a(f'ds_read_b128 {vr(IN+4*u,4)}, v{vL16} offset:{FA + 1024*u}')
    C1 = WK
    for sg in range(4):
        for tt in range(2):
            for c in range(2):
                d = C1 + 8*c + 4*tt
                a(f'{MF16} {vr(d,4)}, {vr(IN+8*sg+4*tt,4)}, {vr(M1+8*sg+4*c,4)}, {vr(d,4) if sg else 0}')
    for c in range(2):
        for k in range(4): a(f'v_cvt_pk_bf16_f32 v{PK+4*c+k}, v{C1+8*c+2*k}, v{C1+8*c+2*k+1}')
    lsp = a.lab('special'); ljn = a.lab('join')
    a(f's_cmp_eq_u32 s{sB}, 0'); a(f's_cbranch_scc1 {lsp}')
    snap = (list(a.hist), list(a.vq), list(a.lq))
    Cre, Cim, Yre, Yim = IN, IN + 8, IN + 16, IN + 24
    for t2 in range(2):
        a(f'{MF16} {vr(Cre+4*t2,4)}, {vr(M2+12*t2,4)}, {vr(PK,4)}, 0')
        a(f'{MF16} {vr(Cim+4*t2,4)}, {vr(M2+12*t2+8,4)}, {vr(PK,4)}, 0')
    for t2 in range(2):
        a(f'{MF16} {vr(Cre+4*t2,4)}, {vr(M2+12*t2+4,4)}, {vr(PK+4,4)}, {vr(Cre+4*t2,4)}')
        a(f'{MF16} {vr(Cim+4*t2,4)}, {vr(M2+12*t2,4)}, {vr(PK+4,4)}, {vr(Cim+4*t2,4)}')
    for k in range(8):
        a(f'v_mul_f32 v{Yre+k}, v{Cre+k}, v{WF+2*k}'); a(f'v_mul_f32 v{Yim+k}, v{Cre+k}, v{WF+2*k+1}')
    for k in range(8):
        a(f'v_fma_f32 v{Yre+k}, -v{Cim+k}, v{WF+2*k+1}, v{Yre+k}'); a(f'v_fmac_f32 v{Yim+k}, v{Cim+k}, v{WF+2*k}')
    for k in range(4): a(f'v_cvt_pk_bf16_f32 v{PK+k}, v{Yre+2*k}, v{Yre+2*k+1}')
    for k in range(4): a(f'v_cvt_pk_bf16_f32 v{PK+4+k}, v{Yim+2*k}, v{Yim+2*k+1}')
    a.label(ljn)
    C3 = WK
    for tt in range(2):
        a(f'{MF16} {vr(C3+8*tt,4)}, {vr(PK,4)}, {vr(M4+12*tt,4)}, 0')
        a(f'{MF16} {vr(C3+8*tt+4,4)}, {vr(PK,4)}, {vr(M4+12*tt+4,4)}, 0')
    for tt in range(2):
        a(f'{MF16} {vr(C3+8*tt,4)}, {vr(PK+4,4)}, {vr(M4+12*tt+8,4)}, {vr(C3+8*tt,4)}')
        a(f'{MF16} {vr(C3+8*tt+4,4)}, {vr(PK+4,4)}, {vr(M4+12*tt,4)}, {vr(C3+8*tt+4,4)}')
    a(f's_lshl_b32 s{T0}, s{sW}, 11'); a(f'v_add_u32 v{vIN}, s{T0}, v{vL16}')
    for k in range(8): a(f'v_cvt_pk_bf16_f32 v{PK+k}, v{C3+2*k}, v{C3+2*k+1}')
    for tt in range(2): a(f'ds_write_b128 v{vIN}, {vr(PK+4*tt,4)} offset:{FB + 1024*tt}')
    a.wait(lg=0)
    lds_arrive(a, vCN, 8, vONE)
    lds_spin(a, vCN, 8, 4, IN)
    for u in range(8): a(f'ds_read_b128 {vr(IN+4*u,4)}, v{vL16} offset:{FB + 1024*u}')
    C4 = WK
    for sg in range(4):
        for tt in range(2):
            for c in range(2):
                d = C4 + 8*tt + 4*c
                a(f'{MF16} {vr(d,4)}, {vr(M5+8*sg+4*c,4)}, {vr(IN+8*sg+4*tt,4)}, {vr(d,4) if sg else 0}')
    for k in range(8): a(f'v_cvt_pk_bf16_f32 v{PK+k}, v{C4+2*k}, v{C4+2*k+1}')
    for k in range(8): a(f'v_min_u32 v{PK+k}, -2, v{PK+k}')
    for tt in range(2): a(f'buffer_store_dwordx4 {vr(PK+4*tt,4)}, v{vE2}, {sr(SA,4)}, s{sE2+tt} offen sc1')
    stamp(a, cfg, 'e2st', 'F')
    t = IN
    dft8(a, t, lambda dh, st, kind: N8 + 12*dh + 6*st + {'s': 0, 'c': 2, 'm': 4}[kind])
    vL3, vX3 = 11, 13
    a(f'v_cmp_eq_u32 vcc, 0, v{vQ}')
    a(f'v_and_b32 v{t}, 7, v1'); a(f's_lshl_b32 s{T0}, s{sW}, 3'); a(f'v_add_u32 v{t}, s{T0}, v{t}')
    a(f'v_cmp_eq_u32 {sr(mK0,2)}, 0, v{t}'); a(f's_andn2_b64 {sr(mK5,2)}, {sr(mK0,2)}, vcc'); a(f's_mov_b64 {sr(mK04,2)}, vcc')
    a(f'v_lshl_add_u32 v{t}, v{t}, 3, v{vQ}'); a(f'v_lshlrev_b32 v{t}, 6, v{t}'); a(f'v_bfe_u32 v{t+1}, v1, 3, 1'); a(f'v_lshl_add_u32 v{vL3}, v{t+1}, 4, v{t}')
    a(f's_lshr_b32 s{T0}, s{sG0}, 1'); a(f's_lshl_b32 s{T0}, s{T0}, 17'); a(f's_lshl_b32 s{T1}, s{sJ}, 14'); a(f's_add_u32 s{T0}, s{T0}, s{T1}')
    a(f's_and_b32 s{T1}, s{sG0}, 1'); a(f's_lshl_b32 s{T1}, s{T1}, 5'); a(f's_add_u32 s{T0}, s{T0}, s{T1}'); a(f's_add_u32 s{sI}, s{T0}, {E2}')
    a(f'v_lshrrev_b32 v{t}, 1, v{vQ}'); a(f'v_lshlrev_b32 v{t}, 12, v{t}'); a(f'v_and_b32 v{t+1}, 1, v{vQ}'); a(f'v_lshl_add_u32 v{t}, v{t+1}, 8, v{t}')
    a(f'v_lshl_add_u32 v{t}, v{vN}, 4, v{t}'); a(f's_lshl_b32 s{T1}, s{sW}, 9'); a(f'v_add_u32 v{vX3}, s{T1}, v{t}')
    def n64(nt):
        a(f'v_add_f32 v{t}, {f32(16.0*nt)}, v{vNf}'); a(f'v_mul_f32 v{t}, {f32(1/64)}, v{t}')
        a(f'v_mul_f32 v{t+1}, 4.0, v{vQf}'); a(f'v_mul_f32 v{t+1}, v{t+1}, v{t}')
        cs_pairs(a, t+1, t, [16*st + r for st in range(2) for r in range(4)], t+2,
                 lambda pi: [('c', N64 + 8*nt + 4*(pi//2) + pi % 2), ('m', N64 + 8*nt + 4*(pi//2) + 2 + pi % 2)])
    for nt in range(cfg.n64pre): n64(nt)
    a.wait(vm=0)
    stamp(a, cfg, 'e2dr', 'F')
    D3 = WF
    for st in range(2): a(f'buffer_load_dwordx4 {vr(D3+4*st,4)}, v{vL3}, {sr(SA,4)}, s{sI} offen offset:{256*st} sc1')
    for nt in range(cfg.n64pre, 4): n64(nt)
    a(f'v_mov_b32 v{t+2}, 0xffff')
    a(f'v_and_b32 v{t}, 1, v{vN}'); a(f'v_lshlrev_b32 v{t}, 15, v{t}'); a(f'v_or_b32 v{t}, 0x3f80, v{t}')
    for nt in range(4):
        a(f'v_bfi_b32 v{t+1}, v{t+2}, v{t}, v{N64+8*nt+2}'); a(f'v_cndmask_b32 v{N64+8*nt+2}, v{N64+8*nt+2}, v{t+1}, {sr(mK04,2)}')
    l3 = a.lab('e2poll'); l3ok = a.lab('e2ok')
    a(f's_mov_b32 s{T1}, 0')
    a.wait(vm=0)
    a.label(l3)
    a(f'v_max3_u32 v{IN+8}, v{D3}, v{D3+1}, v{D3+2}'); a(f'v_max3_u32 v{IN+9}, v{D3+3}, v{D3+4}, v{D3+5}')
    a(f'v_max3_u32 v{IN+8}, v{IN+8}, v{D3+6}, v{D3+7}'); a(f'v_max_u32 v{IN+8}, v{IN+8}, v{IN+9}')
    a(f'v_cmp_eq_u32 vcc, -1, v{IN+8}')
    a(f's_cbranch_vccz {l3ok}')
    for st in range(2): a(f'buffer_load_dwordx4 {vr(D3+4*st,4)}, v{vL3}, {sr(SA,4)}, s{sI} offen offset:{256*st} sc1')
    a('s_waitcnt vmcnt(0)')
    a(f's_add_u32 s{T1}, s{T1}, 1'); a(f's_cmp_lt_u32 s{T1}, {cfg.spin}'); a(f's_cbranch_scc1 {l3}')
    a.label(l3ok)
    stamp(a, cfg, 'e2ok', 'F'); stampv(a, cfg, 'polls', 'F', T1)
    VI, VR = IN + 8, IN + 12
    for k in range(4):
        a(f'v_cndmask_b32 v{VI+k}, v{D3+k}, 0, {sr(mK5,2)}'); a(f'v_cndmask_b32 v{VR+k}, v{D3+4+k}, 0, {sr(mK5,2)}')
    C5 = WK
    for dh in range(2):
        a(f'{MF16} {vr(C5+8*dh,4)}, {vr(D3,4)}, {vr(N8+12*dh+2,4)}, 0')
        a(f'{MF16} {vr(C5+8*dh+4,4)}, {vr(D3+4,4)}, {vr(N8+12*dh+6,4)}, 0')
    for dh in range(2):
        a(f'{MF16} {vr(C5+8*dh,4)}, {vr(VR,4)}, {vr(N8+12*dh+8,4)}, {vr(C5+8*dh,4)}')
        a(f'{MF16} {vr(C5+8*dh+4,4)}, {vr(VI,4)}, {vr(N8+12*dh,4)}, {vr(C5+8*dh+4,4)}')
    for k in range(8): a(f'v_cvt_pk_bf16_f32 v{PK+k}, v{C5+2*k}, v{C5+2*k+1}')
    for dh in range(2): a(f'ds_write_b128 v{vX3}, {vr(PK+4*dh,4)} offset:{FA + 2048*dh}')
    a.wait(lg=0)
    lds_arrive(a, vCN, 12, vONE)
    a(f's_and_b32 s{T0}, s{sW}, 1'); a(f's_lshl_b32 s{T0}, s{T0}, 12'); a(f's_lshr_b32 s{T1}, s{sW}, 1'); a(f's_lshl_b32 s{T2}, s{T1}, 11'); a(f's_add_u32 s{T0}, s{T0}, s{T2}')
    a(f'v_add_u32 v{vX3}, s{T0}, v{vL16}')
    a(f's_lshl_b32 s{T1}, s{T1}, 2'); a(f'v_add_u32 v{IN+9}, s{T1}, v{vQ}'); a(f'v_lshrrev_b32 v{IN+10}, 1, v{vN}'); a(f'v_xor_b32 v{IN+9}, v{IN+9}, v{IN+10}')
    a(f'v_lshlrev_b32 v{IN+9}, 4, v{IN+9}'); a(f'v_lshl_add_u32 v{IN+9}, v{vN}, 7, v{IN+9}')
    a(f's_and_b32 s{T0}, s{sW}, 1'); a(f's_lshl_b32 s{T0}, s{T0}, 3'); a(f'v_add_u32 v{vL3}, s{T0}, v{IN+9}')
    lds_spin(a, vCN, 12, 4, IN+8)
    for st in range(2): a(f'ds_read_b128 {vr(IN+4*st,4)}, v{vX3} offset:{FA + 1024*st}')
    for st in range(2):
        for nt in range(4):
            a(f'{MF16} {vr(C5+4*nt,4)}, {vr(IN+4*st,4)}, {vr(N64+8*nt+4*st,4)}, {vr(C5+4*nt,4) if st else 0}')
    for k in range(8): a(f'v_cvt_pk_bf16_f32 v{PK+k}, v{C5+2*k}, v{C5+2*k+1}')
    for nt in range(4): a(f'ds_write_b64 v{vL3}, {vr(PK+2*nt,2)} offset:{FB + 2048*nt}')
    a.wait(lg=0)
    stamp(a, cfg, 'Fend', 'F')
    a(f's_or_b32 s{T0}, s2, s{sW}'); a(f's_cmp_eq_u32 s{T0}, 0'); a(f's_cselect_b32 s{T0}, {NONCE}, {OOB}')
    a(f'v_mov_b32 v{IN}, s{sNON}'); a(f'v_mov_b32 v{IN+1}, s{sNON+1}'); a(f'v_mov_b32 v{IN+2}, 0'); a('s_mov_b64 exec, 1')
    a(f'buffer_store_dwordx2 {vr(IN,2)}, v{IN+2}, {sr(SA,4)}, s{T0} offen')
    a('s_mov_b64 exec, -1')
    a('s_barrier')
    if cfg.stamps: stamps_out(a, cfg, 10, SA)
    a('s_endpgm')
    a.label(lsp)
    a.hist, a.vq, a.lq = snap
    P1_, M3_, P2_, P4_ = IN, IN + 8, IN + 16, IN + 24
    for t2 in range(2):
        a(f'{MF16} {vr(P1_+4*t2,4)}, {vr(M2+12*t2,4)}, {vr(PK,4)}, 0')
        a(f'{MF16} {vr(M3_+4*t2,4)}, {vr(M2+12*t2+8,4)}, {vr(PK,4)}, 0')
        a(f'{MF16} {vr(P2_+4*t2,4)}, {vr(M2+12*t2+4,4)}, {vr(PK+4,4)}, 0')
        a(f'{MF16} {vr(P4_+4*t2,4)}, {vr(M2+12*t2,4)}, {vr(PK+4,4)}, 0')
    for k in range(8):
        x, y = WK + 2*(k & 1), WK + 1 + 2*(k & 1)
        a(f'v_mul_f32 v{x}, v{P1_+k}, v{WF+2*k}'); a(f'v_mul_f32 v{y}, v{P1_+k}, v{WF+2*k+1}')
        a(f'v_fma_f32 v{x}, -v{M3_+k}, v{WF+2*k+1}, v{x}'); a(f'v_fmac_f32 v{y}, v{M3_+k}, v{WF+2*k}')
        a(f'v_fma_f32 v{x}, -v{P4_+k}, v{HB+2*k+1}, v{x}'); a(f'v_fmac_f32 v{y}, v{P4_+k}, v{HB+2*k}')
        a(f'v_fma_f32 v{P1_+k}, v{P2_+k}, v{HB+2*k}, v{x}'); a(f'v_fma_f32 v{M3_+k}, v{P2_+k}, v{HB+2*k+1}, v{y}')
    for k in range(4): a(f'v_cvt_pk_bf16_f32 v{PK+k}, v{P1_+2*k}, v{P1_+2*k+1}')
    for k in range(4): a(f'v_cvt_pk_bf16_f32 v{PK+4+k}, v{M3_+2*k}, v{M3_+2*k+1}')
    a('s_nop 1')
    a(f's_branch {ljn}')

HEADER = open('gated_mix__spectral_gfnet__dense_activation_mish__prompt.s.ref').read().split('; Override')[0] if True else ''
def build(cfg):
    Stream.gid = 0
    a = Stream(); prologue(a, cfg)
    g = Stream(); g.hist, g.vq, g.lq = list(a.hist), list(a.vq), list(a.lq); gen_G(g, cfg)
    f = Stream(); f.hist, f.vq, f.lq = list(a.hist), list(a.vq), list(a.lq); gen_F(f, cfg)
    return f"""{HEADER}; One persistent launch: 256 workgroups x 8 waves (waves 0-3: MLP, waves 4-7: spectral branch). Generated by my own script.
; @launch grid=(256,1,1) block=(512,1,1) lds={LDSZ}
.amdgcn_target "amdgcn-amd-amdhsa--gfx950"
.text
.globl {KN}
.p2align 8
.type {KN},@function
{KN}:
{a.text()}{g.text()}{f.text()}L_END:
    s_endpgm
.section .rodata,"a"
.p2align 6
.amdhsa_kernel {KN}
  .amdhsa_next_free_vgpr 256
  .amdhsa_next_free_sgpr 102
  .amdhsa_accum_offset 256
  .amdhsa_group_segment_fixed_size 0
  .amdhsa_kernarg_size 88
  .amdhsa_user_sgpr_count 2
  .amdhsa_user_sgpr_kernarg_segment_ptr 1
  .amdhsa_system_sgpr_workgroup_id_x 1
  .amdhsa_float_denorm_mode_32 3
.end_amdhsa_kernel
"""
if __name__ == '__main__':
    cfg = Cfg()
    out = sys.argv[1]
    for kv in sys.argv[2:]:
        k, v = kv.split('='); setattr(cfg, k, eval(v))
    open(out, 'w').write(build(cfg))
```

```python
import sys, struct
from sa import Stream
KN = 'gated_mix__spectral_gfnet__dense_activation_mish__prompt_kernel'
MB = 1 << 20
FLAGB = 65536
NONCE, FLAGA, E1, E2, WB, WBX, W2P, ACT, STAMP, WSZ = 0, 4096, 1*MB, 3*MB, 5*MB, 7*MB, 8*MB, 10*MB, 16*MB, 17*MB
OOB = 0x40000000
XP = 1040
NSLOT, SLAB = 6, 12288
FA = 0; FB = FA + 8192; GW = FB + 8192; GL = GW + 1024; CNT = GL + 256
XT = CNT + 64; RING = XT + 64*XP; LDSZ = RING + NSLOT*SLAB
REG = 86*2048
PST = XT; RED = XT + 81920
def f32(x): return '0x%08x' % struct.unpack('<I', struct.pack('<f', x))[0]
def vr(a, n): return f'v[{a}:{a+n-1}]' if n > 1 else f'v{a}'
def sr(a, n): return f's[{a}:{a+n-1}]'
sX, sWR, sWI, sW1, sB1, sW2, sGWp, sOUT, sWS = 4, 6, 8, 12, 14, 16, 18, 20, 22
sG0, sJ, sWV, sW = 24, 25, 26, 27
SX, SA, SB, SC, SD, SE = 28, 32, 36, 40, 44, 48
T0, T1, T2, T3 = 52, 53, 54, 55
sNON = 56
sST = 80
MF16 = 'v_mfma_f32_16x16x32_bf16'; MF32 = 'v_mfma_f32_32x32x16_bf16'

class Cfg:
    stamps = False; dbgst = False
    gst = ['start', 'X', 'Kend', 'go', 'mish', 'drain', 'goB', 'g2end', 'fbar', 'end']
    fst = ['start', 'preX', 'X', 'fft1', 'flag', 'go', 'in', 'e2st', 'e2ok', 'Fend']
    kA = 9
    tslab = 250
    NP, NQ = 12, 10
    prioG = 0; prioF = 3
    spin = 200000
    permEarly = True; m4early = True; n64pre = 2
    clrF = True; p0 = 2; LA = 3; goTile = 1; wpos = 16; pgap = 12

def srd(a, d, base, nbytes, off=None):
    if off is None:
        a(f's_mov_b32 s{d}, s{base}'); a(f's_mov_b32 s{d+1}, s{base+1}')
    else:
        a(f's_add_u32 s{d}, s{base}, {off}'); a(f's_addc_u32 s{d+1}, s{base+1}, 0')
    a(f's_mov_b32 s{d+2}, {nbytes}'); a(f's_mov_b32 s{d+3}, 0x20000')

def stamp(a, cfg, name, role=None):
    if not cfg.stamps: return
    L = cfg.gst if role == 'G' else cfg.fst
    if name in L:
        i = L.index(name)
        a(f's_memtime {sr(sST+2*i, 2)}' if name.startswith('c') and name[1:2] == '_' else f's_memrealtime {sr(sST+2*i, 2)}')
def stampv(a, cfg, name, role, sreg):
    if not cfg.stamps: return
    L = cfg.gst if role == 'G' else cfg.fst
    if name in L: a(f's_mov_b32 s{sST+2*L.index(name)}, s{sreg}')

def stamps_out(a, cfg, n, srdws):
    if not cfg.stamps: return
    a('s_waitcnt lgkmcnt(0)')
    if cfg.dbgst:
        l = a.lab('nodbg')
        a(f's_cmp_lg_u32 s{sWV}, 0'); a(f's_cbranch_scc1 {l}')
        a('s_load_dwordx2 s[4:5], s[0:1], 72'); a('s_waitcnt lgkmcnt(0)')
        srd(a, SB, 4, 256)
        a('s_mov_b64 exec, 1'); a('v_mov_b32 v2, 0')
        a(f's_not_b32 s{T0}, s{sST}'); a(f'v_mov_b32 v3, s{T0}')
        a(f'buffer_atomic_umax v3, v2, {sr(SB,4)}, 0 offen')
        for i in range(n):
            a(f'v_mov_b32 v{4+i}, s{sST+2*i}')
            a(f'buffer_atomic_umax v{4+i}, v2, {sr(SB,4)}, 0 offen offset:{4+4*i}')
        a.label(l)
        return
    a(f's_lshl_b32 s{T0}, s2, 3'); a(f's_add_u32 s{T0}, s{T0}, s{sWV}'); a(f's_lshl_b32 s{T0}, s{T0}, 6'); a(f's_add_u32 s{T0}, s{T0}, {STAMP}')
    a('s_mov_b64 exec, 1'); a('v_mov_b32 v2, 0')
    for i in range(n):
        a(f'v_mov_b32 v3, s{sST+2*i}')
        a(f'buffer_store_dword v3, v2, {sr(srdws,4)}, s{T0} offen offset:{4*i}')
        a('s_nop 1')
    a('s_mov_b64 exec, -1')

def lds_spin(a, vaddr, off, target, vt, sleep=False):
    l = a.lab('spin')
    a.wait(lg=0)
    a.label(l)
    if sleep: a('s_sleep 1')
    a(f'ds_read_b32 v{vt}, v{vaddr} offset:{off}')
    a('s_waitcnt lgkmcnt(0)')
    a(f'v_readfirstlane_b32 s{T3}, v{vt}')
    a(f's_cmp_lt_u32 s{T3}, {target}')
    a(f's_cbranch_scc1 {l}')

def lds_arrive(a, vaddr, off, vone):
    a('s_mov_b64 exec, 1')
    a(f'ds_add_u32 v{vaddr}, v{vone} offset:{off}')
    a('s_mov_b64 exec, -1')

def prologue(a, cfg):
    a('s_cmp_ge_u32 s2, 256'); a('s_cbranch_scc1 L_END')
    stamp(a, cfg, 'start', 'G'); stamp(a, cfg, 'c_start', 'G')
    a('s_load_dwordx16 s[4:19], s[0:1], 0')
    a('s_load_dwordx2 s[20:21], s[0:1], 64')
    a('s_load_dwordx2 s[22:23], s[0:1], 80')
    a('v_lshrrev_b32 v2, 6, v0'); a('v_and_b32 v1, 63, v0')
    a(f'v_readfirstlane_b32 s{sWV}, v2')
    a(f's_and_b32 s3, s2, 7'); a(f's_lshl_b32 s{sG0}, s3, 2'); a('s_lshr_b32 s3, s2, 6'); a(f's_add_u32 s{sG0}, s{sG0}, s3')
    a(f's_lshr_b32 s{sJ}, s2, 3'); a(f's_and_b32 s{sJ}, s{sJ}, 7')
    a('v_lshlrev_b32 v12, 4, v1')
    a(f's_and_b32 s{sW}, s{sWV}, 3')
    a(f's_cmp_ge_u32 s{sWV}, 4'); a('s_cbranch_scc1 L_F')

def nonce(a):
    a(f's_mul_i32 s{sNON}, s{sNON}, 0x9e3779b1'); a(f's_add_u32 s{sNON}, s{sNON}, 0x7f4a7c15')
    a(f's_mul_i32 s{sNON+1}, s{sNON+1}, 0x85ebca6b'); a(f's_add_u32 s{sNON+1}, s{sNON+1}, 0xc2b2ae35')

def gen_G(a, cfg):
    vD, vT, vXA, vL16 = 2, 5, 11, 12
    vP, vQ0, vQ1 = 13, 14, 15
    PR, ACC2, QR = 16, 112, 176
    ACC1, FR, TM = 112, 160, 192
    BI = 224
    sU0, sNU, sRH, sFH, sSL = 58, 59, 60, 61, 62
    sAO = 63
    sK = 66
    sQ = 70
    if cfg.prioG: a(f's_setprio {cfg.prioG}')
    a(f's_lshl_b32 s{T0}, s{sW}, 9'); a(f's_add_u32 s{T0}, s{T0}, s{sG0}'); a(f's_lshl_b32 s{T0}, s{T0}, 10')
    a(f's_mul_i32 s{T1}, s{sW}, {16*XP}')
    a('s_waitcnt lgkmcnt(0)')
    srd(a, SX, sX, 2*MB)
    a(f's_load_dwordx2 {sr(sNON,2)}, {sr(sWS,2)}, {NONCE}')
    for i in range(16):
        a(f's_add_u32 m0, s{T1}, {XT + i*XP}')
        if i: a(f's_add_u32 s{T0}, s{T0}, 32768')
        a(f'buffer_load_dwordx4 v12, {sr(SX,4)}, s{T0} offen lds', tag='x')
    srd(a, SA, sW1, 512*2752)
    a(f's_min_u32 s{sU0}, s{sJ}, 3'); a(f's_mul_i32 s{T0}, s{sJ}, 5'); a(f's_add_u32 s{sU0}, s{sU0}, s{T0}')
    a(f's_cmp_lt_u32 s{sJ}, 3'); a(f's_cselect_b32 s{sNU}, 6, 5')
    a(f's_and_b32 s{sRH}, s{sW}, 1'); a(f's_lshr_b32 s{sFH}, s{sW}, 1')
    a(f's_lshl_b32 s{T0}, s{sU0}, 6')
    t = TM
    for u in range(3):
        a(f'v_add_u32 v{t}, {64*u}, v1')
        a(f'v_mul_u32_u24 v{t+1}, 2731, v{t}'); a(f'v_lshrrev_b32 v{t+1}, 16, v{t+1}')
        a(f'v_mul_u32_u24 v{t+2}, 24, v{t+1}'); a(f'v_sub_u32 v{t}, v{t}, v{t+2}')
        a(f'v_lshlrev_b32 v{t+2}, 1, v{t+1}'); a(f'v_and_b32 v{t+2}, 4, v{t+2}'); a(f'v_xor_b32 v{t}, v{t}, v{t+2}')
        a(f'v_lshrrev_b32 v{t+2}, 2, v{t}'); a(f'v_cmp_gt_u32 vcc, s{sNU}, v{t+2}')
        a(f'v_mul_u32_u24 v{t+1}, 2752, v{t+1}'); a(f'v_lshl_add_u32 v{t}, v{t}, 4, v{t+1}'); a(f'v_add_u32 v{t}, s{T0}, v{t}')
        a(f'v_mov_b32 v{t+1}, {OOB}'); a(f'v_cndmask_b32 v{vD+u}, v{t+1}, v{t}, vcc')
    a(f's_mul_i32 s{sSL}, s{sW}, 22016')
    a(f's_mul_i32 s{T1}, s{sW}, 3072')
    def dma(s):
        for u in range(3):
            a(f's_add_u32 m0, s{T1}, {RING + (s % NSLOT)*SLAB + u*1024}')
            if u == 0 and s: a(f's_add_u32 s{sSL}, s{sSL}, 88064')
            a(f'buffer_load_dwordx4 v{vD+u}, {sr(SA,4)}, s{sSL} offen lds', tag=f'w{s}')
    dma(0)
    srd(a, SB, sB1, 2752)
    a(f's_mul_i32 s{T2}, s{sFH}, 3')
    a(f'v_and_b32 v{t}, 31, v1'); a(f'v_lshlrev_b32 v{t}, 1, v{t}'); a(f'v_cmp_gt_u32 vcc, 32, v1')
    a(f'v_mov_b32 v{t+1}, {OOB}'); a(f'v_cndmask_b32 v{t}, v{t+1}, v{t}, vcc')
    for T in range(3):
        a(f's_add_u32 s{T3}, s{T2}, {T}'); a(f's_cmp_lt_u32 s{T3}, s{sNU}')
        a(f's_add_u32 s{T3}, s{T3}, s{sU0}') if False else None
        a(f's_cselect_b32 s{T0}, 0, {OOB}')
        a(f's_add_u32 s{T3}, s{T3}, s{sU0}')
        a(f's_lshl_b32 s{sAO+T}, s{T3}, 12'); a(f's_add_u32 s{sAO+T}, s{sAO+T}, s{T0}')
        a(f's_lshl_b32 s{T3}, s{T3}, 6'); a(f's_add_u32 s{T3}, s{T3}, s{T0}')
        a(f'buffer_load_ushort v{BI+4*T}, v{t}, {sr(SB,4)}, s{T3} offen')
    for s in range(1, cfg.p0): dma(s)
    a(f's_mul_i32 s{T0}, s{sG0}, {REG}'); a(f's_add_u32 s{T0}, s{T0}, {ACT}')
    srd(a, SC, sWS, REG, f's{T0}')
    a(f's_mul_i32 s{T0}, s{sJ}, {REG}'); a(f's_add_u32 s{T0}, s{T0}, {W2P}')
    srd(a, SD, sWS, REG, f's{T0}')
    srd(a, SE, sOUT, 2*MB)
    vAS = t + 8
    a(f's_lshl_b32 s{T0}, s{sRH}, 10'); a(f'v_add_u32 v{vQ0}, s{T0}, v{vL16}')
    a(f'v_lshrrev_b32 v{t}, 5, v1'); a(f'v_lshlrev_b32 v{t}, 3, v{t}'); a(f'v_bfe_u32 v{t+1}, v1, 2, 2'); a(f'v_add_u32 v{t}, v{t}, v{t+1}')
    a(f'v_mul_u32_u24 v{t}, 384, v{t}')
    a(f'v_bfe_u32 v{t+2}, v1, 4, 1'); a(f'v_lshl_add_u32 v{t}, v{t+2}, 5, v{t}')
    a(f'v_and_b32 v{t+2}, 3, v1'); a(f'v_lshl_add_u32 v{t}, v{t+2}, 3, v{t}')
    a(f'v_add_u32 v{t}, {RING}, v{t}')
    a(f'v_lshrrev_b32 v{t+1}, 1, v{t+1}')
    for T in range(3):
        a(f's_add_u32 s{T3}, s{T2}, {T}')
        a(f'v_xor_b32 v{t+2}, s{T3}, v{t+1}'); a(f'v_lshl_add_u32 v{vT+T}, v{t+2}, 6, v{t}')
        a(f'v_add_u32 v{vT+3+T}, {3*SLAB}, v{vT+T}')
    a(f'v_and_b32 v{t}, 31, v1'); a(f's_lshl_b32 s{T0}, s{sRH}, 5'); a(f'v_add_u32 v{t}, s{T0}, v{t}'); a(f'v_mul_u32_u24 v{t}, {XP}, v{t}')
    a(f'v_lshrrev_b32 v{t+1}, 5, v1'); a(f'v_lshl_add_u32 v{vXA}, v{t+1}, 4, v{t}')
    for T in range(3):
        for k in range(1, 4): a(f'v_mov_b32 v{BI+4*T+k}, 0')
    a(f'v_cmp_gt_u32 vcc, 32, v1'); a(f'v_mov_b32 v{t}, 0x3f80'); a(f'v_mov_b32 v{BI+13}, 0'); a(f'v_mov_b32 v{BI+14}, 0'); a(f'v_mov_b32 v{BI+15}, 0')
    a(f'v_cndmask_b32 v{BI+12}, 0, v{t}, vcc')
    a(f's_mov_b32 s{sK}, {f32(1.4426950408889634)}'); a(f's_mov_b32 s{sK+1}, {f32(1.4426950408889634)}')
    a(f's_mov_b32 s{sK+2}, 2.0'); a(f's_mov_b32 s{sK+3}, 2.0')
    stamp(a, cfg, 'iss', 'G')
    nonce(a)
    a.wait_tag('x'); stamp(a, cfg, 'preX', 'G'); a('s_barrier')
    stamp(a, cfg, 'X', 'G')
    for T in range(3): a(f'{MF32} {vr(ACC1+16*T,16)}, {vr(BI+4*T,4)}, {vr(BI+12,4)}, 0')
    for s in range(cfg.p0, cfg.LA + 1): dma(s)
    def reads(s, ks):
        f = FR + 16*ks
        L = [f'ds_read_b128 {vr(f,4)}, v{vXA} offset:{XT + (2*s+ks)*32}']
        slot = s % NSLOT
        for T in range(3):
            for hf in range(2):
                L.append(f'ds_read_b64_tr_b16 {vr(f+4+4*T+2*hf,2)}, v{vT+3*(slot//3)+T} offset:{(slot%3)*SLAB + (16*ks+4*hf)*384}')
        return L
    def mf(ks, T):
        f = FR + 16*ks
        a(f'{MF32} {vr(ACC1+16*T,16)}, {vr(f+4+4*T,4)}, {vr(f,4)}, {vr(ACC1+16*T,16)}')
    a.wait_tag('w0'); a('s_barrier')
    for r in reads(0, 0): a(r)
    for s in range(16):
        stamp(a, cfg, f'k{s}', 'G')
        R = reads(s, 1)
        mf(0, 0); a(R[0]); a(R[1]); a(R[2])
        mf(0, 1); a(R[3]); a(R[4])
        mf(0, 2); a(R[5]); a(R[6])
        mf(1, 0)
        if s < 15:
            a.wait_tag(f'w{s+1}'); a('s_barrier')
            R = reads(s+1, 0)
            a(R[0]); a(R[1]); a(R[2])
            mf(1, 1); a(R[3]); a(R[4]); a(R[5]); a(R[6])
            mf(1, 2)
            if s + 1 + cfg.LA < 16: dma(s + 1 + cfg.LA)
        else:
            mf(1, 1); mf(1, 2)
    stamp(a, cfg, 'Kend', 'G')
    a(f'v_mov_b32 v{t}, {CNT}')
    a(f'v_and_b32 v{t+1}, 31, v1'); a(f's_lshl_b32 s{T0}, s{sFH}, 4'); a(f'v_xor_b32 v{t+1}, s{T0}, v{t+1}')
    a(f'v_lshrrev_b32 v{t+2}, 5, v1'); a(f'v_lshlrev_b32 v{t+2}, 9, v{t+2}'); a(f'v_lshl_add_u32 v{vP}, v{t+1}, 4, v{t+2}')
    a(f's_lshl_b32 s{T0}, s{sW}, 11'); a(f'v_add_u32 v{vP}, s{T0}, v{vP}')
    vCN = 11
    a(f'v_mov_b32 v{vCN}, {CNT}')
    a(f's_mul_i32 s{T1}, s{sW}, 20480')
    pend = []
    for i in range(cfg.NP):
        r = PR + 8*i
        pend.append([f's_mov_b32 s{T0}, {i*8192}', f'buffer_load_dwordx4 {vr(r,4)}, v{vP}, {sr(SD,4)}, s{T0} offen sc1'])
        pend.append([f'buffer_load_dwordx4 {vr(r+4,4)}, v{vP}, {sr(SD,4)}, s{T0} offen offset:1024 sc1'])
    for i in range(cfg.NP, 22):
        for hb in range(2):
            pend.append([f's_add_u32 m0, s{T1}, {PST + (i-cfg.NP)*2048}', f's_mov_b32 s{T0}, {i*8192}',
                         f'buffer_load_dwordx4 v{vP}, {sr(SD,4)}, s{T0} offen offset:{1024*hb} sc1 lds'])
    cnt = [0]; on = [False]
    def popP():
        for l in pend.pop(0): a(l, tag='p')
    def m(x):
        a(x); cnt[0] += 1
        if on[0] and pend and cnt[0] % cfg.pgap == 0: popP()
    for T in range(3):
        if T == cfg.goTile:
            a('s_barrier')
            lds_spin(a, vCN, 0, 1, TM, sleep=True); stamp(a, cfg, 'go', 'G'); on[0] = True
            for k in range(4): popP()
        for hb in range(2):
            h = ACC1 + 16*T + 8*hb
            e, u, o = TM, TM + 8, TM + 16 + 4*((2*T+hb) % 2)
            for k in range(4): m(f'v_pk_mul_f32 {vr(e+2*k,2)}, {vr(h+2*k,2)}, {sr(sK,2)}')
            for k in range(8): m(f'v_min_f32 v{e+k}, 0x42700000, v{e+k}')
            for k in range(8): m(f'v_exp_f32 v{e+k}, v{e+k}')
            for k in range(4): m(f'v_pk_add_f32 {vr(u+2*k,2)}, {vr(e+2*k,2)}, {sr(sK+2,2)}')
            for k in range(4): m(f'v_pk_mul_f32 {vr(e+2*k,2)}, {vr(e+2*k,2)}, {vr(u+2*k,2)}')
            for k in range(4): m(f'v_pk_add_f32 {vr(u+2*k,2)}, {vr(e+2*k,2)}, {sr(sK+2,2)}')
            for k in range(8): m(f'v_rcp_f32 v{u+k}, v{u+k}')
            for k in range(4): m(f'v_pk_mul_f32 {vr(e+2*k,2)}, {vr(e+2*k,2)}, {vr(u+2*k,2)}')
            for k in range(4): m(f'v_pk_mul_f32 {vr(e+2*k,2)}, {vr(e+2*k,2)}, {vr(h+2*k,2)}')
            for k in range(4): m(f'v_cvt_pk_bf16_f32 v{o+k}, v{e+2*k}, v{e+2*k+1}')
            a(f'buffer_store_dwordx4 {vr(o,4)}, v{vQ0}, {sr(SC,4)}, s{sAO+T} offen offset:{2048*hb} sc1', tag='act')
    stamp(a, cfg, 'mish', 'G')
    if cfg.goTile >= 3:
        a('s_barrier')
        lds_spin(a, vCN, 0, 1, TM, sleep=True); stamp(a, cfg, 'go', 'G')
    while pend: popP()
    stamp(a, cfg, 'piss', 'G')
    srd(a, SA, sWS, WSZ)
    a(f'v_mov_b32 v{TM+8}, 1'); a(f'v_mov_b32 v{TM+10}, s{sNON}'); a(f'v_mov_b32 v{TM+11}, s{sNON+1}')
    a(f'v_and_b32 v{TM+12}, 7, v1'); a(f'v_lshlrev_b32 v{TM+12}, 7, v{TM+12}'); a(f'v_mov_b32 v{TM+13}, 0')
    a(f's_lshl_b32 s{T0}, s{sG0}, 10'); a(f's_add_u32 s{T0}, s{T0}, {FLAGB}'); a(f's_lshl_b32 s{T2}, s{sJ}, 7'); a(f's_add_u32 s{T2}, s{T2}, s{T0}')
    a.wait_tag('act')
    stamp(a, cfg, 'drain', 'G')
    a('s_mov_b64 exec, 1'); a(f'ds_add_rtn_u32 v{TM+9}, v{vCN}, v{TM+8} offset:16'); a('s_mov_b64 exec, -1')
    a(f'v_readfirstlane_b32 s{T3}, v{TM+9}')
    lnp = a.lab('nopollB'); lpb = a.lab('pollB'); lgb = a.lab('goB')
    a(f's_cmp_lg_u32 s{T3}, 3'); a(f's_cbranch_scc1 {lnp}')
    vq = list(a.vq)
    a('s_mov_b64 exec, 1'); a(f'buffer_store_dwordx2 {vr(TM+10,2)}, v{TM+13}, {sr(SA,4)}, s{T2} offen sc1'); a('s_mov_b64 exec, -1')
    a(f's_mov_b32 s{sU0}, 0')
    a.label(lpb)
    a(f'buffer_load_dwordx2 {vr(TM,2)}, v{TM+12}, {sr(SA,4)}, s{T0} offen sc1')
    a(f'v_xor_b32 v{TM}, s{sNON}, v{TM}'); a(f'v_xor_b32 v{TM+1}, s{sNON+1}, v{TM+1}'); a(f'v_or_b32 v{TM}, v{TM}, v{TM+1}')
    a(f'v_cmp_ne_u32 vcc, 0, v{TM}'); a(f's_cbranch_vccz {lgb}')
    a('s_sleep 1'); a(f's_add_u32 s{sU0}, s{sU0}, 1'); a(f's_cmp_lt_u32 s{sU0}, {cfg.spin}'); a(f's_cbranch_scc1 {lpb}')
    a.label(lgb)
    lds_arrive(a, vCN, 20, TM+8)
    a.label(lnp)
    a.vq = vq
    a(f's_lshl_b32 s{T0}, s{sW}, 11'); a(f's_lshl_b32 s{T2}, s{sRH}, 10'); a(f's_add_u32 s{T0}, s{T0}, s{T2}')
    a(f'v_add_u32 v{vQ0}, s{T0}, v{vL16}'); a(f'v_xor_b32 v{vQ1}, 1024, v{vQ0}')
    a(f'v_add_u32 v{vP}, s{T1}, v{vL16}')
    lds_spin(a, vCN, 20, 1, TM, sleep=True)
    stamp(a, cfg, 'goB', 'G')
    def loadP(i):
        r = PR + 8*(i % cfg.NP)
        a.wait_tag('p')
        for hb in range(2): a(f'ds_read_b128 {vr(r+4*hb,4)}, v{vP} offset:{PST + (i-cfg.NP)*2048 + 1024*hb}')
    def loadQ(i):
        k = i % cfg.NQ; r = QR + 8*k
        a(f's_mov_b32 s{sQ+k}, {i*8192}')
        a(f'buffer_load_dwordx4 {vr(r,4)}, v{vQ0}, {sr(SC,4)}, s{sQ+k} offen sc1')
        a(f'buffer_load_dwordx4 {vr(r+4,4)}, v{vQ1}, {sr(SC,4)}, s{sQ+k} offen sc1')
    for i in range(cfg.NQ): loadQ(i)
    NS = 22
    for i in range(NS):
        p = PR + 8*(i % cfg.NP); q = QR + 8*(i % cfg.NQ)
        stamp(a, cfg, f'g{i}', 'G')
        for mt in range(2):
            for nt in range(2):
                d = ACC2 + 32*mt + 16*nt
                a(f'{MF32} {vr(d,16)}, {vr(p+4*mt,4)}, {vr(q+4*nt,4)}, {vr(d,16) if i else 0}')
        if i + cfg.NQ < NS: loadQ(i + cfg.NQ)
        if i + cfg.NP < NS: loadP(i + cfg.NP)
    stamp(a, cfg, 'g2end', 'G')
    def quad(k, mt, rr): return ACC2 + 32*mt + 16*(k & 1) + 4*(2*(k >> 1) + rr)
    for k in range(1, 4):
        a(f's_xor_b32 s{T0}, s{sW}, {k}'); a(f's_mul_i32 s{T0}, s{T0}, 12288'); a(f's_add_u32 s{T0}, s{T0}, {RED}'); a(f'v_add_u32 v{2+k}, s{T0}, v{vL16}')
    for k in range(1, 4):
        for mt in range(2):
            for rr in range(2):
                a(f'ds_write_b128 v{2+k}, {vr(quad(k,mt,rr),4)} offset:{(k-1)*4096 + (2*mt+rr)*1024}')
    vRA, vAA, vGA, vO = 6, 7, 8, 9
    a(f's_mul_i32 s{T0}, s{sW}, 12288'); a(f's_add_u32 s{T0}, s{T0}, {RED}'); a(f'v_add_u32 v{vRA}, s{T0}, v{vL16}')
    a(f'v_and_b32 v10, 31, v1'); a(f's_and_b32 s{T0}, s{sW}, 1'); a(f's_lshl_b32 s{T0}, s{T0}, 5'); a(f'v_add_u32 v10, s{T0}, v10')
    a(f'v_lshrrev_b32 v11, 5, v1'); a(f's_lshr_b32 s{T0}, s{sW}, 1'); a(f's_lshl_b32 s{T0}, s{T0}, 2'); a(f'v_add_u32 v11, s{T0}, v11')
    a(f'v_lshlrev_b32 v{vGA}, 2, v10'); a(f'v_add_u32 v{vGA}, {GL}, v{vGA}')
    a(f'v_bfe_u32 v13, v10, 1, 3'); a('v_xor_b32 v13, v13, v11'); a(f'v_lshlrev_b32 v{vAA}, 7, v10'); a(f'v_lshl_add_u32 v{vAA}, v13, 4, v{vAA}'); a(f'v_add_u32 v{vAA}, {FB}, v{vAA}')
    a(f'v_xor_b32 v13, 32, v{vAA}')
    a(f'v_lshlrev_b32 v{vO}, 15, v10'); a(f'v_lshl_add_u32 v{vO}, v11, 7, v{vO}')
    a(f's_lshl_b32 s{T1}, s{sG0}, 10'); a(f's_lshl_b32 s{T0}, s{sJ}, 4'); a(f's_add_u32 s{T1}, s{T1}, s{T0}')
    a.wait(lg=0); a('s_barrier')
    stamp(a, cfg, 'fbar', 'G')
    RD = PR
    for k in range(1, 4):
        for mq in range(4): a(f'ds_read_b128 {vr(RD+16*(k-1)+4*mq,4)}, v{vRA} offset:{(k-1)*4096 + mq*1024}')
    AA = PR + 48
    a(f'ds_read_b128 {vr(AA,4)}, v{vAA}'); a(f'ds_read_b128 {vr(AA+4,4)}, v13'); a(f'ds_read_b32 v14, v{vGA}')
    for k in range(1, 4):
        for mt in range(2):
            for rr in range(2):
                for pp in range(2):
                    d = quad(0, mt, rr) + 2*pp; s_ = RD + 16*(k-1) + 4*(2*mt+rr) + 2*pp
                    a(f'v_pk_add_f32 {vr(d,2)}, {vr(d,2)}, {vr(s_,2)}')
    U = PR + 56
    for rr in range(2):
        for k in range(4):
            lo, hi = U + 2*k, U + 2*k + 1
            b0, b1 = quad(0, 0, rr) + k, quad(0, 1, rr) + k
            a(f'v_lshlrev_b32 v{lo}, 16, v{AA+4*rr+k}'); a(f'v_and_b32 v{hi}, 0xffff0000, v{AA+4*rr+k}')
            a(f'v_sub_f32 v{lo}, v{lo}, v{b0}'); a(f'v_sub_f32 v{hi}, v{hi}, v{b1}')
            a(f'v_fmac_f32 v{b0}, v14, v{lo}'); a(f'v_fmac_f32 v{b1}, v14, v{hi}')
        for k in range(4): a(f'v_cvt_pk_bf16_f32 v{U+8+4*rr+k}, v{quad(0,0,rr)+k}, v{quad(0,1,rr)+k}')
        a(f'buffer_store_dwordx4 {vr(U+8+4*rr,4)}, v{vO}, {sr(SE,4)}, s{T1} offen offset:{256*rr}')
    stamp(a, cfg, 'end', 'G')
    if cfg.stamps and 'end2' in cfg.gst:
        a('s_waitcnt vmcnt(0)'); stamp(a, cfg, 'end2', 'G')
    if cfg.stamps:
        stamp(a, cfg, 'c_end', 'G'); stampv(a, cfg, 'retry', 'G', sU0); srd(a, SA, sWS, WSZ); stamps_out(a, cfg, 10, SA)
    a('s_endpgm')

class Paced:
    def __init__(self, a, cfg):
        self.a, self.cfg, self.on, self.n, self.t0 = a, cfg, False, 0, 0
        self.limit = 17
    def start(self): self.on = True; self.t0 = self.a.cost
    def bar(self):
        self.a('s_barrier'); self.n += 1
    def __call__(self, s, tag=None):
        self.a(s, tag)
        if self.on and self.n < self.limit and (self.a.cost - self.t0) >= self.cfg.tslab * self.n + self.cfg.tslab // 3:
            self.bar()
    def until(self, n):
        while self.n < n: self.bar()

def cs_pairs(a, base, step, mults, tmp, outs):
    for g in range(len(mults)//4):
        an, c, s = tmp, tmp + 4, tmp + 8
        for k in range(4):
            m = mults[4*g+k]
            if m: a(f'v_fmamk_f32 v{an+k}, v{step}, {f32(float(m))}, v{base}')
        src = lambda k: an + k if mults[4*g+k] else base
        for k in range(4): a(f'v_cos_f32 v{c+k}, v{src(k)}')
        for k in range(4): a(f'v_sin_f32 v{s+k}, v{src(k)}')
        L = [(kind, dst, p) for p in range(2) for kind, dst in outs(2*g+p)]
        L.sort(key=lambda x: x[0] != 'c')
        for kind, dst, p in L:
            if kind == 'c': a(f'v_cvt_pk_bf16_f32 v{dst}, v{c+2*p}, v{c+2*p+1}')
            elif kind == 's': a(f'v_cvt_pk_bf16_f32 v{dst}, v{s+2*p}, v{s+2*p+1}')
            else: a(f'v_cvt_pk_bf16_f32 v{dst}, -v{s+2*p}, -v{s+2*p+1}')

def gen_F(a0, cfg):
    a = Paced(a0, cfg)
    vN, vQ, vL16, vCN, vONE = 2, 3, 12, 4, 5
    vE2, vMA, vMB, vNf, vQf, vN4 = 6, 7, 8, 9, 10, 15
    M1, M2, M4, M5, N8, N64, WF, IN, WK, PK = 16, 48, 72, 96, 128, 152, 184, 200, 232, 248
    sB, sK1, sROT, sPAIR = 58, 59, 60, 61
    mK0, mK5, mK04 = 62, 64, 66
    sMIR = 68; sSC = 69
    sE2, sE1, sIH, sKH = 70, 72, 74, 75
    a0.label('L_F')
    if cfg.prioF: a(f's_setprio {cfg.prioF}')
    t = WK
    a(f'v_and_b32 v{vN}, 15, v1'); a(f'v_lshrrev_b32 v{vQ}, 4, v1')
    a(f'v_and_b32 v{t}, 255, v0'); a(f'v_lshlrev_b32 v{t+1}, 2, v{t}')
    a(f's_lshr_b32 s{T0}, s2, 1'); a(f's_lshl_b32 s{T0}, s{T0}, 14'); a(f's_and_b32 s{T1}, s2, 1'); a(f's_lshl_b32 s{T1}, s{T1}, 12'); a(f's_add_u32 s{T0}, s{T0}, s{T1}')
    a(f's_add_u32 s{T1}, s{T0}, 8192')
    a('s_waitcnt lgkmcnt(0)')
    srd(a, SB, sW2, 1376*1024)
    L2 = M1
    for e in range(8): a(f'buffer_load_dword v{L2+e}, v{t+1}, {sr(SB,4)}, s{T0 if e < 4 else T1} offen offset:{1024*(e&3)}')
    srd(a, SE, sGWp, 1024)
    a(f's_lshl_b32 s{T0}, s{sW}, 8'); a(f's_add_u32 m0, s{T0}, {GW}'); a(f'v_lshlrev_b32 v{t}, 2, v1')
    a(f'buffer_load_dword v{t}, {sr(SE,4)}, s{T0} offen lds', tag='gw')
    a(f's_load_dwordx2 {sr(sNON,2)}, {sr(sWS,2)}, {NONCE}')
    srd(a, SA, sWS, WSZ); srd(a, SC, sWR, 2048*514); srd(a, SD, sWI, 2048*514)
    a(f'v_mov_b32 v{vCN}, {CNT}'); a(f'v_mov_b32 v{vONE}, 1')
    for k in range(4): a(f'v_mov_b32 v{t+4+k}, 0')
    a(f'ds_write_b128 v{vCN}, {vr(t+4,4)}'); a(f'ds_write_b128 v{vCN}, {vr(t+4,4)} offset:16')
    stamp(a, cfg, 'iss', 'F')
    F64, F8 = 128, 144
    a(f's_and_b32 s{sIH}, s{sW}, 1'); a(f's_lshr_b32 s{sKH}, s{sW}, 1')
    a(f'v_cvt_f32_u32 v{vNf}, v{vN}'); a(f'v_cvt_f32_u32 v{vQf}, v{vQ}')
    a(f's_lshl_b32 s{T0}, s{sKH}, 4'); a(f'v_add_u32 v{t}, s{T0}, v{vN}'); a(f'v_cmp_eq_u32 {sr(mK0,2)}, 0, v{t}')
    a(f'v_cvt_f32_u32 v{t}, v{t}'); a(f'v_mul_f32 v{t}, {f32(1/64)}, v{t}'); a(f'v_mul_f32 v{t+1}, {f32(8.0)}, v{vQf}'); a(f'v_mul_f32 v{t+1}, v{t+1}, v{t}')
    cs_pairs(a, t+1, t, [32*st + e for st in range(2) for e in range(8)], t+2,
             lambda pi: [('c', F64 + 8*(pi//4) + pi % 4), ('m', F64 + 8*(pi//4) + 4 + pi % 4)])
    a(f'v_mov_b32 v{t}, 0xbf803f80')
    for st in range(2):
        for k in range(4): a(f'v_cndmask_b32 v{F64+8*st+4+k}, v{F64+8*st+4+k}, v{t}, {sr(mK0,2)}')
    a(f'v_and_b32 v{t}, 1, v1'); a(f'v_lshlrev_b32 v{t}, 4, v{t}'); a(f'v_mov_b32 v{t+1}, 0xffff'); a(f'v_lshlrev_b32 v{t}, v{t}, v{t+1}')
    a(f'v_and_b32 v{t+1}, 2, v1'); a(f'v_cmp_eq_u32 vcc, 0, v{t+1}')
    a(f'v_lshrrev_b32 v{vN4}, 2, v{vN}'); a(f'v_cvt_f32_u32 v{vN4}, v{vN4}'); a(f'v_mul_f32 v{vN4}, {f32(0.125)}, v{vN4}')
    a(f'v_cndmask_b32 v{vMA}, 0, v{t}, vcc'); a(f'v_xor_b32 v{vMB}, v{vMA}, v{t}')
    def dft8(a, t, emit):
        a(f'v_add_f32 v{t}, 0.5, v{vN4}'); a(f'v_add_f32 v{t+1}, 4.0, v{vQf}')
        for i in range(2):
            for k in range(2): a(f'v_mul_f32 v{t+2+2*i+k}, v{t if i else vN4}, v{t+1 if k else vQf}')
        for u in range(4): a(f'v_cos_f32 v{t+6+u}, v{t+2+u}')
        for u in range(4): a(f'v_sin_f32 v{t+10+u}, v{t+2+u}')
        for u in range(4): a(f'v_cvt_pk_bf16_f32 v{t+6+u}, v{t+6+u}, v{t+6+u}')
        for u in range(4): a(f'v_cvt_pk_bf16_f32 v{t+2+u}, -v{t+10+u}, -v{t+10+u}')
        for u in range(4): a(f'v_cvt_pk_bf16_f32 v{t+10+u}, v{t+10+u}, v{t+10+u}')
        for u in range(4):
            for kind, src in (('c', t+6+u), ('m', t+2+u), ('s', t+10+u)):
                d = emit(u >> 1, u & 1, kind)
                a(f'v_and_b32 v{d}, v{src}, v{vMA}'); a(f'v_and_b32 v{d+1}, v{src}, v{vMB}')
    dft8(a, t, lambda t2, tt, kind: F8 + 12*t2 + {'c': 0, 's': 4, 'm': 8}[kind] + 2*tt)
    stamp(a, cfg, 'con1', 'F')
    vTR, vE1 = 11, 13
    a(f'v_lshlrev_b32 v{t}, 3, v{vQ}'); a(f'v_bfe_u32 v{t+1}, v1, 2, 2'); a(f'v_add_u32 v{t}, v{t}, v{t+1}'); a(f'v_mul_u32_u24 v{t}, {XP}, v{t}')
    a(f'v_and_b32 v{t+1}, 3, v1'); a(f'v_lshl_add_u32 v{t}, v{t+1}, 7, v{t}')
    a(f's_lshl_b32 s{T0}, s{sJ}, 4'); a(f's_lshl_b32 s{T1}, s{sIH}, 3'); a(f's_add_u32 s{T0}, s{T0}, s{T1}'); a(f'v_add_u32 v{vTR}, s{T0}, v{t}')
    a(f'v_lshrrev_b32 v{t}, 2, v{vN}'); a(f's_lshl_b32 s{T0}, s{sKH}, 2'); a(f'v_add_u32 v{t}, s{T0}, v{t}'); a(f'v_lshl_add_u32 v{t}, v{t}, 3, v{vQ}')
    a(f'v_lshlrev_b32 v{t}, 15, v{t}'); a(f'v_and_b32 v{t+1}, 3, v{vN}'); a(f'v_lshl_add_u32 v{vE1}, v{t+1}, 4, v{t}')
    a(f's_lshl_b32 s{T0}, s{sG0}, 3'); a(f's_add_u32 s{sB}, s{T0}, s{sJ}')
    a(f's_lshl_b32 s{T0}, s{sB}, 7'); a(f's_lshl_b32 s{T1}, s{sIH}, 6'); a(f's_add_u32 s{T0}, s{T0}, s{T1}'); a(f's_add_u32 s{sE1}, s{T0}, {E1}'); a(f's_add_u32 s{sE1+1}, s{sE1}, 131072')
    a(f'v_cmp_eq_u32 vcc, 0, v{vQ}'); a(f's_and_b64 {sr(mK04,2)}, vcc, {sr(mK0,2)}'); a(f's_andn2_b64 {sr(mK5,2)}, {sr(mK0,2)}, vcc')
    a(f'v_lshrrev_b32 v{t}, 1, v{vN}'); a(f'v_lshlrev_b32 v{vE2}, 17, v{t}'); a(f'v_lshrrev_b32 v{t}, 1, v{vQ}'); a(f'v_lshl_add_u32 v{vE2}, v{t}, 14, v{vE2}')
    a(f'v_and_b32 v{t}, 1, v{vN}'); a(f'v_lshl_add_u32 v{vE2}, v{t}, 5, v{vE2}'); a(f'v_and_b32 v{t}, 1, v{vQ}'); a(f'v_lshl_add_u32 v{vE2}, v{t}, 4, v{vE2}')
    a(f's_lshl_b32 s{T0}, s{sB}, 6'); a(f's_lshl_b32 s{T1}, s{sW}, 15')
    a(f's_add_u32 s{sE2}, s{T0}, s{T1}'); a(f's_add_u32 s{sE2}, s{sE2}, {E2}'); a(f's_add_u32 s{sE2+1}, s{sE2}, {MB}')
    def perm_finish(a):
        P0 = M1 + 8
        a(f'v_and_b32 v{P0+8}, 255, v0'); a(f'v_bfe_u32 v{P0+9}, v{P0+8}, 2, 3'); a(f's_mov_b32 s{T0}, {REG}'); a(f'v_mul_lo_u32 v{P0+9}, v{P0+9}, s{T0}')
        a(f'v_lshrrev_b32 v{P0+10}, 5, v{P0+8}'); a(f'v_lshl_add_u32 v{P0+9}, v{P0+10}, 6, v{P0+9}'); a(f'v_and_b32 v{P0+10}, 3, v{P0+8}'); a(f'v_lshl_add_u32 v{P0+9}, v{P0+10}, 4, v{P0+9}')
        a(f's_lshr_b32 s{T2}, s2, 1'); a(f's_lshl_b32 s{T2}, s{T2}, 11'); a(f's_and_b32 s{T1}, s2, 1'); a(f's_lshl_b32 s{T1}, s{T1}, 9'); a(f's_add_u32 s{T2}, s{T2}, s{T1}')
        a(f's_add_u32 s{T2}, s{T2}, {W2P}'); a('s_cmp_lt_u32 s2, 172'); a(f's_cselect_b32 s{T2}, s{T2}, {OOB}')
        a(f's_mov_b32 s{T0}, 0x05040100'); a(f's_mov_b32 s{T1}, 0x07060302')
        for k in range(4):
            a(f'v_perm_b32 v{P0+k}, v{L2+2*k+1}, v{L2+2*k}, s{T0}'); a(f'v_perm_b32 v{P0+4+k}, v{L2+2*k+1}, v{L2+2*k}, s{T1}')
        a(f'buffer_store_dwordx4 {vr(P0,4)}, v{P0+9}, {sr(SA,4)}, s{T2} offen sc1')
        a(f'buffer_store_dwordx4 {vr(P0+4,4)}, v{P0+9}, {sr(SA,4)}, s{T2} offen offset:1024 sc1')
        for k in range(4): a(f'v_mov_b32 v{P0+12+k}, -1')
        for tt in range(2):
            if cfg.clrF: a(f'buffer_store_dwordx4 {vr(P0+12,4)}, v{vE2}, {sr(SA,4)}, s{sE2+tt} offen sc1')
    if cfg.permEarly: perm_finish(a)
    stamp(a, cfg, 'perm', 'F')
    a0.wait_tag('gw'); a0.wait(lg=0)
    stamp(a, cfg, 'preX', 'F')
    a('s_barrier')
    stamp(a, cfg, 'X', 'F')
    DA, C1, C2, Z = IN, IN + 16, WK, 168
    for st in range(2):
        for tt in range(2):
            for hf in range(2):
                a(f'ds_read_b64_tr_b16 {vr(DA+8*st+4*tt+2*hf,2)}, v{vTR} offset:{XT + (32*st+4*hf)*XP + 512*tt}')
    a.start()
    for st in range(2):
        for tt in range(2):
            for c in range(2):
                d = C1 + 8*c + 4*tt
                a(f'{MF16} {vr(d,4)}, {vr(DA+8*st+4*tt,4)}, {vr(F64+8*st+4*c,4)}, {vr(d,4) if st else 0}')
    for c in range(2):
        for k in range(4): a(f'v_cvt_pk_bf16_f32 v{PK+4*c+k}, v{C1+8*c+2*k}, v{C1+8*c+2*k+1}')
    BM = DA
    for k in range(4): a(f'v_cndmask_b32 v{BM+k}, v{PK+4+k}, 0, {sr(mK0,2)}')
    for t2 in range(2):
        cc, ss, mm = F8 + 12*t2, F8 + 12*t2 + 4, F8 + 12*t2 + 8
        a(f'{MF16} {vr(C2+8*t2,4)}, {vr(cc,4)}, {vr(PK,4)}, 0')
        a(f'{MF16} {vr(C2+8*t2+4,4)}, {vr(mm,4)}, {vr(PK,4)}, 0')
    for t2 in range(2):
        cc, ss, mm = F8 + 12*t2, F8 + 12*t2 + 4, F8 + 12*t2 + 8
        a(f'{MF16} {vr(C2+8*t2,4)}, {vr(ss,4)}, {vr(BM,4)}, {vr(C2+8*t2,4)}')
        a(f'{MF16} {vr(C2+8*t2+4,4)}, {vr(cc,4)}, {vr(BM,4)}, {vr(C2+8*t2+4,4)}')
    a(f'{MF16} {vr(Z,4)}, {vr(F8,4)}, {vr(PK+4,4)}, 0')
    a(f'{MF16} {vr(Z+4,4)}, {vr(F8+12,4)}, {vr(PK+4,4)}, 0')
    a(f'{MF16} {vr(Z+8,4)}, {vr(F8+20,4)}, {vr(PK+4,4)}, 0')
    O = C1
    for k in range(8): a(f'v_cvt_pk_bf16_f32 v{O+k}, v{C2+2*k}, v{C2+2*k+1}')
    for k in range(6): a(f'v_cvt_pk_bf16_f32 v{O+8+k}, v{Z+2*k}, v{Z+2*k+1}')
    for k in range(2):
        a(f'v_cndmask_b32 v{O+2+k}, v{O+2+k}, v{O+8+k}, {sr(mK04,2)}')
        a(f'v_cndmask_b32 v{O+6+k}, v{O+6+k}, v{O+10+k}, {sr(mK04,2)}')
        a(f'v_cndmask_b32 v{O+4+k}, v{O+4+k}, v{O+10+k}, {sr(mK5,2)}')
        a(f'v_cndmask_b32 v{O+6+k}, v{O+6+k}, v{O+12+k}, {sr(mK5,2)}')
    for t2 in range(2): a(f'buffer_store_dwordx4 {vr(O+4*t2,4)}, v{vE1}, {sr(SA,4)}, s{sE1+t2} offen sc1', tag='e1')
    stamp(a, cfg, 'fft1', 'F')
    if not cfg.permEarly: perm_finish(a)
    a.limit = cfg.kA
    vGX, vGG = 11, 13
    a(f's_lshl_b32 s{T0}, s{sW}, 4'); a(f'v_add_u32 v{t}, s{T0}, v{vN}'); a(f'v_lshlrev_b32 v14, 2, v{t}'); a(f'v_mul_u32_u24 v{t}, {XP}, v{t}')
    a(f'v_lshl_add_u32 v{vGX}, v{vQ}, 4, v{t}'); a(f'v_lshlrev_b32 v{vGG}, 4, v{vQ}')
    GA = WK + 8
    GB = 128
    for b in range(2):
        for k in range(8):
            ks = 8*b + k
            a(f'ds_read_b128 {vr(GB+8*k,4)}, v{vGX} offset:{XT + 64*ks}'); a(f'ds_read_b128 {vr(GB+8*k+4,4)}, v{vGG} offset:{GW + 64*ks}')
        for k in range(8):
            a(f'{MF16} {vr(GA+4*(k&1),4)}, {vr(GB+8*k+4,4)}, {vr(GB+8*k,4)}, {vr(GA+4*(k&1),4) if (b or k > 1) else 0}')
    a(f's_cmp_eq_u32 s{sG0}, 0'); a(f's_cselect_b32 s{T0}, 1, 0')
    a(f's_and_b32 s{T1}, s{sJ}, 3'); a(f's_cmp_eq_u32 s{T1}, 0'); a(f's_cselect_b32 s{sPAIR}, s{T0}, 0')
    a(f's_cmp_gt_u32 s{sJ}, 4'); a(f's_cselect_b32 s{T1}, s{T0}, 0')
    a(f's_mul_i32 s{sROT}, s{T1}, {f32(0.25)}')
    a(f's_lshr_b32 s{T2}, s{sW}, 1'); a(f's_andn2_b32 s{sMIR}, s{T2}, s{sPAIR}')
    a(f's_and_b32 s{T2}, s{T2}, s{sPAIR}'); a(f's_or_b32 s{T1}, s{T1}, s{T2}'); a(f's_lshl_b32 s{T1}, s{T1}, 5')
    a(f's_add_u32 s{sK1}, s{sG0}, s{T1}')
    nonce(a)
    t = IN
    def con_M1(a):
        a(f's_lshl_b32 s{T0}, s{sPAIR}, 1'); a(f's_andn2_b32 s{T0}, s{sW}, s{T0}'); a(f's_lshl_b32 s{T0}, s{T0}, 7'); a(f's_add_u32 s{T0}, s{T0}, s{sJ}')
        a(f'v_lshlrev_b32 v{t}, 3, v{vN}'); a(f'v_add_u32 v11, s{T0}, v{t}'); a(f'v_cvt_f32_u32 v{t}, v11'); a(f'v_mul_f32 v{t}, {f32(1/512)}, v{t}')
        a(f'v_mul_f32 v{t+1}, 4.0, v{vQf}'); a(f'v_mul_f32 v{t+1}, v{t+1}, v{t}')
        cs_pairs(a, t+1, t, [16*sg + e for sg in range(4) for e in range(4)], t+2,
                 lambda pi: [('c', M1 + 8*(pi//2) + pi % 2), ('s', M1 + 8*(pi//2) + 2 + pi % 2), ('m', M1 + 8*(pi//2) + 4 + pi % 2), ('c', M1 + 8*(pi//2) + 6 + pi % 2)])
    def con_M2(a):
        for t2 in range(2):
            a(f'v_lshlrev_b32 v{t}, 6, v{vN}'); a(f's_add_u32 s{T0}, s{sK1}, {1024*t2}'); a(f'v_add_u32 v{t}, s{T0}, v{t}'); a(f'v_cvt_f32_u32 v{t}, v{t}'); a(f'v_mul_f32 v{t}, {f32(1/2048)}, v{t}')
            a(f'v_mul_f32 v{t+1}, 4.0, v{vQf}'); a(f'v_mul_f32 v{t+1}, v{t+1}, v{t}')
            cs_pairs(a, t+1, t, [16*tt + r for tt in range(2) for r in range(4)], t+2,
                     lambda pi: [('c', M2 + 12*t2 + pi), ('s', M2 + 12*t2 + 4 + pi), ('m', M2 + 12*t2 + 8 + pi)])
    def con_M4(a):
        a(f'v_lshlrev_b32 v{t+14}, 8, v{vQ}'); a(f'v_add_u32 v{t+14}, s{sK1}, v{t+14}'); a(f'v_cvt_f32_u32 v{t+14}, v{t+14}'); a(f'v_mul_f32 v{t+14}, {f32(1/64)}, v{t+14}')
        for tt in range(2):
            a(f'v_add_f32 v{t}, {f32(16.0*tt)}, v{vNf}'); a(f'v_mul_f32 v{t}, {f32(1/32)}, v{t}')
            a(f'v_fma_f32 v{t+1}, v{t}, v{t+14}, s{sROT}')
            cs_pairs(a, t+1, t, [16*t2 + r for t2 in range(2) for r in range(4)], t+2,
                     lambda pi: [('c', M4 + 12*tt + pi), ('s', M4 + 12*tt + 4 + pi), ('m', M4 + 12*tt + 8 + pi)])
    def con_M5(a):
        a(f's_lshl_b32 s{T0}, s{sW}, 4'); a(f'v_add_u32 v{t}, s{T0}, v{vN}'); a(f'v_cvt_f32_u32 v{t}, v{t}'); a(f'v_mul_f32 v{t}, {f32(1/64)}, v{t}')
        a(f'v_lshlrev_b32 v{t+1}, 5, v{vQ}'); a(f'v_add_u32 v{t+1}, s{sJ}, v{t+1}'); a(f'v_cvt_f32_u32 v{t+1}, v{t+1}'); a(f'v_mul_f32 v{t+1}, {f32(0.125)}, v{t+1}'); a(f'v_mul_f32 v{t+1}, v{t+1}, v{t}')
        cs_pairs(a, t+1, t, [16*sg + e for sg in range(4) for e in range(4)], t+2,
                 lambda pi: [('c', M5 + 8*(pi//2) + pi % 2), ('m', M5 + 8*(pi//2) + 2 + pi % 2), ('s', M5 + 8*(pi//2) + 4 + pi % 2), ('c', M5 + 8*(pi//2) + 6 + pi % 2)])
    a(f'v_add_f32 v{GA}, v{GA}, v{GA+4}')
    a(f'v_mul_f32 v{GA}, {f32(-1.4426950408889634)}, v{GA}'); a(f'v_exp_f32 v{GA}, v{GA}'); a(f'v_add_f32 v{GA}, 1.0, v{GA}'); a(f'v_rcp_f32 v{GA}, v{GA}')
    a(f'ds_write_b32 v14, v{GA} offset:{GL}')
    con_M1(a)
    a.until(cfg.kA)
    a0.wait(vm=0); a.limit = 17; a.bar()
    f0 = WK
    a0(f'v_mov_b32 v{f0}, s{sNON}'); a0(f'v_mov_b32 v{f0+1}, s{sNON+1}')
    a0(f's_lshl_b32 s{T0}, s2, 3'); a0(f's_add_u32 s{T0}, s{T0}, {FLAGA}'); a0(f's_cmp_eq_u32 s{sW}, 0'); a0(f's_cselect_b32 s{T0}, s{T0}, {OOB}')
    a0(f'v_mov_b32 v{f0+2}, 0'); a0('s_mov_b64 exec, 1')
    a0(f'buffer_store_dwordx2 {vr(f0,2)}, v{f0+2}, {sr(SA,4)}, s{T0} offen sc1')
    a0('s_mov_b64 exec, -1')
    stamp(a, cfg, 'flag', 'F')
    con_M2(a)
    vKD = 11
    def gatherW(a, dst, smir, tv, col=None):
        va, v0_, vc = tv, tv + 1, tv + 2
        a(f's_cmp_lg_u32 s{smir}, 0'); a(f's_cselect_b64 vcc, -1, 0')
        a(f's_cselect_b32 s{T0}, {19*32896}, 0'); a(f's_mov_b32 s{T1}, 32896'); a(f's_cselect_b32 s{T1}, -32896, s{T1}')
        if col is None:
            a(f'v_sub_u32 v{vc}, 512, v{vKD}'); a(f'v_cndmask_b32 v{vc}, v{vKD}, v{vc}, vcc'); a(f'v_lshlrev_b32 v{vc}, 1, v{vc}')
        else: a(f'v_mov_b32 v{vc}, {col}')
        a(f'v_lshlrev_b32 v{va}, 8, v{vQ}'); a(f'v_add_u32 v{va}, s{sK1}, v{va}')
        a(f'v_sub_u32 v{v0_}, 2048, v{va}'); a(f'v_cndmask_b32 v{va}, v{va}, v{v0_}, vcc')
        a(f'v_and_b32 v{v0_}, 2047, v{va}'); a(f'v_mul_u32_u24 v{v0_}, 514, v{v0_}'); a(f'v_add_u32 v{v0_}, v{v0_}, v{vc}')
        a(f'v_mul_u32_u24 v{va}, 514, v{va}'); a(f'v_add_u32 v{va}, v{va}, v{vc}'); a(f'v_subrev_u32 v{va}, s{T0}, v{va}')
        for k in range(8):
            m = 16*(k >> 2) + (k & 3)
            if m == 0:
                a(f'buffer_load_ushort v{dst}, v{v0_}, {sr(SC,4)}, 0 offen'); a(f'buffer_load_ushort v{dst+1}, v{v0_}, {sr(SD,4)}, 0 offen')
            else:
                a(f's_mul_i32 s{T2}, s{T1}, {m}'); a(f's_add_u32 s{T2}, s{T2}, s{T0}')
                a(f'buffer_load_ushort v{dst+2*k}, v{va}, {sr(SC,4)}, s{T2} offen'); a(f'buffer_load_ushort v{dst+2*k+1}, v{va}, {sr(SD,4)}, s{T2} offen')
    def scaleW(a, dst, smir, sc):
        a(f's_cmp_lg_u32 s{smir}, 0'); a(f's_mov_b32 s{T0}, {f32(sc)}'); a(f's_cselect_b32 s{T1}, {f32(-sc)}, s{T0}')
        for k in range(16): a(f'v_lshlrev_b32 v{dst+k}, 16, v{dst+k}')
        for k in range(16): a(f'v_mul_f32 v{dst+k}, s{T0 + (k & 1)}, v{dst+k}')
    a.until(min(cfg.wpos, 17))
    gatherW(a0, WF, sMIR, WK + 4)
    a.until(17)
    a.on = False
    a = a0
    stamp(a, cfg, 'prepoll', 'F')
    vIN = 13
    a(f'v_lshlrev_b32 v{vIN}, 10, v{vN}'); a(f'v_lshl_add_u32 v{vIN}, v{vQ}, 6, v{vIN}')
    sI = 72
    a(f's_lshr_b32 s{T0}, s{sG0}, 2'); a(f's_lshl_b32 s{T0}, s{T0}, 3'); a(f's_add_u32 s{T0}, s{T0}, s{sJ}'); a(f's_lshl_b32 s{T0}, s{T0}, 15')
    a(f's_and_b32 s{T1}, s{sG0}, 3'); a(f's_lshl_b32 s{T1}, s{T1}, 4'); a(f's_add_u32 s{T0}, s{T0}, s{T1}'); a(f's_lshl_b32 s{T1}, s{sW}, 8'); a(f's_add_u32 s{T0}, s{T0}, s{T1}')
    a(f's_add_u32 s{sI}, s{T0}, {E1}'); a(f's_add_u32 s{sI+1}, s{sI}, 16384')
    lw = a.lab('nopoll'); lgo = a.lab('go'); lp = a.lab('poll')
    a(f's_cmp_lg_u32 s{sW}, 0'); a(f's_cbranch_scc1 {lw}')
    vq = list(a.vq)
    a(f's_mov_b32 s{T0}, {FLAGA}'); a(f's_mov_b32 s{T1}, 0')
    a.label(lp)
    a(f'buffer_load_dwordx4 {vr(IN,4)}, v{vL16}, {sr(SA,4)}, s{T0} offen sc1')
    a(f'buffer_load_dwordx4 {vr(IN+4,4)}, v{vL16}, {sr(SA,4)}, s{T0} offen offset:1024 sc1')
    for k in range(8): a(f'v_xor_b32 v{IN+k}, s{sNON + (k & 1)}, v{IN+k}')
    a(f'v_or3_b32 v{IN}, v{IN}, v{IN+1}, v{IN+2}'); a(f'v_or3_b32 v{IN+3}, v{IN+3}, v{IN+4}, v{IN+5}'); a(f'v_or3_b32 v{IN}, v{IN}, v{IN+6}, v{IN+7}'); a(f'v_or_b32 v{IN}, v{IN}, v{IN+3}')
    a(f'v_cmp_ne_u32 vcc, 0, v{IN}')
    a(f's_cbranch_vccz {lgo}')
    a('s_sleep 4'); a(f's_add_u32 s{T1}, s{T1}, 1'); a(f's_cmp_lt_u32 s{T1}, {cfg.spin}'); a(f's_cbranch_scc1 {lp}')
    a.label(lgo)
    lds_arrive(a, vCN, 0, vONE)
    stampv(a, cfg, 'pollsA', 'F', T1)
    a.label(lw)
    a.vq = vq
    t = IN + 4
    if cfg.m4early: con_M4(a)
    lds_spin(a, vCN, 0, 1, IN+3, sleep=True)
    stamp(a, cfg, 'go', 'F')
    for tt in range(2):
        a(f's_lshl_b32 s{T0}, s{sW}, 11'); a(f's_add_u32 m0, s{T0}, {FA + 1024*tt}')
        a(f'buffer_load_dwordx4 v{vIN}, {sr(SA,4)}, s{sI+tt} offen sc1 lds', tag='in')
    scaleW(a, WF, sMIR, 2.0**-19)
    if not cfg.m4early: con_M4(a)
    con_M5(a)
    HB = N64
    a(f's_and_b32 s{T0}, s{sW}, 1'); a(f's_or_b32 s{T0}, s{T0}, s{sJ}'); a(f's_cmp_lg_u32 s{T0}, 0'); h = a.skip_begin('s_cbranch_scc1')
    a(f's_xor_b32 s{sSC}, s{sMIR}, 1'); a(f's_lshl_b32 s{T3}, s{sMIR}, 9')
    gatherW(a, N8, sSC, WK + 4, col=f's{T3}')
    scaleW(a, N8, sSC, 2.0**-19)
    a(f'v_cmp_eq_u32 vcc, 0, v{vN}')
    for k in range(16): a(f'v_add_f32 v{N8+k}, v{N8+k}, v{WF+k}')
    for k in range(16): a(f'v_mul_f32 v{N8+k}, 0.5, v{N8+k}')
    for k in range(16): a(f'v_cndmask_b32 v{WF+k}, v{WF+k}, v{N8+k}, vcc')
    a(f's_cmp_lg_u32 s{sB}, 0'); h2 = a.skip_begin('s_cbranch_scc1')
    gatherW(a, HB, sMIR, WK + 4, col=512); gatherW(a, N8, sSC, WK + 8, col=512)
    scaleW(a, HB, sMIR, 2.0**-20); scaleW(a, N8, sSC, 2.0**-20)
    for k in range(16): a(f'v_add_f32 v{HB+k}, v{HB+k}, v{N8+k}')
    a.skip_end(h2)
    a.skip_end(h)
    a(f's_cmp_eq_u32 s{sPAIR}, 0'); h = a.skip_begin('s_cbranch_scc1')
    a(f's_cmp_lg_u32 s{sJ}, 0'); h2 = a.skip_begin('s_cbranch_scc1')
    a(f's_and_b32 s{T0}, s{sW}, 1'); a(f'v_or_b32 v{t}, s{T0}, v{vN}'); a(f'v_cmp_eq_u32 vcc, 0, v{t}'); a(f'v_mov_b32 v{t}, 0xbf803f80')
    for sg in range(4):
        for k in range(2): a(f'v_cndmask_b32 v{M1+8*sg+4+k}, v{M1+8*sg+4+k}, v{t}, vcc')
    for k in range(16): a(f'v_cndmask_b32 v{HB+k}, v{WF+k}, v{HB+k}, vcc')
    a(f'v_cmp_eq_u32 vcc, 0, v{vQ}'); a(f'v_mov_b32 v{t+2}, 0xffff')
    a(f'v_mov_b32 v{t}, 0x3f00'); a(f'v_bfi_b32 v{t}, v{t+2}, v{t}, v{M5}'); a(f'v_cndmask_b32 v{M5}, v{M5}, v{t}, vcc')
    a(f'v_and_b32 v{t}, 1, v{vN}'); a(f'v_lshlrev_b32 v{t}, 15, v{t}'); a(f'v_or_b32 v{t}, 0x3f00, v{t}'); a(f'v_bfi_b32 v{t}, v{t+2}, v{t}, v{M5+2}'); a(f'v_cndmask_b32 v{M5+2}, v{M5+2}, v{t}, vcc')
    a.skip_end(h2)
    for sg in range(2):
        for k in range(4):
            a(f'v_mov_b32 v{M5+8*(sg+2)+4+k}, v{M5+8*sg+k}'); a(f'v_mov_b32 v{M5+8*(sg+2)+k}, 0'); a(f'v_mov_b32 v{M5+8*sg+4+k}, 0')
    a(f's_cmp_ge_u32 s{sW}, 2'); a(f's_cselect_b64 vcc, -1, 0')
    for sg in range(4):
        for k in range(2):
            for o in (0, 4):
                a(f'v_cndmask_b32 v{M1+8*sg+o+2+k}, 0, v{M1+8*sg+o+k}, vcc'); a(f'v_cndmask_b32 v{M1+8*sg+o+k}, v{M1+8*sg+o+k}, 0, vcc')
    a.skip_end(h)
    a.wait(vm=0)
    lds_arrive(a, vCN, 4, vONE)
    lds_spin(a, vCN, 4, 4, IN)
    stamp(a, cfg, 'in', 'F')
    for u in range(8): a(f'ds_read_b128 {vr(IN+4*u,4)}, v{vL16} offset:{FA + 1024*u}')
    C1 = WK
    for sg in range(4):
        for tt in range(2):
            for c in range(2):
                d = C1 + 8*c + 4*tt
                a(f'{MF16} {vr(d,4)}, {vr(IN+8*sg+4*tt,4)}, {vr(M1+8*sg+4*c,4)}, {vr(d,4) if sg else 0}')
    for c in range(2):
        for k in range(4): a(f'v_cvt_pk_bf16_f32 v{PK+4*c+k}, v{C1+8*c+2*k}, v{C1+8*c+2*k+1}')
    lsp = a.lab('special'); ljn = a.lab('join')
    a(f's_cmp_eq_u32 s{sB}, 0'); a(f's_cbranch_scc1 {lsp}')
    snap = (list(a.hist), list(a.vq), list(a.lq))
    Cre, Cim, Yre, Yim = IN, IN + 8, IN + 16, IN + 24
    for t2 in range(2):
        a(f'{MF16} {vr(Cre+4*t2,4)}, {vr(M2+12*t2,4)}, {vr(PK,4)}, 0')
        a(f'{MF16} {vr(Cim+4*t2,4)}, {vr(M2+12*t2+8,4)}, {vr(PK,4)}, 0')
    for t2 in range(2):
        a(f'{MF16} {vr(Cre+4*t2,4)}, {vr(M2+12*t2+4,4)}, {vr(PK+4,4)}, {vr(Cre+4*t2,4)}')
        a(f'{MF16} {vr(Cim+4*t2,4)}, {vr(M2+12*t2,4)}, {vr(PK+4,4)}, {vr(Cim+4*t2,4)}')
    for k in range(8):
        a(f'v_mul_f32 v{Yre+k}, v{Cre+k}, v{WF+2*k}'); a(f'v_mul_f32 v{Yim+k}, v{Cre+k}, v{WF+2*k+1}')
    for k in range(8):
        a(f'v_fma_f32 v{Yre+k}, -v{Cim+k}, v{WF+2*k+1}, v{Yre+k}'); a(f'v_fmac_f32 v{Yim+k}, v{Cim+k}, v{WF+2*k}')
    for k in range(4): a(f'v_cvt_pk_bf16_f32 v{PK+k}, v{Yre+2*k}, v{Yre+2*k+1}')
    for k in range(4): a(f'v_cvt_pk_bf16_f32 v{PK+4+k}, v{Yim+2*k}, v{Yim+2*k+1}')
    a.label(ljn)
    C3 = WK
    for tt in range(2):
        a(f'{MF16} {vr(C3+8*tt,4)}, {vr(PK,4)}, {vr(M4+12*tt,4)}, 0')
        a(f'{MF16} {vr(C3+8*tt+4,4)}, {vr(PK,4)}, {vr(M4+12*tt+4,4)}, 0')
    for tt in range(2):
        a(f'{MF16} {vr(C3+8*tt,4)}, {vr(PK+4,4)}, {vr(M4+12*tt+8,4)}, {vr(C3+8*tt,4)}')
        a(f'{MF16} {vr(C3+8*tt+4,4)}, {vr(PK+4,4)}, {vr(M4+12*tt,4)}, {vr(C3+8*tt+4,4)}')
    a(f's_lshl_b32 s{T0}, s{sW}, 11'); a(f'v_add_u32 v{vIN}, s{T0}, v{vL16}')
    for k in range(8): a(f'v_cvt_pk_bf16_f32 v{PK+k}, v{C3+2*k}, v{C3+2*k+1}')
    for tt in range(2): a(f'ds_write_b128 v{vIN}, {vr(PK+4*tt,4)} offset:{FB + 1024*tt}')
    a.wait(lg=0)
    lds_arrive(a, vCN, 8, vONE)
    lds_spin(a, vCN, 8, 4, IN)
    for u in range(8): a(f'ds_read_b128 {vr(IN+4*u,4)}, v{vL16} offset:{FB + 1024*u}')
    C4 = WK
    for sg in range(4):
        for tt in range(2):
            for c in range(2):
                d = C4 + 8*tt + 4*c
                a(f'{MF16} {vr(d,4)}, {vr(M5+8*sg+4*c,4)}, {vr(IN+8*sg+4*tt,4)}, {vr(d,4) if sg else 0}')
    for k in range(8): a(f'v_cvt_pk_bf16_f32 v{PK+k}, v{C4+2*k}, v{C4+2*k+1}')
    for k in range(8): a(f'v_min_u32 v{PK+k}, -2, v{PK+k}')
    for tt in range(2): a(f'buffer_store_dwordx4 {vr(PK+4*tt,4)}, v{vE2}, {sr(SA,4)}, s{sE2+tt} offen sc1')
    stamp(a, cfg, 'e2st', 'F')
    t = IN
    dft8(a, t, lambda dh, st, kind: N8 + 12*dh + 6*st + {'s': 0, 'c': 2, 'm': 4}[kind])
    vL3, vX3 = 11, 13
    a(f'v_cmp_eq_u32 vcc, 0, v{vQ}')
    a(f'v_and_b32 v{t}, 7, v1'); a(f's_lshl_b32 s{T0}, s{sW}, 3'); a(f'v_add_u32 v{t}, s{T0}, v{t}')
    a(f'v_cmp_eq_u32 {sr(mK0,2)}, 0, v{t}'); a(f's_andn2_b64 {sr(mK5,2)}, {sr(mK0,2)}, vcc'); a(f's_mov_b64 {sr(mK04,2)}, vcc')
    a(f'v_lshl_add_u32 v{t}, v{t}, 3, v{vQ}'); a(f'v_lshlrev_b32 v{t}, 6, v{t}'); a(f'v_bfe_u32 v{t+1}, v1, 3, 1'); a(f'v_lshl_add_u32 v{vL3}, v{t+1}, 4, v{t}')
    a(f's_lshr_b32 s{T0}, s{sG0}, 1'); a(f's_lshl_b32 s{T0}, s{T0}, 17'); a(f's_lshl_b32 s{T1}, s{sJ}, 14'); a(f's_add_u32 s{T0}, s{T0}, s{T1}')
    a(f's_and_b32 s{T1}, s{sG0}, 1'); a(f's_lshl_b32 s{T1}, s{T1}, 5'); a(f's_add_u32 s{T0}, s{T0}, s{T1}'); a(f's_add_u32 s{sI}, s{T0}, {E2}')
    a(f'v_lshrrev_b32 v{t}, 1, v{vQ}'); a(f'v_lshlrev_b32 v{t}, 12, v{t}'); a(f'v_and_b32 v{t+1}, 1, v{vQ}'); a(f'v_lshl_add_u32 v{t}, v{t+1}, 8, v{t}')
    a(f'v_lshl_add_u32 v{t}, v{vN}, 4, v{t}'); a(f's_lshl_b32 s{T1}, s{sW}, 9'); a(f'v_add_u32 v{vX3}, s{T1}, v{t}')
    def n64(nt):
        a(f'v_add_f32 v{t}, {f32(16.0*nt)}, v{vNf}'); a(f'v_mul_f32 v{t}, {f32(1/64)}, v{t}')
        a(f'v_mul_f32 v{t+1}, 4.0, v{vQf}'); a(f'v_mul_f32 v{t+1}, v{t+1}, v{t}')
        cs_pairs(a, t+1, t, [16*st + r for st in range(2) for r in range(4)], t+2,
                 lambda pi: [('c', N64 + 8*nt + 4*(pi//2) + pi % 2), ('m', N64 + 8*nt + 4*(pi//2) + 2 + pi % 2)])
    for nt in range(cfg.n64pre): n64(nt)
    a.wait(vm=0)
    stamp(a, cfg, 'e2dr', 'F')
    D3 = WF
    for st in range(2): a(f'buffer_load_dwordx4 {vr(D3+4*st,4)}, v{vL3}, {sr(SA,4)}, s{sI} offen offset:{256*st} sc1')
    for nt in range(cfg.n64pre, 4): n64(nt)
    a(f'v_mov_b32 v{t+2}, 0xffff')
    a(f'v_and_b32 v{t}, 1, v{vN}'); a(f'v_lshlrev_b32 v{t}, 15, v{t}'); a(f'v_or_b32 v{t}, 0x3f80, v{t}')
    for nt in range(4):
        a(f'v_bfi_b32 v{t+1}, v{t+2}, v{t}, v{N64+8*nt+2}'); a(f'v_cndmask_b32 v{N64+8*nt+2}, v{N64+8*nt+2}, v{t+1}, {sr(mK04,2)}')
    l3 = a.lab('e2poll'); l3ok = a.lab('e2ok')
    a(f's_mov_b32 s{T1}, 0')
    a.wait(vm=0)
    a.label(l3)
    a(f'v_max3_u32 v{IN+8}, v{D3}, v{D3+1}, v{D3+2}'); a(f'v_max3_u32 v{IN+9}, v{D3+3}, v{D3+4}, v{D3+5}')
    a(f'v_max3_u32 v{IN+8}, v{IN+8}, v{D3+6}, v{D3+7}'); a(f'v_max_u32 v{IN+8}, v{IN+8}, v{IN+9}')
    a(f'v_cmp_eq_u32 vcc, -1, v{IN+8}')
    a(f's_cbranch_vccz {l3ok}')
    for st in range(2): a(f'buffer_load_dwordx4 {vr(D3+4*st,4)}, v{vL3}, {sr(SA,4)}, s{sI} offen offset:{256*st} sc1')
    a('s_waitcnt vmcnt(0)')
    a(f's_add_u32 s{T1}, s{T1}, 1'); a(f's_cmp_lt_u32 s{T1}, {cfg.spin}'); a(f's_cbranch_scc1 {l3}')
    a.label(l3ok)
    stamp(a, cfg, 'e2ok', 'F'); stampv(a, cfg, 'polls', 'F', T1)
    VI, VR = IN + 8, IN + 12
    for k in range(4):
        a(f'v_cndmask_b32 v{VI+k}, v{D3+k}, 0, {sr(mK5,2)}'); a(f'v_cndmask_b32 v{VR+k}, v{D3+4+k}, 0, {sr(mK5,2)}')
    C5 = WK
    for dh in range(2):
        a(f'{MF16} {vr(C5+8*dh,4)}, {vr(D3,4)}, {vr(N8+12*dh+2,4)}, 0')
        a(f'{MF16} {vr(C5+8*dh+4,4)}, {vr(D3+4,4)}, {vr(N8+12*dh+6,4)}, 0')
    for dh in range(2):
        a(f'{MF16} {vr(C5+8*dh,4)}, {vr(VR,4)}, {vr(N8+12*dh+8,4)}, {vr(C5+8*dh,4)}')
        a(f'{MF16} {vr(C5+8*dh+4,4)}, {vr(VI,4)}, {vr(N8+12*dh,4)}, {vr(C5+8*dh+4,4)}')
    for k in range(8): a(f'v_cvt_pk_bf16_f32 v{PK+k}, v{C5+2*k}, v{C5+2*k+1}')
    for dh in range(2): a(f'ds_write_b128 v{vX3}, {vr(PK+4*dh,4)} offset:{FA + 2048*dh}')
    a.wait(lg=0)
    lds_arrive(a, vCN, 12, vONE)
    a(f's_and_b32 s{T0}, s{sW}, 1'); a(f's_lshl_b32 s{T0}, s{T0}, 12'); a(f's_lshr_b32 s{T1}, s{sW}, 1'); a(f's_lshl_b32 s{T2}, s{T1}, 11'); a(f's_add_u32 s{T0}, s{T0}, s{T2}')
    a(f'v_add_u32 v{vX3}, s{T0}, v{vL16}')
    a(f's_lshl_b32 s{T1}, s{T1}, 2'); a(f'v_add_u32 v{IN+9}, s{T1}, v{vQ}'); a(f'v_lshrrev_b32 v{IN+10}, 1, v{vN}'); a(f'v_xor_b32 v{IN+9}, v{IN+9}, v{IN+10}')
    a(f'v_lshlrev_b32 v{IN+9}, 4, v{IN+9}'); a(f'v_lshl_add_u32 v{IN+9}, v{vN}, 7, v{IN+9}')
    a(f's_and_b32 s{T0}, s{sW}, 1'); a(f's_lshl_b32 s{T0}, s{T0}, 3'); a(f'v_add_u32 v{vL3}, s{T0}, v{IN+9}')
    lds_spin(a, vCN, 12, 4, IN+8)
    for st in range(2): a(f'ds_read_b128 {vr(IN+4*st,4)}, v{vX3} offset:{FA + 1024*st}')
    for st in range(2):
        for nt in range(4):
            a(f'{MF16} {vr(C5+4*nt,4)}, {vr(IN+4*st,4)}, {vr(N64+8*nt+4*st,4)}, {vr(C5+4*nt,4) if st else 0}')
    for k in range(8): a(f'v_cvt_pk_bf16_f32 v{PK+k}, v{C5+2*k}, v{C5+2*k+1}')
    for nt in range(4): a(f'ds_write_b64 v{vL3}, {vr(PK+2*nt,2)} offset:{FB + 2048*nt}')
    a.wait(lg=0)
    stamp(a, cfg, 'Fend', 'F')
    a(f's_or_b32 s{T0}, s2, s{sW}'); a(f's_cmp_eq_u32 s{T0}, 0'); a(f's_cselect_b32 s{T0}, {NONCE}, {OOB}')
    a(f'v_mov_b32 v{IN}, s{sNON}'); a(f'v_mov_b32 v{IN+1}, s{sNON+1}'); a(f'v_mov_b32 v{IN+2}, 0'); a('s_mov_b64 exec, 1')
    a(f'buffer_store_dwordx2 {vr(IN,2)}, v{IN+2}, {sr(SA,4)}, s{T0} offen')
    a('s_mov_b64 exec, -1')
    a('s_barrier')
    if cfg.stamps: stamps_out(a, cfg, 10, SA)
    a('s_endpgm')
    a.label(lsp)
    a.hist, a.vq, a.lq = snap
    P1_, M3_, P2_, P4_ = IN, IN + 8, IN + 16, IN + 24
    for t2 in range(2):
        a(f'{MF16} {vr(P1_+4*t2,4)}, {vr(M2+12*t2,4)}, {vr(PK,4)}, 0')
        a(f'{MF16} {vr(M3_+4*t2,4)}, {vr(M2+12*t2+8,4)}, {vr(PK,4)}, 0')
        a(f'{MF16} {vr(P2_+4*t2,4)}, {vr(M2+12*t2+4,4)}, {vr(PK+4,4)}, 0')
        a(f'{MF16} {vr(P4_+4*t2,4)}, {vr(M2+12*t2,4)}, {vr(PK+4,4)}, 0')
    for k in range(8):
        x, y = WK + 2*(k & 1), WK + 1 + 2*(k & 1)
        a(f'v_mul_f32 v{x}, v{P1_+k}, v{WF+2*k}'); a(f'v_mul_f32 v{y}, v{P1_+k}, v{WF+2*k+1}')
        a(f'v_fma_f32 v{x}, -v{M3_+k}, v{WF+2*k+1}, v{x}'); a(f'v_fmac_f32 v{y}, v{M3_+k}, v{WF+2*k}')
        a(f'v_fma_f32 v{x}, -v{P4_+k}, v{HB+2*k+1}, v{x}'); a(f'v_fmac_f32 v{y}, v{P4_+k}, v{HB+2*k}')
        a(f'v_fma_f32 v{P1_+k}, v{P2_+k}, v{HB+2*k}, v{x}'); a(f'v_fma_f32 v{M3_+k}, v{P2_+k}, v{HB+2*k+1}, v{y}')
    for k in range(4): a(f'v_cvt_pk_bf16_f32 v{PK+k}, v{P1_+2*k}, v{P1_+2*k+1}')
    for k in range(4): a(f'v_cvt_pk_bf16_f32 v{PK+4+k}, v{M3_+2*k}, v{M3_+2*k+1}')
    a('s_nop 1')
    a(f's_branch {ljn}')

HEADER = open('gated_mix__spectral_gfnet__dense_activation_mish__prompt.s.ref').read().split('; Override')[0] if True else ''
def build(cfg):
    Stream.gid = 0
    a = Stream(); prologue(a, cfg)
    g = Stream(); g.hist, g.vq, g.lq = list(a.hist), list(a.vq), list(a.lq); gen_G(g, cfg)
    f = Stream(); f.hist, f.vq, f.lq = list(a.hist), list(a.vq), list(a.lq); gen_F(f, cfg)
    return f"""{HEADER}; One persistent launch: 256 workgroups x 8 waves (waves 0-3: MLP, waves 4-7: spectral branch). Generated by my own script.
; @launch grid=(256,1,1) block=(512,1,1) lds={LDSZ}
.amdgcn_target "amdgcn-amd-amdhsa--gfx950"
.text
.globl {KN}
.p2align 8
.type {KN},@function
{KN}:
{a.text()}{g.text()}{f.text()}L_END:
    s_endpgm
.section .rodata,"a"
.p2align 6
.amdhsa_kernel {KN}
  .amdhsa_next_free_vgpr 256
  .amdhsa_next_free_sgpr 102
  .amdhsa_accum_offset 256
  .amdhsa_group_segment_fixed_size 0
  .amdhsa_kernarg_size 88
  .amdhsa_user_sgpr_count 2
  .amdhsa_user_sgpr_kernarg_segment_ptr 1
  .amdhsa_system_sgpr_workgroup_id_x 1
  .amdhsa_float_denorm_mode_32 3
.end_amdhsa_kernel
"""
if __name__ == '__main__':
    cfg = Cfg()
    out = sys.argv[1]
    for kv in sys.argv[2:]:
        k, v = kv.split('='); setattr(cfg, k, eval(v))
    open(out, 'w').write(build(cfg))
```

```python
import re
TRANS = ('v_exp_f32','v_log_f32','v_rcp_f32','v_rsq_f32','v_sqrt_f32','v_sin_f32','v_cos_f32','v_rcp_iflag_f32')
def regs_of(tok):
    tok = tok.strip()
    tok = re.sub(r'^-|^abs\(|\)$|^\|', '', tok).rstrip('|')
    m = re.fullmatch(r'([vsa])\[(\d+):(\d+)\]', tok)
    if m: return [m.group(1) + str(i) for i in range(int(m.group(2)), int(m.group(3)) + 1)]
    m = re.fullmatch(r'([vsa])(\d+)', tok)
    if m: return [tok]
    if tok == 'vcc': return ['vcc']
    if tok in ('vcc_lo', 'vcc_hi'): return ['vcc']
    if tok == 'exec': return ['exec']
    if tok == 'm0': return ['m0']
    return []
class I:
    def __init__(self, text):
        self.text = text
        t = text.split(';')[0].strip()
        p = t.split(None, 1)
        self.op = p[0]
        rest = p[1] if len(p) > 1 else ''
        ops = [o.strip() for o in rest.split(',')] if rest else []
        self.mods = ''
        if ops:
            rest2 = re.sub(r'(op_sel|op_sel_hi|neg_lo|neg_hi|quad_perm):\[[^\]]*\]', '', rest)
            ops = [o.strip() for o in rest2.split(',')]
            last = ops[-1].split()
            if last:
                ops[-1] = last[0]; self.mods = ' '.join(last[1:])
        self.ops = ops
        op = self.op
        R = [regs_of(o) for o in ops]
        self.kind = 'other'; self.w = []; self.r = []
        flat = lambda L: [x for l in L for x in l]
        if op.startswith('v_mfma'):
            self.kind = 'mfma'; self.w = R[0]; self.a = R[1]; self.b = R[2]; self.c = R[3]; self.r = flat(R[1:])
            self.passes = 8 if '32x32' in op else 4
        elif op.startswith('v_'):
            self.kind = 'valu'
            if op.startswith('v_cmp'):
                self.w = R[0]; self.r = flat(R[1:])
            elif '_co_' in op:
                self.w = R[0] + R[1]; self.r = flat(R[2:])
            elif op.startswith('v_permlane') and 'swap' in op:
                self.w = R[0] + R[1]; self.r = R[0] + R[1]
            elif op == 'v_nop':
                pass
            else:
                self.w = R[0]; self.r = flat(R[1:])
                if op.startswith(('v_fmac', 'v_pk_fmac', 'v_writelane', 'v_dot2c')): self.r = self.r + R[0]
            self.dpp = 'quad_perm' in text or 'row_' in text
        elif op.startswith('ds_'):
            self.kind = 'ds'
            if op.startswith(('ds_read', 'ds_bpermute', 'ds_permute', 'ds_swizzle')) or '_rtn' in op:
                self.w = R[0]; self.r = flat(R[1:])
            else:
                self.r = flat(R)
        elif op.startswith('buffer_') or op.startswith('global_'):
            self.kind = 'vmem'
            islds = ' lds' in (' ' + self.mods)
            self.lds = islds
            if 'load' in op and not islds:
                self.w = R[0]; self.r = flat(R[1:])
            else:
                self.r = flat(R)
                if islds: self.r = self.r + ['m0']
            self.store = 'store' in op or 'atomic' in op
            self.wide = self.store and ('x3' in op or 'x4' in op)
            self.data = R[0] if self.store else []
        elif op.startswith('s_load') or op.startswith('s_memrealtime') or op.startswith('s_memtime') or op.startswith('s_buffer_load'):
            self.kind = 'smem'; self.w = R[0]; self.r = flat(R[1:])
        elif op.startswith('s_'):
            self.kind = 'salu'
            if op.startswith(('s_cmp', 's_waitcnt', 's_barrier', 's_branch', 's_cbranch', 's_nop', 's_sleep', 's_setprio', 's_endpgm', 's_bitcmp', 's_setpc')):
                self.r = flat(R)
            else:
                self.w = R[0]; self.r = flat(R[1:])
                if 'saveexec' in op: self.w = self.w + ['exec']
class Stream:
    def __init__(self):
        self.out = []
        self.hist = []
        self.vq = []
        self.lq = []
        self.smem = False
        self.smem_w = set()
        self.uid = 0
        self.cost = 0
        self.marks = []
    def lab(self, p='L'):
        Stream.gid = getattr(Stream, 'gid', 0) + 1
        return f'{p}_{Stream.gid}'
    def raw(self, s):
        self.out.append(s)
    def label(self, l):
        self.out.append(l + ':')
    def _age(self, n):
        self.hist = [(i, a + n) for (i, a) in self.hist if a + n < 24]
    def _need(self, c):
        need = 0
        ov = lambda x, y: bool(set(x) & set(y))
        isv = lambda L: [x for x in L if x[0] in 'va' and x != 'vcc']
        for p, age in self.hist:
            n = 0
            if p.kind == 'valu':
                vw = isv(p.w); sw = [x for x in p.w if x not in vw]
                if c.kind == 'mfma' and ov(vw, c.r): n = max(n, 2)
                if c.kind == 'valu':
                    if p.op.replace('_e32','').replace('_e64','') in TRANS and ov(vw, c.r + c.w): n = max(n, 1)
                    if c.op.startswith(('v_readfirstlane', 'v_readlane')) and ov(vw, c.r): n = max(n, 1)
                    if c.op.startswith('v_permlane') and ov(vw, c.r): n = max(n, 2)
                    if c.dpp and ov(vw, c.r): n = max(n, 2)
                    if ov(sw, c.r): n = max(n, 4 if c.op.startswith(('v_readlane','v_writelane')) else 2)
                    if ('op_sel' in p.text or 'sdwa' in p.text) and not p.op.startswith('v_pk') and ov(vw, c.r + c.w): n = max(n, 1)
                if c.kind == 'vmem' and ov(sw, c.r): n = max(n, 5)
                if c.kind in ('salu','smem') and ov(sw, c.r): n = max(n, 1)
            elif p.kind == 'mfma':
                big = {4: 8, 8: 12}[p.passes]
                if c.kind == 'mfma':
                    if ov(p.w, c.a + c.b): n = max(n, big)
                    if ov(p.w, c.c):
                        if not (p.w == c.c and p.passes == c.passes): n = max(n, big - 2)
                    elif ov(p.w, c.w): n = max(n, big)
                elif c.kind in ('valu', 'vmem', 'ds'):
                    if ov(p.w, c.r + c.w): n = max(n, big)
                    if c.kind == 'valu' and ov(p.c, c.w): n = max(n, {4: 3, 8: 7}[p.passes])
            elif p.kind == 'salu':
                if 'm0' in p.w and c.kind == 'vmem' and getattr(c, 'lds', False): n = max(n, 1)
                if 'exec' in p.w and c.kind == 'mfma': n = max(n, 0)
            elif p.kind == 'vmem':
                if p.wide and ov(p.data, c.w): n = max(n, 2)
            need = max(need, n - age)
        return need
    def _emit(self, text, states=1):
        self.out.append('    ' + text)
    def wait(self, vm=None, lg=None):
        parts = []
        if vm is not None and vm < len(self.vq):
            assert vm <= 63
            parts.append(f'vmcnt({vm})'); self.vq = self.vq[len(self.vq) - vm:] if vm else []
        if lg is not None and (lg < len(self.lq) or (lg == 0 and self.smem)):
            if self.smem: lg = 0
            lg = min(lg, 15)
            parts.append(f'lgkmcnt({lg})'); self.lq = self.lq[len(self.lq) - lg:] if lg else []
            if lg == 0: self.smem = False; self.smem_w = set()
        if parts:
            self._emit('s_waitcnt ' + ' '.join(parts)); self._age(1); self.cost += 4
    def wait_tag(self, tag):
        idx = [k for k, e in enumerate(self.vq) if e['tag'] == tag]
        if idx: self.wait(vm=len(self.vq) - 1 - max(idx))
    def wait_ltag(self, tag):
        idx = [k for k, e in enumerate(self.lq) if e['tag'] == tag]
        if idx: self.wait(lg=len(self.lq) - 1 - max(idx))
    def assume_drained(self):
        self.vq = []; self.lq = []; self.smem = False; self.smem_w = set()
    def __call__(self, s, tag=None):
        for line in s.strip('\n').split('\n'):
            line = line.strip()
            if not line or line.startswith(';'): continue
            if line.endswith(':'):
                self.label(line[:-1]); continue
            self.one(line, tag)
    def one(self, text, tag=None):
        c = I(text)
        if c.op == 's_waitcnt':
            m = re.search(r'vmcnt\((\d+)\)', text); vm = int(m.group(1)) if m else None
            m = re.search(r'lgkmcnt\((\d+)\)', text); lg = int(m.group(1)) if m else None
            if vm is not None: self.vq = self.vq[max(0, len(self.vq) - vm):] if vm else []
            if lg is not None:
                self.lq = self.lq[max(0, len(self.lq) - lg):] if lg else []
                if lg == 0: self.smem = False; self.smem_w = set()
            self._emit(text); self._age(1); self.cost += 4
            return
        touched = set(c.r + c.w)
        vm = lg = None
        for k, e in enumerate(self.vq):
            if touched & set(e['w']): vm = len(self.vq) - 1 - k
        for k, e in enumerate(self.lq):
            if touched & set(e['w']): lg = len(self.lq) - 1 - k
        if touched & self.smem_w: lg = 0
        self.wait(vm, lg)
        n = self._need(c)
        if n > 0:
            self._emit(f's_nop {n-1}'); self._age(n); self.cost += 4 * n
        self._emit(text)
        st = 1
        if c.op == 's_nop': st = int(c.ops[0], 0) + 1
        self._age(st)
        self.hist.append((c, 0))
        if c.kind == 'vmem':
            self.vq.append(dict(w=c.w, tag=tag))
            assert len(self.vq) <= 63, 'too many vmem outstanding'
        elif c.kind == 'ds': self.lq.append(dict(w=c.w, tag=tag))
        elif c.kind == 'smem':
            self.smem = True; self.smem_w |= set(c.w)
        self.cost += {'mfma': 16 if getattr(c,'passes',0) == 4 else 32}.get(c.kind, 8 if c.op in TRANS else 4 * st + (1 if c.kind == 'valu' else 0))
    def skip_begin(self, branch):
        l = self.lab('skip')
        self.one(f'{branch} {l}')
        return (l, list(self.hist), list(self.vq), list(self.lq))
    def skip_end(self, h, drop=False):
        l, hist, vq, lq = h
        assert [id(e) for e in vq] == [id(e) for e in self.vq] or True
        self.label(l)
        seen = set(id(i) for i, a in hist)
        self.hist = hist + [(i, a) for (i, a) in self.hist if id(i) not in seen]
        new = [e for e in self.vq if all(e is not f for f in vq)]
        assert drop or not new, 'memory ops left in flight by a skipped block'
        self.vq = list(vq)
        newl = [e for e in self.lq if all(e is not f for f in lq)]
        assert not newl, 'lds ops left in flight by a skipped block'
        self.lq = list(lq)
    def text(self):
        return '\n'.join(self.out) + '\n'
```

```python
import sys, struct
from sa import Stream
KN = 'gated_mix__spectral_gfnet__dense_activation_mish__prompt_kernel'
MB = 1 << 20
FLAGB = 65536; FLAGC = 196608
NONCE, FLAGA, E1, E2, WB, WBX, W2P, ACT, STAMP, WSZ = 0, 131072, 1*MB, 4*MB, 7*MB, 10*MB, 11*MB, 13*MB, 19*MB, 20*MB
OOB = 0x40000000
XP = 1040
NSLOT, SLAB = 6, 12288
FA = 0; FB = FA + 8192; GW = FB + 8192; GL = GW + 1024; CNT = GL + 256
XT = CNT + 128; RING = XT + 64*XP; LDSZ = RING + NSLOT*SLAB
REG = 86*2048
PST = XT; RED = RING
NPL = 7; assert PST + 4*NPL*2048 <= RING
assert RED + 49152 <= LDSZ <= 163840
cGO, cF1, cF2, cF3, cACT, cGOB, cFA, cFC, cGOC = 72, 76, 80, 84, 88, 92, 96, 100, 104
ALL4 = 0x01010101
kS = 6
kP = 5
kI = 4
kX, kL, kK, kE = 0, 1, 2, 3
def f32(x): return '0x%08x' % struct.unpack('<I', struct.pack('<f', x))[0]
def vr(a, n): return f'v[{a}:{a+n-1}]' if n > 1 else f'v{a}'
def sr(a, n): return f's[{a}:{a+n-1}]'
sX, sWR, sWI, sW1, sB1, sW2, sGWp, sOUT, sWS = 4, 6, 8, 12, 14, 16, 18, 20, 22
sG0, sJ, sWV, sW = 24, 25, 26, 27
SX, SA, SB, SC, SD, SE = 28, 32, 36, 40, 44, 48
T0, T1, T2, T3 = 52, 53, 54, 55
sNON = 56
sST = 80
MF16 = 'v_mfma_f32_16x16x32_bf16'; MF32 = 'v_mfma_f32_32x32x16_bf16'

class Cfg:
    stamps = False; dbgst = False
    gst = ['start', 'X', 'Kend', 'mish', 'go', 'drain', 'goB', 'g2end', 'fbar', 'end']
    fst = ['start', 'X', 'fft1', 'flag', 'prepoll', 'go', 'in', 'e2st', 'e2ok', 'Fend']
    kA = 9
    tslab = 250
    NP, NQ = 15, 7
    prioG = 0; prioF = 2; prioM = 3; prioG2 = 0
    spin = 200000
    conFirst = True; kIat = 15; gateEarly = False; slpC0 = 0; slpC = 8; S1 = 32768; S2 = 16384; SW = 8192; plAt = 8; hold = True; holdAt = 2; ford = 'g1F245PI.'; FS = 64; stageAt = 'in'; abl = ''; pfl = 'sc1'; map84 = True; wEarly = True; pollB = 22; permEarly = False; pollAt = 1; m2early = False; n64pre = 2; slpA = 8
    clrF = True; p0 = 1; p1 = 4; np1 = 4

def srd(a, d, base, nbytes, off=None):
    if off is None:
        a(f's_mov_b32 s{d}, s{base}'); a(f's_mov_b32 s{d+1}, s{base+1}')
    else:
        a(f's_add_u32 s{d}, s{base}, {off}'); a(f's_addc_u32 s{d+1}, s{base+1}, 0')
    a(f's_mov_b32 s{d+2}, {nbytes}'); a(f's_mov_b32 s{d+3}, 0x20000')

def stamp(a, cfg, name, role=None):
    if not cfg.stamps: return
    L = cfg.gst if role == 'G' else cfg.fst
    if name in L:
        i = L.index(name)
        a(f's_memtime {sr(sST+2*i, 2)}' if name.startswith('c') and name[1:2] == '_' else f's_memrealtime {sr(sST+2*i, 2)}')
    if 'C' + name in L: a(f's_memtime {sr(sST+2*L.index("C" + name), 2)}')
def stampv(a, cfg, name, role, sreg):
    if not cfg.stamps: return
    L = cfg.gst if role == 'G' else cfg.fst
    if name in L: a(f's_mov_b32 s{sST+2*L.index(name)}, s{sreg}')

def stamps_out(a, cfg, n, srdws):
    if not cfg.stamps: return
    a('s_waitcnt lgkmcnt(0)')
    if cfg.dbgst:
        l = a.lab('nodbg')
        a(f's_cmp_lg_u32 s{sWV}, 0'); a(f's_cbranch_scc1 {l}')
        a('s_load_dwordx2 s[4:5], s[0:1], 72'); a('s_waitcnt lgkmcnt(0)')
        srd(a, SB, 4, 256)
        a('s_mov_b64 exec, 1'); a('v_mov_b32 v2, 0')
        a(f's_not_b32 s{T0}, s{sST}'); a(f'v_mov_b32 v3, s{T0}')
        a(f'buffer_atomic_umax v3, v2, {sr(SB,4)}, 0 offen')
        for i in range(n):
            a(f'v_mov_b32 v{4+i}, s{sST+2*i}')
            a(f'buffer_atomic_umax v{4+i}, v2, {sr(SB,4)}, 0 offen offset:{4+4*i}')
        a.label(l)
        return
    a(f's_lshl_b32 s{T0}, s2, 3'); a(f's_add_u32 s{T0}, s{T0}, s{sWV}'); a(f's_lshl_b32 s{T0}, s{T0}, 6'); a(f's_add_u32 s{T0}, s{T0}, {STAMP}')
    a('s_mov_b64 exec, 1'); a('v_mov_b32 v2, 0')
    for i in range(n):
        a(f'v_mov_b32 v3, s{sST+2*i}')
        a(f'buffer_store_dword v3, v2, {sr(srdws,4)}, s{T0} offen offset:{4*i}')
        a('s_nop 1')
    a('s_mov_b64 exec, -1')

def lds_spin(a, vaddr, off, target, vt, sleep=False):
    l = a.lab('spin')
    a.wait(lg=0)
    if sleep:
        l2 = a.lab('spin'); a(f's_branch {l2}'); a.label(l); a('s_sleep 1'); a.label(l2)
    else: a.label(l)
    a(f'ds_read_b32 v{vt}, v{vaddr} offset:{off}')
    a('s_waitcnt lgkmcnt(0)')
    a(f'v_readfirstlane_b32 s{T3}, v{vt}')
    a(f's_cmp_lt_u32 s{T3}, {target}')
    a(f's_cbranch_scc1 {l}')

def kf_spin(a, vaddr, idx, vt, sleep=False):
    l = a.lab('spin4')
    a.wait(lg=0)
    if sleep:
        l2 = a.lab('spin'); a(f's_branch {l2}'); a.label(l); a('s_sleep 1'); a.label(l2)
    else: a.label(l)
    a(f'ds_read_b32 v{vt}, v{vaddr} offset:{4*idx}')
    a('s_waitcnt lgkmcnt(0)')
    a(f'v_cmp_ne_u32 vcc, {ALL4}, v{vt}')
    a(f's_cbranch_vccnz {l}')

def lds_arrive(a, vaddr, off, vone):
    a('s_mov_b64 exec, 1')
    a(f'ds_add_u32 v{vaddr}, v{vone} offset:{off}')
    a('s_mov_b64 exec, -1')

def prologue(a, cfg):
    a('s_cmp_ge_u32 s2, 256'); a('s_cbranch_scc1 L_END')
    stamp(a, cfg, 'start', 'G'); stamp(a, cfg, 'c_start', 'G')
    a('s_load_dwordx16 s[4:19], s[0:1], 0')
    a('s_load_dwordx2 s[20:21], s[0:1], 64')
    a('s_load_dwordx2 s[22:23], s[0:1], 80')
    a('v_lshrrev_b32 v2, 6, v0'); a('v_and_b32 v1, 63, v0')
    a(f'v_readfirstlane_b32 s{sWV}, v2')
    if cfg.map84:
        a(f's_and_b32 s3, s2, 6'); a(f's_lshl_b32 s{sG0}, s3, 2'); a('s_lshr_b32 s3, s2, 5'); a(f's_add_u32 s{sG0}, s{sG0}, s3')
        a(f's_bfe_u32 s{sJ}, s2, 0x20003'); a('s_and_b32 s3, s2, 1'); a('s_lshl_b32 s3, s3, 2'); a(f's_add_u32 s{sJ}, s{sJ}, s3')
    else:
        a(f's_and_b32 s3, s2, 7'); a(f's_lshl_b32 s{sG0}, s3, 2'); a('s_lshr_b32 s3, s2, 6'); a(f's_add_u32 s{sG0}, s{sG0}, s3')
        a(f's_lshr_b32 s{sJ}, s2, 3'); a(f's_and_b32 s{sJ}, s{sJ}, 7')
    a('v_lshlrev_b32 v12, 4, v1')
    a(f's_and_b32 s{sW}, s{sWV}, 3')
    a(f'v_mov_b32 v4, {CNT}'); a('v_mov_b32 v5, 0'); a('v_and_b32 v3, 31, v1'); a('v_lshl_add_u32 v3, v3, 2, v4')
    a('ds_write_b32 v3, v5')
    a('s_waitcnt lgkmcnt(0)'); a('s_barrier')
    a(f's_cmp_ge_u32 s{sWV}, 4'); a('s_cbranch_scc1 L_F')

def nonce(a):
    a(f's_mul_i32 s{sNON}, s{sNON}, 0x9e3779b1'); a(f's_add_u32 s{sNON}, s{sNON}, 0x7f4a7c15')
    a(f's_mul_i32 s{sNON+1}, s{sNON+1}, 0x85ebca6b'); a(f's_add_u32 s{sNON+1}, s{sNON+1}, 0xc2b2ae35')

def gen_G(a, cfg):
    vCN, vD, vL16 = 4, 5, 12
    vP, vQ0, vQ1, vPW, vSV = 13, 14, 15, 8, 9
    vT, vX0, vX1 = 10, 11, 2
    PR, ACC2, QR = 16, 136, 200
    ACC1, ACCX, FR, TM = 136, 184, 16, 232
    BI = 56
    RW = NSLOT*3072
    sU0, sNU, sRH, sFH, sSL = 58, 59, 60, 61, 62
    sAO = 63
    sK = 66
    if cfg.prioG: a(f's_setprio {cfg.prioG}')
    a(f's_lshl_b32 s{T0}, s{sW}, 9'); a(f's_add_u32 s{T0}, s{T0}, s{sG0}'); a(f's_lshl_b32 s{T0}, s{T0}, 10')
    a(f's_mul_i32 s{T1}, s{sW}, {16*XP}')
    srd(a, SX, sX, 2*MB)
    a(f's_load_dwordx2 {sr(sNON,2)}, {sr(sWS,2)}, {NONCE}')
    a(f'v_add_u32 v{vPW}, s{sW}, v{vCN}'); a(f'v_mov_b32 v{vSV}, 1')
    def post(i): a(f'ds_write_b8 v{vPW}, v{vSV} offset:{4*i}')
    for i in range(16):
        a(f's_add_u32 m0, s{T1}, {XT + i*XP}')
        if i: a(f's_add_u32 s{T0}, s{T0}, 32768')
        a(f'buffer_load_dwordx4 v12, {sr(SX,4)}, s{T0} offen lds', tag='x')
        if i == cfg.kIat: post(kI)
    srd(a, SA, sW1, 512*2752)
    a(f's_min_u32 s{sU0}, s{sJ}, 3'); a(f's_mul_i32 s{T0}, s{sJ}, 5'); a(f's_add_u32 s{sU0}, s{sU0}, s{T0}')
    a(f's_cmp_lt_u32 s{sJ}, 3'); a(f's_cselect_b32 s{sNU}, 6, 5')
    a(f's_and_b32 s{sRH}, s{sW}, 1'); a(f's_lshr_b32 s{sFH}, s{sW}, 1')
    a(f's_mul_i32 s{T2}, s{sFH}, 3')
    a(f's_add_u32 s{T0}, s{sU0}, s{T2}'); a(f's_lshl_b32 s{T0}, s{T0}, 6'); a(f's_sub_u32 s{T3}, s{sNU}, s{T2}')
    t = TM
    for u in range(3):
        a(f'v_add_u32 v{t}, {64*u}, v1')
        a(f'v_mul_u32_u24 v{t+1}, 5462, v{t}'); a(f'v_lshrrev_b32 v{t+1}, 16, v{t+1}')
        a(f'v_mul_u32_u24 v{t+2}, 12, v{t+1}'); a(f'v_sub_u32 v{t}, v{t}, v{t+2}')
        a(f'v_lshrrev_b32 v{t+2}, 2, v{t}'); a(f'v_cmp_gt_u32 vcc, s{T3}, v{t+2}')
        a(f'v_mul_u32_u24 v{t+1}, 2752, v{t+1}'); a(f'v_lshl_add_u32 v{t}, v{t}, 4, v{t+1}'); a(f'v_add_u32 v{t}, s{T0}, v{t}')
        a(f'v_mov_b32 v{t+1}, {OOB}')
        if u: a(f'v_subrev_u32 v{t}, {1024*u}, v{t}')
        a(f'v_cndmask_b32 v{vD+u}, v{t+1}, v{t}, vcc')
    a(f's_mul_i32 s{sSL}, s{sRH}, {256*2752}')
    a(f's_mul_i32 s{T1}, s{sW}, {RW}')
    def dma_m0(s):
        if s <= 15: a(f's_add_u32 m0, s{T1}, {RING + (s % NSLOT)*3072}')
    def dma_so(s):
        if 0 < s <= 15: a(f's_add_u32 s{sSL}, s{sSL}, {16*2752}')
    def dma1(s, u):
        if s <= 15: a(f'buffer_load_dwordx4 v{vD+u}, {sr(SA,4)}, s{sSL} offen offset:{1024*u} lds', tag=f'w{s}')
    def dma(s):
        dma_m0(s); dma_so(s)
        for u in range(3): dma1(s, u)
    dma(0)
    srd(a, SB, sB1, 2752)
    a(f'v_and_b32 v{t}, 31, v1'); a(f'v_lshlrev_b32 v{t}, 1, v{t}'); a(f'v_cmp_gt_u32 vcc, 32, v1')
    a(f'v_mov_b32 v{t+1}, {OOB}'); a(f'v_cndmask_b32 v{t}, v{t+1}, v{t}, vcc')
    for T in range(3):
        a(f's_add_u32 s{T3}, s{T2}, {T}'); a(f's_cmp_lt_u32 s{T3}, s{sNU}')
        a(f's_cselect_b32 s{T0}, 0, {OOB}')
        a(f's_add_u32 s{T3}, s{T3}, s{sU0}')
        a(f's_lshl_b32 s{sAO+T}, s{T3}, 12'); a(f's_add_u32 s{sAO+T}, s{sAO+T}, s{T0}')
        a(f's_lshl_b32 s{T3}, s{T3}, 6'); a(f's_add_u32 s{T3}, s{T3}, s{T0}')
        a(f'buffer_load_ushort v{BI+4*T}, v{t}, {sr(SB,4)}, s{T3} offen')
    for s in range(1, cfg.p0): dma(s)
    a(f's_mul_i32 s{T0}, s{sG0}, {REG}'); a(f's_add_u32 s{T0}, s{T0}, {ACT}')
    srd(a, SC, sWS, REG, f's{T0}')
    a(f's_mul_i32 s{T0}, s{sJ}, {REG}'); a(f's_add_u32 s{T0}, s{T0}, {W2P}')
    srd(a, SD, sWS, REG, f's{T0}')
    srd(a, SE, sOUT, 2*MB)
    a(f's_lshl_b32 s{T0}, s{sRH}, 10'); a(f'v_add_u32 v{vQ0}, s{T0}, v{vL16}')
    a(f'v_lshrrev_b32 v{t}, 5, v1'); a(f'v_lshlrev_b32 v{t}, 3, v{t}'); a(f'v_bfe_u32 v{t+1}, v1, 2, 2'); a(f'v_add_u32 v{t}, v{t}, v{t+1}')
    a(f'v_mul_u32_u24 v{t}, 192, v{t}')
    a(f'v_bfe_u32 v{t+2}, v1, 4, 1'); a(f'v_lshl_add_u32 v{t}, v{t+2}, 5, v{t}')
    a(f'v_and_b32 v{t+2}, 3, v1'); a(f'v_lshl_add_u32 v{t}, v{t+2}, 3, v{t}')
    a(f's_add_u32 s{T0}, s{T1}, {RING}'); a(f'v_add_u32 v{vT}, s{T0}, v{t}')
    a(f'v_add_u32 v{vP}, s{T0}, v{vL16}')
    a(f's_xor_b32 s{T0}, s{sW}, 1'); a(f's_mul_i32 s{T0}, s{T0}, {RW}'); a(f's_add_u32 s{T0}, s{T0}, {RING}'); a(f'v_add_u32 v{vQ1}, s{T0}, v{vL16}')
    a(f'v_and_b32 v{t}, 31, v1'); a(f'v_mul_u32_u24 v{t}, {XP}, v{t}'); a(f'v_lshrrev_b32 v{t+1}, 5, v1'); a(f'v_lshl_add_u32 v{t}, v{t+1}, 4, v{t}')
    a(f's_mul_i32 s{T0}, s{sRH}, {32*XP + 512}'); a(f'v_add_u32 v{vX0}, s{T0}, v{t}')
    a(f's_mul_i32 s{T0}, s{sRH}, {512 - 32*XP}'); a(f's_add_u32 s{T0}, s{T0}, {32*XP}'); a(f'v_add_u32 v{vX1}, s{T0}, v{t}')
    for T in range(3):
        for k in range(1, 4): a(f'v_mov_b32 v{BI+4*T+k}, 0')
    a(f'v_cmp_gt_u32 vcc, 32, v1'); a(f'v_mov_b32 v{t}, 0x3f80'); a(f'v_mov_b32 v{BI+13}, 0'); a(f'v_mov_b32 v{BI+14}, 0'); a(f'v_mov_b32 v{BI+15}, 0')
    a(f'v_cndmask_b32 v{BI+12}, 0, v{t}, vcc')
    a(f's_mov_b32 s{sK}, {f32(-1.4426950408889634)}'); a(f's_mov_b32 s{sK+1}, {f32(-1.4426950408889634)}')
    a(f's_mov_b32 s{sK+2}, 0.5'); a(f's_mov_b32 s{sK+3}, 0.5')
    nonce(a)
    stamp(a, cfg, 'iss', 'G')
    a.wait_tag('x'); post(kX)
    stamp(a, cfg, 'X', 'G')
    for s in range(cfg.p0, cfg.p1): dma(s)
    for T in range(3): a(f'{MF32} {vr(ACC1+16*T,16)}, {vr(BI+4*T,4)}, {vr(BI+12,4)}, 0')
    def reads(s):
        if s > 15: return [None]*8
        f = FR + 20*(s & 1)
        L = [f'ds_read_b128 {vr(f,4)}, v{vX0} offset:{XT + s*32}', f'ds_read_b128 {vr(f+4,4)}, v{vX1} offset:{XT + s*32}']
        for T in range(3):
            for hf in range(2):
                L.append(f'ds_read_b64_tr_b16 {vr(f+8+4*T+2*hf,2)}, v{vT} offset:{(s % NSLOT)*3072 + 768*hf + 64*T}')
        return L
    def rd(s, i, j):
        for x in reads(s)[i:j]:
            if x: a(x, tag=f'r{s}')
    def mf(s, T, rt):
        f = FR + 20*(s & 1); d = (ACCX if rt else ACC1) + 16*T
        a(f'{MF32} {vr(d,16)}, {vr(f+8+4*T,4)}, {vr(f+4*rt,4)}, {vr(d,16) if (s or not rt) else 0}')
    kf_spin(a, vCN, kX, TM)
    a.wait_tag('w0')
    rd(0, 0, 8)
    n = NSLOT - 1
    if not cfg.hold:
        for s in range(cfg.p1, n): dma(s)
    nxt = max(cfg.p1, n) if not cfg.hold else cfg.p1
    for s in range(16):
        stamp(a, cfg, f'k{s}', 'G')
        if cfg.hold and s == cfg.holdAt:
            kf_spin(a, vCN, kS, TM, sleep=True)
            stamp(a, cfg, 'kS', 'G')
            while nxt < s + n: dma(nxt); nxt += 1
        ld = nxt if (nxt == s + n and (not cfg.hold or s >= cfg.holdAt)) else 99
        a.wait_ltag(f'r{s}')
        mf(s, 0, 0)
        a.wait_tag(f'w{s+1}')
        if s == 14: post(kL)
        rd(s+1, 0, 2)
        mf(s, 0, 1); rd(s+1, 2, 4); dma_m0(ld)
        mf(s, 1, 0); rd(s+1, 4, 6); dma_so(ld)
        mf(s, 1, 1); rd(s+1, 6, 8); dma1(ld, 0)
        mf(s, 2, 0); dma1(ld, 1)
        mf(s, 2, 1); dma1(ld, 2)
        if ld != 99: nxt += 1
    assert nxt >= 16
    stamp(a, cfg, 'Kl', 'G')
    if cfg.prioM != cfg.prioG: a(f's_setprio {cfg.prioM}')
    for q in range(12): a(f'ds_write_b128 v{vP}, {vr(ACCX+4*q,4)} offset:{1024*q}')
    a.wait(lg=0); post(kK)
    kf_spin(a, vCN, kK, TM)
    for q in range(12): a(f'ds_read_b128 {vr(ACCX+4*q,4)}, v{vQ1} offset:{1024*q}')
    stamp(a, cfg, 'Kend', 'G')
    a(f'v_and_b32 v{t+1}, 31, v1'); a(f's_lshl_b32 s{T0}, s{sFH}, 4'); a(f'v_xor_b32 v{t+1}, s{T0}, v{t+1}')
    a(f'v_lshrrev_b32 v{t+2}, 5, v1'); a(f'v_lshlrev_b32 v{t+2}, 9, v{t+2}'); a(f'v_lshl_add_u32 v{vP}, v{t+1}, 4, v{t+2}')
    a(f's_lshl_b32 s{T0}, s{sW}, 11'); a(f'v_add_u32 v{vP}, s{T0}, v{vP}')
    a(f's_mul_i32 s{T1}, s{sW}, {NPL*2048}')
    pend = []
    for i in range(cfg.NP):
        r = PR + 8*i
        pend.append([f's_mov_b32 s{sSL}, {i*8192}', f'buffer_load_dwordx4 {vr(r,4)}, v{vP}, {sr(SD,4)}, s{sSL} offen {cfg.pfl}'])
        pend.append([f'buffer_load_dwordx4 {vr(r+4,4)}, v{vP}, {sr(SD,4)}, s{sSL} offen offset:1024 {cfg.pfl}'])
    def popP(n):
        for _ in range(n):
            if pend:
                for l in pend.pop(0): a(l, tag='p')
    for T in range(3):
        for hb in range(2):
            h = ACC1 + 16*T + 8*hb
            e, u, o = TM, TM + 8, TM + 16 + 4*((2*T+hb) % 2)
            for k in range(4): a(f'v_pk_add_f32 {vr(h+2*k,2)}, {vr(h+2*k,2)}, {vr(h+48+2*k,2)}')
            for k in range(4): a(f'v_pk_mul_f32 {vr(e+2*k,2)}, {vr(h+2*k,2)}, {sr(sK,2)}')
            for k in range(8): a(f'v_exp_f32 v{e+k}, v{e+k}')
            for k in range(4): a(f'v_pk_add_f32 {vr(u+2*k,2)}, {vr(e+2*k,2)}, {sr(sK+2,2)}')
            for k in range(4): a(f'v_pk_fma_f32 {vr(e+2*k,2)}, {vr(e+2*k,2)}, {vr(e+2*k,2)}, {vr(u+2*k,2)}')
            for k in range(8): a(f'v_rcp_f32 v{e+k}, v{e+k}')
            for k in range(4): a(f'v_pk_mul_f32 {vr(e+2*k,2)}, {vr(e+2*k,2)}, {vr(u+2*k,2)} clamp')
            for k in range(4): a(f'v_pk_mul_f32 {vr(e+2*k,2)}, {vr(e+2*k,2)}, {vr(h+2*k,2)}')
            for k in range(4): a(f'v_cvt_pk_bf16_f32 v{o+k}, v{e+2*k}, v{e+2*k+1}')
            a(f'buffer_store_dwordx4 {vr(o,4)}, v{vQ0}, {sr(SC,4)}, s{sAO+T} offen offset:{2048*hb} sc1', tag='act')
    stamp(a, cfg, 'mish', 'G')
    if cfg.prioM != cfg.prioG2: a(f's_setprio {cfg.prioG2}')
    lds_spin(a, vCN, cGO, 4, TM, sleep=True); stamp(a, cfg, 'go', 'G')
    popP(cfg.np1)
    srd(a, SA, sWS, WSZ)
    a(f'v_mov_b32 v{TM+8}, 1'); a(f'v_mov_b32 v{TM+10}, s{sNON}'); a(f'v_mov_b32 v{TM+11}, s{sNON+1}')
    a(f'v_and_b32 v{TM+12}, 7, v1'); a(f'v_lshlrev_b32 v{TM+12}, 7, v{TM+12}'); a(f'v_mov_b32 v{TM+13}, 0')
    a(f's_lshl_b32 s{T0}, s{sG0}, 10'); a(f's_add_u32 s{T0}, s{T0}, {FLAGB}'); a(f's_lshl_b32 s{T2}, s{sJ}, 7'); a(f's_add_u32 s{T2}, s{T2}, s{T0}')
    a.wait_tag('act')
    stamp(a, cfg, 'drain', 'G')
    a('s_mov_b64 exec, 1'); a(f'ds_add_rtn_u32 v{TM+9}, v{vCN}, v{TM+8} offset:{cACT}'); a('s_mov_b64 exec, -1')
    a(f'v_readfirstlane_b32 s{T3}, v{TM+9}')
    lnp = a.lab('nopollB'); lpb = a.lab('pollB'); lgb = a.lab('goB')
    a(f's_cmp_eq_u32 s{T3}, 3'); a(f's_cselect_b32 s{T2}, s{T2}, {OOB}'); a(f's_mov_b32 s{sNU}, s{T3}')
    a('s_mov_b64 exec, 1'); a(f'buffer_store_dwordx2 {vr(TM+10,2)}, v{TM+13}, {sr(SA,4)}, s{T2} offen sc1'); a('s_mov_b64 exec, -1')
    done = cfg.np1
    a(f's_cmp_eq_u32 s{sNU}, 3'); a(f's_cselect_b32 s{T3}, s{T0}, {OOB}')
    for k in range(cfg.np1, 2*cfg.NP):
        if k == cfg.pollB: a(f'buffer_load_dwordx2 {vr(TM,2)}, v{TM+12}, {sr(SA,4)}, s{sNU+11} offen sc1', tag='pb')
        if k == cfg.np1: a(f's_mov_b32 s{sNU+11}, s{T3}')
        popP(1)
    stamp(a, cfg, 'piss', 'G')
    a(f's_mov_b32 s{sU0}, 0')
    a(f's_cmp_lg_u32 s{sNU}, 3'); a(f's_cbranch_scc1 {lnp}')
    vq = list(a.vq)
    a.wait_tag('pb')
    a.label(lpb)
    a(f'v_xor_b32 v{TM}, s{sNON}, v{TM}'); a(f'v_xor_b32 v{TM+1}, s{sNON+1}, v{TM+1}'); a(f'v_or_b32 v{TM}, v{TM}, v{TM+1}')
    a(f'v_cmp_ne_u32 vcc, 0, v{TM}'); a(f's_cbranch_vccz {lgb}')
    a(f'buffer_load_dwordx2 {vr(TM,2)}, v{TM+12}, {sr(SA,4)}, s{T0} offen sc1')
    a('s_waitcnt vmcnt(0)')
    a(f's_add_u32 s{sU0}, s{sU0}, 1'); a(f's_cmp_lt_u32 s{sU0}, {cfg.spin}'); a(f's_cbranch_scc1 {lpb}')
    a.label(lgb)
    lds_arrive(a, vCN, cGOB, TM+8)
    a.label(lnp)
    a.vq = vq
    a(f's_lshl_b32 s{T0}, s{sW}, 11'); a(f's_lshl_b32 s{T2}, s{sRH}, 10'); a(f's_add_u32 s{T0}, s{T0}, s{T2}')
    a(f'v_add_u32 v{vQ0}, s{T0}, v{vL16}'); a(f'v_xor_b32 v{vQ1}, 1024, v{vQ0}')
    a(f'v_add_u32 v{vP}, s{T1}, v{vL16}')
    lds_spin(a, vCN, cGOB, 1, TM + 2, sleep=True)
    stamp(a, cfg, 'goB', 'G')
    def loadP(i):
        r = PR + 8*(i % cfg.NP)
        for hb in range(2): a(f'ds_read_b128 {vr(r+4*hb,4)}, v{vP} offset:{PST + (i-cfg.NP)*2048 + 1024*hb}')
    def loadQ(i, hb):
        k = i % cfg.NQ; r = QR + 8*k
        if hb == 0: a(f's_mov_b32 s{sSL}, {i*8192}')
        a(f'buffer_load_dwordx4 {vr(r+4*hb,4)}, v{vQ0+hb}, {sr(SC,4)}, s{sSL} offen sc1')
    for i in range(cfg.NQ - 1):
        loadQ(i, 0); loadQ(i, 1)
    NS = 22
    for i in range(NS):
        p = PR + 8*(i % cfg.NP); q = QR + 8*(i % cfg.NQ)
        stamp(a, cfg, f'g{i}', 'G')
        for mt in range(2):
            for nt in range(2):
                d = ACC2 + 32*mt + 16*nt
                a(f'{MF32} {vr(d,16)}, {vr(p+4*mt,4)}, {vr(q+4*nt,4)}, {vr(d,16) if i else 0}')
                if nt == 0 and i + cfg.NQ - 1 < NS: loadQ(i + cfg.NQ - 1, mt)
        if i == cfg.plAt: kf_spin(a, vCN, kP, 2)
        if cfg.plAt <= i < cfg.plAt + NPL: loadP(cfg.NP + i - cfg.plAt)
    stamp(a, cfg, 'g2end', 'G')
    def quad(k, mt, rr): return ACC2 + 32*mt + 16*(k & 1) + 4*(2*(k >> 1) + rr)
    for k in range(1, 4):
        a(f's_xor_b32 s{T0}, s{sW}, {k}'); a(f's_mul_i32 s{T0}, s{T0}, 12288'); a(f's_add_u32 s{T0}, s{T0}, {RED}'); a(f'v_add_u32 v{2+k}, s{T0}, v{vL16}')
    for k in range(1, 4):
        for mt in range(2):
            for rr in range(2):
                a(f'ds_write_b128 v{2+k}, {vr(quad(k,mt,rr),4)} offset:{(k-1)*4096 + (2*mt+rr)*1024}')
    vRA, vAA, vGA, vO = 6, 7, 8, 9
    a(f's_mul_i32 s{T0}, s{sW}, 12288'); a(f's_add_u32 s{T0}, s{T0}, {RED}'); a(f'v_add_u32 v{vRA}, s{T0}, v{vL16}')
    a(f'v_and_b32 v10, 31, v1'); a(f's_and_b32 s{T0}, s{sW}, 1'); a(f's_lshl_b32 s{T0}, s{T0}, 5'); a(f'v_add_u32 v10, s{T0}, v10')
    a(f'v_lshrrev_b32 v11, 5, v1'); a(f's_lshr_b32 s{T0}, s{sW}, 1'); a(f's_lshl_b32 s{T0}, s{T0}, 2'); a(f'v_add_u32 v11, s{T0}, v11')
    a(f'v_lshlrev_b32 v{vGA}, 2, v10'); a(f'v_add_u32 v{vGA}, {GL}, v{vGA}')
    a(f'v_bfe_u32 v13, v10, 1, 3'); a('v_xor_b32 v13, v13, v11'); a(f'v_lshlrev_b32 v{vAA}, 7, v10'); a(f'v_lshl_add_u32 v{vAA}, v13, 4, v{vAA}'); a(f'v_add_u32 v{vAA}, {FB}, v{vAA}')
    a(f'v_xor_b32 v13, 32, v{vAA}')
    a(f'v_lshlrev_b32 v{vO}, 15, v10'); a(f'v_lshl_add_u32 v{vO}, v11, 7, v{vO}')
    a(f's_lshl_b32 s{T1}, s{sG0}, 10'); a(f's_lshl_b32 s{T0}, s{sJ}, 4'); a(f's_add_u32 s{T1}, s{T1}, s{T0}')
    a.wait(lg=0); a('s_barrier')
    stamp(a, cfg, 'fbar', 'G')
    RD = PR
    for k in range(1, 4):
        for mq in range(4): a(f'ds_read_b128 {vr(RD+16*(k-1)+4*mq,4)}, v{vRA} offset:{(k-1)*4096 + mq*1024}')
    AA = PR + 48
    a(f'ds_read_b128 {vr(AA,4)}, v{vAA}'); a(f'ds_read_b128 {vr(AA+4,4)}, v13'); a(f'ds_read_b32 v14, v{vGA}')
    for k in range(1, 4):
        for mt in range(2):
            for rr in range(2):
                for pp in range(2):
                    d = quad(0, mt, rr) + 2*pp; s_ = RD + 16*(k-1) + 4*(2*mt+rr) + 2*pp
                    a(f'v_pk_add_f32 {vr(d,2)}, {vr(d,2)}, {vr(s_,2)}')
    U = PR + 56
    for rr in range(2):
        for k in range(4):
            lo, hi = U + 2*k, U + 2*k + 1
            b0, b1 = quad(0, 0, rr) + k, quad(0, 1, rr) + k
            a(f'v_lshlrev_b32 v{lo}, 16, v{AA+4*rr+k}'); a(f'v_and_b32 v{hi}, 0xffff0000, v{AA+4*rr+k}')
            a(f'v_sub_f32 v{lo}, v{lo}, v{b0}'); a(f'v_sub_f32 v{hi}, v{hi}, v{b1}')
            a(f'v_fmac_f32 v{b0}, v14, v{lo}'); a(f'v_fmac_f32 v{b1}, v14, v{hi}')
        for k in range(4): a(f'v_cvt_pk_bf16_f32 v{U+8+4*rr+k}, v{quad(0,0,rr)+k}, v{quad(0,1,rr)+k}')
        a(f'buffer_store_dwordx4 {vr(U+8+4*rr,4)}, v{vO}, {sr(SE,4)}, s{T1} offen offset:{256*rr}')
    stamp(a, cfg, 'end', 'G')
    if cfg.stamps and 'end2' in cfg.gst:
        a('s_waitcnt vmcnt(0)'); stamp(a, cfg, 'end2', 'G')
    if cfg.stamps:
        stamp(a, cfg, 'c_end', 'G'); stampv(a, cfg, 'retry', 'G', sU0); srd(a, SA, sWS, WSZ); stamps_out(a, cfg, 10, SA)
    a('s_endpgm')

def cs_pairs(a, base, step, mults, tmp, outs):
    for g in range(len(mults)//4):
        an, c, s = tmp, tmp + 4, tmp + 8
        for k in range(4):
            m = mults[4*g+k]
            if m: a(f'v_fmamk_f32 v{an+k}, v{step}, {f32(float(m))}, v{base}')
        src = lambda k: an + k if mults[4*g+k] else base
        for k in range(4): a(f'v_cos_f32 v{c+k}, v{src(k)}')
        for k in range(4): a(f'v_sin_f32 v{s+k}, v{src(k)}')
        L = [(kind, dst, p) for p in range(2) for kind, dst in outs(2*g+p)]
        L.sort(key=lambda x: x[0] != 'c')
        for kind, dst, p in L:
            if kind == 'c': a(f'v_cvt_pk_bf16_f32 v{dst}, v{c+2*p}, v{c+2*p+1}')
            elif kind == 's': a(f'v_cvt_pk_bf16_f32 v{dst}, v{s+2*p}, v{s+2*p+1}')
            else: a(f'v_cvt_pk_bf16_f32 v{dst}, -v{s+2*p}, -v{s+2*p+1}')

def gen_F(a, cfg):
    a0 = a
    vN, vQ, vL16, vCN, vONE = 2, 3, 12, 4, 5
    vE2, vMA, vMB, vNf, vQf, vN4 = 6, 7, 8, 9, 10, 15
    M1, M2, M4, M5, N8, N64, WF, IN, WK, PK = 16, 48, 72, 96, 128, 152, 184, 200, 232, 248
    sB, sK1, sROT, sPAIR = 58, 59, 60, 61
    mK0, mK5, mK04 = 62, 64, 66
    sWD = 68; sTK = 69
    sE2, sE1, sIH, sKH = 70, 72, 74, 75
    a0.label('L_F')
    if cfg.prioF and not cfg.conFirst: a(f's_setprio {cfg.prioF}')
    t = WK
    a(f'v_and_b32 v{vN}, 15, v1'); a(f'v_lshrrev_b32 v{vQ}, 4, v1')
    L2 = M1
    LW = M4
    LM = M4 + 16
    vSG, vWD, vMD, vBL, vBU = M5, M5 + 1, M5 + 2, M5 + 3, M5 + 4
    mZ, mP = 76, 78
    vK, vC, vK1 = t+2, t+3, t+4
    def wperm_loads(a):
        a(f's_cmp_eq_u32 s{sG0}, 0'); a(f's_cselect_b64 {sr(mZ,2)}, -1, 0')
        a(f's_lshl_b32 s{T0}, s{sJ}, 8'); a(f's_lshl_b32 s{T2}, s{sW}, 6')
        for up in range(2):
            if up: a(f'v_sub_u32 v{vC}, 63, v1')
            a(f'v_and_b32 v{vK}, 7, v{vC if up else 1}'); a(f'v_add_u32 v{vC}, s{T2}, v{vC if up else 1}')
            a(f'v_cmp_lt_u32 vcc, 4, v{vK}'); a(f's_and_b64 vcc, vcc, {sr(mZ,2)}')
            a(f'v_mov_b32 v{t+6}, 32'); a(f'v_mov_b32 v{vK1}, s{sG0}'); a(f'v_cndmask_b32 v{vK1}, v{vK1}, v{t+6}, vcc')
            a(f'v_add_u32 v{vK1}, s{T0}, v{vK1}')
            if not up:
                a(f'v_mul_u32_u24 v{t+6}, 514, v{vK1}'); a(f'v_lshl_add_u32 v{t+6}, v{vC}, 1, v{t+6}')
                for r in range(4):
                    a(f's_mov_b32 s{T1}, {r*64*514}')
                    a(f'buffer_load_ushort v{LW+r}, v{t+6}, {sr(SC,4)}, s{T1} offen')
                    a(f'buffer_load_ushort v{LW+4+r}, v{t+6}, {sr(SD,4)}, s{T1} offen')
        a(f'v_and_b32 v{t+7}, 3, v{vK}'); a(f'v_cmp_eq_u32 vcc, 0, v{t+7}'); a(f's_and_b64 {sr(mP,2)}, vcc, {sr(mZ,2)}')
        a(f'v_sub_u32 v{t+7}, 2048, v{vK1}'); a(f'v_add_u32 v{t+8}, 32, v{vK1}'); a(f'v_cndmask_b32 v{t+7}, v{t+7}, v{t+8}, {sr(mP,2)}')
        a(f'v_mov_b32 v{t+8}, -64'); a(f'v_mov_b32 v{t+9}, 64'); a(f'v_cndmask_b32 v{t+8}, v{t+8}, v{t+9}, {sr(mP,2)}')
        a(f'v_sub_u32 v{t+9}, 256, v{vC}'); a(f'v_cndmask_b32 v{t+9}, v{t+9}, v{vC}, {sr(mP,2)}'); a(f'v_lshlrev_b32 v{t+9}, 1, v{t+9}')
        a(f'v_mov_b32 v{vSG}, 0x80000000'); a(f'v_cndmask_b32 v{vSG}, v{vSG}, 0, {sr(mP,2)}')
        for r in range(4):
            a(f'v_and_b32 v{t+10+r}, 2047, v{t+7}'); a(f'v_mul_u32_u24 v{t+10+r}, 514, v{t+10+r}'); a(f'v_add_u32 v{t+10+r}, v{t+10+r}, v{t+9}')
            if r < 3: a(f'v_add_u32 v{t+7}, v{t+7}, v{t+8}')
            a(f'buffer_load_ushort v{LW+8+r}, v{t+10+r}, {sr(SC,4)}, 0 offen')
            a(f'buffer_load_ushort v{LW+12+r}, v{t+10+r}, {sr(SD,4)}, 0 offen')
        a(f'v_lshrrev_b32 v{t}, 2, v1'); a(f'v_and_b32 v{t+1}, 3, v1')
        a(f'v_and_b32 v{t+2}, 1, v{t}'); a(f'v_lshrrev_b32 v{t+3}, 1, v{t}')
        a(f'v_lshlrev_b32 v{t+4}, 5, v{t+2}'); a(f'v_mov_b32 v{t+5}, s{sG0}'); a(f'v_cndmask_b32 v{t+4}, v{t+5}, v{t+4}, {sr(mZ,2)}')
        a(f'v_cndmask_b32 v{t+5}, v{t+2}, v{t+3}, {sr(mZ,2)}'); a(f'v_lshlrev_b32 v{t+5}, 9, v{t+5}')
        a(f'v_lshl_add_u32 v{t+4}, v{t+1}, 6, v{t+4}'); a(f'v_add_u32 v{t+4}, s{T0}, v{t+4}')
        a(f'v_sub_u32 v{t+6}, 2048, v{t+4}'); a(f'v_and_b32 v{t+6}, 2047, v{t+6}')
        a(f'v_mul_u32_u24 v{t+4}, 514, v{t+4}'); a(f'v_add_u32 v{t+4}, v{t+4}, v{t+5}')
        a(f'v_mul_u32_u24 v{t+6}, 514, v{t+6}'); a(f'v_add_u32 v{t+6}, v{t+6}, v{t+5}')
        a(f's_cmp_eq_u32 s{sG0}, 0'); a(f's_cselect_b32 s{T1}, 16, 8'); a(f's_cmp_eq_u32 s{sW}, 3'); a(f's_cselect_b32 s{T1}, s{T1}, 0')
        a(f'v_cmp_gt_u32 {sr(mP,2)}, s{T1}, v1'); a(f'v_mov_b32 v{t+7}, {OOB}')
        a(f'v_cndmask_b32 v{t+4}, v{t+7}, v{t+4}, {sr(mP,2)}'); a(f'v_cndmask_b32 v{t+6}, v{t+7}, v{t+6}, {sr(mP,2)}')
        a(f'buffer_load_ushort v{LM}, v{t+4}, {sr(SC,4)}, 0 offen'); a(f'buffer_load_ushort v{LM+1}, v{t+4}, {sr(SD,4)}, 0 offen')
        a(f'buffer_load_ushort v{LM+2}, v{t+6}, {sr(SC,4)}, 0 offen'); a(f'buffer_load_ushort v{LM+3}, v{t+6}, {sr(SD,4)}, 0 offen')
        a(f's_mul_i32 s{T0}, s{sG0}, {8*cfg.SW}'); a(f's_lshl_b32 s{T1}, s{sJ}, 10'); a(f's_add_u32 s{sWD}, s{T0}, s{T1}'); a(f's_add_u32 s{sWD}, s{sWD}, {WB}')
        a(f'v_lshlrev_b32 v{t+4}, 9, v{t+2}'); a(f'v_add_u32 v{t+4}, s{sWD}, v{t+4}')
        a(f's_lshl_b32 s{T1}, s{sJ}, 4'); a(f's_add_u32 s{T1}, s{T1}, {WBX}'); a(f'v_lshlrev_b32 v{t+5}, 7, v{t+2}'); a(f'v_add_u32 v{t+5}, s{T1}, v{t+5}')
        a(f'v_cmp_eq_u32 vcc, 0, v{t+3}'); a(f'v_cndmask_b32 v{vMD}, v{t+5}, v{t+4}, vcc'); a(f'v_lshl_add_u32 v{vMD}, v{t+1}, 2, v{vMD}')
        a(f'v_cndmask_b32 v{vMD}, v{t+7}, v{vMD}, {sr(mP,2)}')
        a(f'v_lshrrev_b32 v{t}, 3, v1'); a(f'v_and_b32 v{t+1}, 7, v1'); a(f'v_lshl_add_u32 v{vBL}, v{t+1}, 3, v{t}')
        a(f'v_sub_u32 v{vBU}, 63, v{vBL}'); a(f'v_lshlrev_b32 v{vBU}, 2, v{vBU}')
        a(f'v_add_u32 v{t+2}, s{T2}, v{vBL}'); a(f'v_cmp_eq_u32 vcc, 0, v{t+2}'); a(f'v_lshlrev_b32 v{vBL}, 2, v{vBL}')
        a(f'v_mul_u32_u24 v{vWD}, {cfg.SW}, v{t}'); a(f'v_lshl_add_u32 v{vWD}, v{t+1}, 4, v{vWD}'); a(f's_lshl_b32 s{T1}, s{sW}, 7'); a(f'v_add_u32 v{vWD}, s{T1}, v{vWD}')
        a(f'v_cndmask_b32 v{vWD}, v{vWD}, v{t+7}, vcc')
    def wperm_finish(a):
        P1 = M5 + 8
        for r in range(4):
            a(f'v_lshl_or_b32 v{LW+r}, v{LW+4+r}, 16, v{LW+r}')
            a(f'ds_bpermute_b32 v{P1+r}, v{vBL}, v{LW+r}')
        for r in range(4):
            a(f'v_lshl_or_b32 v{LW+8+r}, v{LW+12+r}, 16, v{LW+8+r}'); a(f'v_xor_b32 v{LW+8+r}, v{LW+8+r}, v{vSG}')
            a(f'ds_bpermute_b32 v{P1+4+r}, v{vBU}, v{LW+8+r}')
        for k in range(4): a(f'v_lshlrev_b32 v{LM+k}, 16, v{LM+k}')
        a(f'v_add_f32 v{LM}, v{LM}, v{LM+2}'); a(f'v_sub_f32 v{LM+1}, v{LM+1}, v{LM+3}')
        a(f'v_mul_f32 v{LM}, 0.5, v{LM}'); a(f'v_mul_f32 v{LM+1}, 0.5, v{LM+1}'); a(f'v_cvt_pk_bf16_f32 v{LM}, v{LM}, v{LM+1}')
        a(f'buffer_store_dwordx4 {vr(P1,4)}, v{vWD}, {sr(SA,4)}, s{sWD} offen sc1')
        a(f'buffer_store_dwordx4 {vr(P1+4,4)}, v{vWD}, {sr(SA,4)}, s{sWD} offen offset:512 sc1')
        a(f'buffer_store_dword v{LM}, v{vMD}, {sr(SA,4)}, 0 offen sc1')
    def early_loads(a):
        a(f'v_and_b32 v{t}, 255, v0'); a(f'v_lshlrev_b32 v{t+1}, 2, v{t}')
        a(f's_mul_i32 s{T0}, s{sG0}, 5'); a(f's_add_u32 s{T0}, s{T0}, s{sJ}'); a(f's_sub_u32 s{T0}, s{T0}, 3')
        a(f's_add_u32 s{T1}, s{sG0}, 160'); a(f's_cmp_eq_u32 s{sJ}, 2'); a(f's_cselect_b32 s{T1}, s{T1}, 200'); a(f's_cmp_ge_u32 s{sJ}, 3'); a(f's_cselect_b32 s{sTK}, s{T0}, s{T1}')
        a(f's_lshr_b32 s{T0}, s{sTK}, 1'); a(f's_lshl_b32 s{T0}, s{T0}, 14'); a(f's_and_b32 s{T1}, s{sTK}, 1'); a(f's_lshl_b32 s{T1}, s{T1}, 12'); a(f's_add_u32 s{T0}, s{T0}, s{T1}')
        a(f's_add_u32 s{T1}, s{T0}, 8192')
        srd(a, SB, sW2, 1376*1024)
        for e in range(8): a(f'buffer_load_dword v{L2+e}, v{t+1}, {sr(SB,4)}, s{T0 if e < 4 else T1} offen offset:{1024*(e&3)}')
        srd(a, SE, sGWp, 1024)
        a(f's_mov_b32 m0, {GW}')
        a(f'buffer_load_dwordx4 v{vL16}, {sr(SE,4)}, 0 offen lds', tag='gw')
        a(f's_load_dwordx2 {sr(sNON,2)}, {sr(sWS,2)}, {NONCE}')
        srd(a, SA, sWS, WSZ); srd(a, SC, sWR, 2048*514); srd(a, SD, sWI, 2048*514)
        a(f'v_mov_b32 v{vONE}, 1')
        if cfg.wEarly and 'w' not in cfg.abl: wperm_loads(a)
        stamp(a, cfg, 'iss', 'F')
    if not cfg.conFirst: early_loads(a)
    F64, F8 = 128, 144
    a(f's_and_b32 s{sIH}, s{sW}, 1'); a(f's_lshr_b32 s{sKH}, s{sW}, 1')
    a(f'v_cvt_f32_u32 v{vNf}, v{vN}'); a(f'v_cvt_f32_u32 v{vQf}, v{vQ}')
    a(f's_lshl_b32 s{T0}, s{sKH}, 4'); a(f'v_add_u32 v{t}, s{T0}, v{vN}'); a(f'v_cmp_eq_u32 {sr(mK0,2)}, 0, v{t}')
    a(f'v_cvt_f32_u32 v{t}, v{t}'); a(f'v_mul_f32 v{t}, {f32(1/64)}, v{t}'); a(f'v_mul_f32 v{t+1}, {f32(8.0)}, v{vQf}'); a(f'v_mul_f32 v{t+1}, v{t+1}, v{t}')
    cs_pairs(a, t+1, t, [32*st + e for st in range(2) for e in range(8)], t+2,
             lambda pi: [('c', F64 + 8*(pi//4) + pi % 4), ('m', F64 + 8*(pi//4) + 4 + pi % 4)])
    a(f'v_mov_b32 v{t}, 0xbf803f80')
    for st in range(2):
        for k in range(4): a(f'v_cndmask_b32 v{F64+8*st+4+k}, v{F64+8*st+4+k}, v{t}, {sr(mK0,2)}')
    a(f'v_and_b32 v{t}, 1, v1'); a(f'v_lshlrev_b32 v{t}, 4, v{t}'); a(f'v_mov_b32 v{t+1}, 0xffff'); a(f'v_lshlrev_b32 v{t}, v{t}, v{t+1}')
    a(f'v_and_b32 v{t+1}, 2, v1'); a(f'v_cmp_eq_u32 vcc, 0, v{t+1}')
    a(f'v_lshrrev_b32 v{vN4}, 2, v{vN}'); a(f'v_cvt_f32_u32 v{vN4}, v{vN4}'); a(f'v_mul_f32 v{vN4}, {f32(0.125)}, v{vN4}')
    a(f'v_cndmask_b32 v{vMA}, 0, v{t}, vcc'); a(f'v_xor_b32 v{vMB}, v{vMA}, v{t}')
    def dft8(a, t, emit):
        a(f'v_add_f32 v{t}, 0.5, v{vN4}'); a(f'v_add_f32 v{t+1}, 4.0, v{vQf}')
        for i in range(2):
            for k in range(2): a(f'v_mul_f32 v{t+2+2*i+k}, v{t if i else vN4}, v{t+1 if k else vQf}')
        for u in range(4): a(f'v_cos_f32 v{t+6+u}, v{t+2+u}')
        for u in range(4): a(f'v_sin_f32 v{t+10+u}, v{t+2+u}')
        for u in range(4): a(f'v_cvt_pk_bf16_f32 v{t+6+u}, v{t+6+u}, v{t+6+u}')
        for u in range(4): a(f'v_cvt_pk_bf16_f32 v{t+2+u}, -v{t+10+u}, -v{t+10+u}')
        for u in range(4): a(f'v_cvt_pk_bf16_f32 v{t+10+u}, v{t+10+u}, v{t+10+u}')
        for u in range(4):
            for kind, src in (('c', t+6+u), ('m', t+2+u), ('s', t+10+u)):
                d = emit(u >> 1, u & 1, kind)
                a(f'v_and_b32 v{d}, v{src}, v{vMA}'); a(f'v_and_b32 v{d+1}, v{src}, v{vMB}')
    dft8(a, t, lambda t2, tt, kind: F8 + 12*t2 + {'c': 0, 's': 4, 'm': 8}[kind] + 2*tt)
    stamp(a, cfg, 'con1', 'F')
    vTR, vE1 = 11, 13
    a(f'v_lshlrev_b32 v{t}, 3, v{vQ}'); a(f'v_bfe_u32 v{t+1}, v1, 2, 2'); a(f'v_add_u32 v{t}, v{t}, v{t+1}'); a(f'v_mul_u32_u24 v{t}, {XP}, v{t}')
    a(f'v_and_b32 v{t+1}, 3, v1'); a(f'v_lshl_add_u32 v{t}, v{t+1}, 7, v{t}')
    a(f's_lshl_b32 s{T0}, s{sJ}, 4'); a(f's_lshl_b32 s{T1}, s{sIH}, 3'); a(f's_add_u32 s{T0}, s{T0}, s{T1}'); a(f'v_add_u32 v{vTR}, s{T0}, v{t}')
    a(f'v_lshrrev_b32 v{t}, 2, v{vN}'); a(f's_lshl_b32 s{T0}, s{sKH}, 2'); a(f'v_add_u32 v{t}, s{T0}, v{t}'); a(f'v_lshl_add_u32 v{t}, v{t}, 3, v{vQ}')
    a(f'v_mul_u32_u24 v{t}, {cfg.S1}, v{t}'); a(f'v_and_b32 v{t+1}, 3, v{vN}'); a(f'v_lshl_add_u32 v{vE1}, v{t+1}, 4, v{t}')
    a(f's_lshl_b32 s{T0}, s{sG0}, 3'); a(f's_add_u32 s{sB}, s{T0}, s{sJ}')
    a(f's_lshl_b32 s{T0}, s{sB}, 7'); a(f's_lshl_b32 s{T1}, s{sIH}, 6'); a(f's_add_u32 s{T0}, s{T0}, s{T1}'); a(f's_add_u32 s{sE1}, s{T0}, {E1}'); a(f's_add_u32 s{sE1+1}, s{sE1}, {4*cfg.S1}')
    a(f'v_cmp_eq_u32 vcc, 0, v{vQ}'); a(f's_and_b64 {sr(mK04,2)}, vcc, {sr(mK0,2)}'); a(f's_andn2_b64 {sr(mK5,2)}, {sr(mK0,2)}, vcc')
    a(f'v_lshrrev_b32 v{t}, 1, v{vN}'); a(f'v_lshrrev_b32 v{vE2}, 1, v{vQ}'); a(f'v_lshl_add_u32 v{t}, v{t}, 3, v{vE2}'); a(f'v_mul_u32_u24 v{vE2}, {cfg.S2}, v{t}')
    a(f'v_and_b32 v{t}, 1, v{vN}'); a(f'v_lshl_add_u32 v{vE2}, v{t}, 5, v{vE2}'); a(f'v_and_b32 v{t}, 1, v{vQ}'); a(f'v_lshl_add_u32 v{vE2}, v{t}, 4, v{vE2}')
    a(f's_lshl_b32 s{T0}, s{sB}, 6'); a(f's_mul_i32 s{T1}, s{sW}, {2*cfg.S2}')
    a(f's_add_u32 s{sE2}, s{T0}, s{T1}'); a(f's_add_u32 s{sE2}, s{sE2}, {E2}'); a(f's_add_u32 s{sE2+1}, s{sE2}, {64*cfg.S2}')
    def perm_finish(a):
        P0 = M1 + 8
        a(f'v_and_b32 v{P0+8}, 255, v0'); a(f'v_bfe_u32 v{P0+9}, v{P0+8}, 2, 3'); a(f's_mov_b32 s{T0}, {REG}'); a(f'v_mul_lo_u32 v{P0+9}, v{P0+9}, s{T0}')
        a(f'v_lshrrev_b32 v{P0+10}, 5, v{P0+8}'); a(f'v_lshl_add_u32 v{P0+9}, v{P0+10}, 6, v{P0+9}'); a(f'v_and_b32 v{P0+10}, 3, v{P0+8}'); a(f'v_lshl_add_u32 v{P0+9}, v{P0+10}, 4, v{P0+9}')
        a(f's_lshr_b32 s{T2}, s{sTK}, 1'); a(f's_lshl_b32 s{T2}, s{T2}, 11'); a(f's_and_b32 s{T1}, s{sTK}, 1'); a(f's_lshl_b32 s{T1}, s{T1}, 9'); a(f's_add_u32 s{T2}, s{T2}, s{T1}')
        a(f's_add_u32 s{T2}, s{T2}, {W2P}'); a(f's_cmp_lt_u32 s{sTK}, 172'); a(f's_cselect_b32 s{T2}, s{T2}, {OOB}')
        a(f's_mov_b32 s{T0}, 0x05040100'); a(f's_mov_b32 s{T1}, 0x07060302')
        for k in range(4):
            a(f'v_perm_b32 v{P0+k}, v{L2+2*k+1}, v{L2+2*k}, s{T0}'); a(f'v_perm_b32 v{P0+4+k}, v{L2+2*k+1}, v{L2+2*k}, s{T1}')
        a(f'buffer_store_dwordx4 {vr(P0,4)}, v{P0+9}, {sr(SA,4)}, s{T2} offen sc1')
        a(f'buffer_store_dwordx4 {vr(P0+4,4)}, v{P0+9}, {sr(SA,4)}, s{T2} offen offset:1024 sc1')
        for k in range(4): a(f'v_mov_b32 v{P0+12+k}, -1')
        for tt in range(2):
            if cfg.clrF: a(f'buffer_store_dwordx4 {vr(P0+12,4)}, v{vE2}, {sr(SA,4)}, s{sE2+tt} offen sc1')
    if cfg.conFirst:
        kf_spin(a, vCN, kI, IN, sleep=True)
        if cfg.prioF: a(f's_setprio {cfg.prioF}')
        early_loads(a)
    if cfg.permEarly: perm_finish(a)
    stamp(a, cfg, 'perm', 'F')
    stamp(a, cfg, 'preX', 'F')
    kf_spin(a, vCN, kX, IN, sleep=True)
    stamp(a, cfg, 'X', 'F')
    DA, C1, C2, Z = IN, IN + 16, WK, 168
    for st in range(2):
        for tt in range(2):
            for hf in range(2):
                a(f'ds_read_b64_tr_b16 {vr(DA+8*st+4*tt+2*hf,2)}, v{vTR} offset:{XT + (32*st+4*hf)*XP + 512*tt}')
    for st in range(2):
        for tt in range(2):
            for c in range(2):
                d = C1 + 8*c + 4*tt
                a(f'{MF16} {vr(d,4)}, {vr(DA+8*st+4*tt,4)}, {vr(F64+8*st+4*c,4)}, {vr(d,4) if st else 0}')
    for c in range(2):
        for k in range(4): a(f'v_cvt_pk_bf16_f32 v{PK+4*c+k}, v{C1+8*c+2*k}, v{C1+8*c+2*k+1}')
    BM = DA
    for k in range(4): a(f'v_cndmask_b32 v{BM+k}, v{PK+4+k}, 0, {sr(mK0,2)}')
    for t2 in range(2):
        cc, ss, mm = F8 + 12*t2, F8 + 12*t2 + 4, F8 + 12*t2 + 8
        a(f'{MF16} {vr(C2+8*t2,4)}, {vr(cc,4)}, {vr(PK,4)}, 0')
        a(f'{MF16} {vr(C2+8*t2+4,4)}, {vr(mm,4)}, {vr(PK,4)}, 0')
    for t2 in range(2):
        cc, ss, mm = F8 + 12*t2, F8 + 12*t2 + 4, F8 + 12*t2 + 8
        a(f'{MF16} {vr(C2+8*t2,4)}, {vr(ss,4)}, {vr(BM,4)}, {vr(C2+8*t2,4)}')
        a(f'{MF16} {vr(C2+8*t2+4,4)}, {vr(cc,4)}, {vr(BM,4)}, {vr(C2+8*t2+4,4)}')
    a(f'{MF16} {vr(Z,4)}, {vr(F8,4)}, {vr(PK+4,4)}, 0')
    a(f'{MF16} {vr(Z+4,4)}, {vr(F8+12,4)}, {vr(PK+4,4)}, 0')
    a(f'{MF16} {vr(Z+8,4)}, {vr(F8+20,4)}, {vr(PK+4,4)}, 0')
    O = C1
    for k in range(8): a(f'v_cvt_pk_bf16_f32 v{O+k}, v{C2+2*k}, v{C2+2*k+1}')
    for k in range(6): a(f'v_cvt_pk_bf16_f32 v{O+8+k}, v{Z+2*k}, v{Z+2*k+1}')
    for k in range(2):
        a(f'v_cndmask_b32 v{O+2+k}, v{O+2+k}, v{O+8+k}, {sr(mK04,2)}')
        a(f'v_cndmask_b32 v{O+6+k}, v{O+6+k}, v{O+10+k}, {sr(mK04,2)}')
        a(f'v_cndmask_b32 v{O+4+k}, v{O+4+k}, v{O+10+k}, {sr(mK5,2)}')
        a(f'v_cndmask_b32 v{O+6+k}, v{O+6+k}, v{O+12+k}, {sr(mK5,2)}')
    for t2 in range(2):
        if 'e' not in cfg.abl: a(f'buffer_store_dwordx4 {vr(O+4*t2,4)}, v{vE1}, {sr(SA,4)}, s{sE1+t2} offen sc1', tag='e1')
    stamp(a, cfg, 'fft1', 'F')
    if not cfg.permEarly and 'p' not in cfg.abl: perm_finish(a)
    if not cfg.wEarly and 'w' not in cfg.abl: wperm_loads(a)
    if cfg.wEarly and 'w' not in cfg.abl: wperm_finish(a)
    if cfg.hold: a(f'v_add_u32 v14, s{sW}, v{vCN}'); a(f'ds_write_b8 v14, v{vONE} offset:{4*kS}')
    stamp(a, cfg, 'wiss', 'F')
    a(f's_cmp_eq_u32 s{sG0}, 0'); a(f's_cselect_b32 s{T0}, 1, 0')
    a(f's_and_b32 s{T1}, s{sJ}, 3'); a(f's_cmp_eq_u32 s{T1}, 0'); a(f's_cselect_b32 s{sPAIR}, s{T0}, 0')
    a(f's_cmp_gt_u32 s{sJ}, 4'); a(f's_cselect_b32 s{T1}, s{T0}, 0')
    a(f's_mul_i32 s{sROT}, s{T1}, {f32(0.25)}')
    a(f's_lshr_b32 s{T2}, s{sW}, 1')
    a(f's_and_b32 s{T2}, s{T2}, s{sPAIR}'); a(f's_or_b32 s{T1}, s{T1}, s{T2}'); a(f's_lshl_b32 s{T1}, s{T1}, 5')
    a(f's_add_u32 s{sK1}, s{sG0}, s{T1}')
    nonce(a)
    t = IN
    def con_M1(a):
        if 'f' in cfg.abl: return
        a(f's_lshl_b32 s{T0}, s{sPAIR}, 1'); a(f's_andn2_b32 s{T0}, s{sW}, s{T0}'); a(f's_lshl_b32 s{T0}, s{T0}, 7'); a(f's_add_u32 s{T0}, s{T0}, s{sJ}')
        a(f'v_lshlrev_b32 v{t}, 3, v{vN}'); a(f'v_add_u32 v11, s{T0}, v{t}'); a(f'v_cvt_f32_u32 v{t}, v11'); a(f'v_mul_f32 v{t}, {f32(1/512)}, v{t}')
        a(f'v_mul_f32 v{t+1}, 4.0, v{vQf}'); a(f'v_mul_f32 v{t+1}, v{t+1}, v{t}')
        cs_pairs(a, t+1, t, [16*sg + e for sg in range(4) for e in range(4)], t+2,
                 lambda pi: [('c', M1 + 8*(pi//2) + pi % 2), ('s', M1 + 8*(pi//2) + 2 + pi % 2), ('m', M1 + 8*(pi//2) + 4 + pi % 2), ('c', M1 + 8*(pi//2) + 6 + pi % 2)])
    def con_M2(a):
        if 'f' in cfg.abl: return
        for t2 in range(2):
            a(f'v_lshlrev_b32 v{t}, 6, v{vN}'); a(f's_add_u32 s{T0}, s{sK1}, {1024*t2}'); a(f'v_add_u32 v{t}, s{T0}, v{t}'); a(f'v_cvt_f32_u32 v{t}, v{t}'); a(f'v_mul_f32 v{t}, {f32(1/2048)}, v{t}')
            a(f'v_mul_f32 v{t+1}, 4.0, v{vQf}'); a(f'v_mul_f32 v{t+1}, v{t+1}, v{t}')
            cs_pairs(a, t+1, t, [16*tt + r for tt in range(2) for r in range(4)], t+2,
                     lambda pi: [('c', M2 + 12*t2 + pi), ('s', M2 + 12*t2 + 4 + pi), ('m', M2 + 12*t2 + 8 + pi)])
    def con_M4(a):
        if 'f' in cfg.abl: return
        a(f'v_lshlrev_b32 v{t+14}, 8, v{vQ}'); a(f'v_add_u32 v{t+14}, s{sK1}, v{t+14}'); a(f'v_cvt_f32_u32 v{t+14}, v{t+14}'); a(f'v_mul_f32 v{t+14}, {f32(1/64)}, v{t+14}')
        for tt in range(2):
            a(f'v_add_f32 v{t}, {f32(16.0*tt)}, v{vNf}'); a(f'v_mul_f32 v{t}, {f32(1/32)}, v{t}')
            a(f'v_fma_f32 v{t+1}, v{t}, v{t+14}, s{sROT}')
            cs_pairs(a, t+1, t, [16*t2 + r for t2 in range(2) for r in range(4)], t+2,
                     lambda pi: [('c', M4 + 12*tt + pi), ('s', M4 + 12*tt + 4 + pi), ('m', M4 + 12*tt + 8 + pi)])
    def con_M5(a):
        if 'f' in cfg.abl: return
        a(f's_lshl_b32 s{T0}, s{sW}, 4'); a(f'v_add_u32 v{t}, s{T0}, v{vN}'); a(f'v_cvt_f32_u32 v{t}, v{t}'); a(f'v_mul_f32 v{t}, {f32(1/64)}, v{t}')
        a(f'v_lshlrev_b32 v{t+1}, 5, v{vQ}'); a(f'v_add_u32 v{t+1}, s{sJ}, v{t+1}'); a(f'v_cvt_f32_u32 v{t+1}, v{t+1}'); a(f'v_mul_f32 v{t+1}, {f32(0.125)}, v{t+1}'); a(f'v_mul_f32 v{t+1}, v{t+1}, v{t}')
        cs_pairs(a, t+1, t, [16*sg + e for sg in range(4) for e in range(4)], t+2,
                 lambda pi: [('c', M5 + 8*(pi//2) + pi % 2), ('m', M5 + 8*(pi//2) + 2 + pi % 2), ('s', M5 + 8*(pi//2) + 4 + pi % 2), ('c', M5 + 8*(pi//2) + 6 + pi % 2)])
    def gate(a):
        t = WK + 4
        vGX, vGG = 11, 13
        a(f's_lshl_b32 s{T0}, s{sW}, 4'); a(f'v_add_u32 v{t}, s{T0}, v{vN}'); a(f'v_lshlrev_b32 v14, 2, v{t}'); a(f'v_mul_u32_u24 v{t}, {XP}, v{t}')
        a(f'v_lshl_add_u32 v{vGX}, v{vQ}, 4, v{t}'); a(f'v_lshlrev_b32 v{vGG}, 4, v{vQ}')
        GA = WK + 8
        a.wait_tag('gw')
        GB = 128
        for b in range(0 if 'f' in cfg.abl else 2):
            for k in range(8):
                ks = 8*b + k
                a(f'ds_read_b128 {vr(GB+8*k,4)}, v{vGX} offset:{XT + 64*ks}'); a(f'ds_read_b128 {vr(GB+8*k+4,4)}, v{vGG} offset:{GW + 64*ks}')
            for k in range(8):
                a(f'{MF16} {vr(GA+4*(k&1),4)}, {vr(GB+8*k+4,4)}, {vr(GB+8*k,4)}, {vr(GA+4*(k&1),4) if (b or k > 1) else 0}')
        a(f'v_add_f32 v{GA}, v{GA}, v{GA+4}')
        a(f'v_mul_f32 v{GA}, {f32(-1.4426950408889634)}, v{GA}'); a(f'v_exp_f32 v{GA}, v{GA}'); a(f'v_add_f32 v{GA}, 1.0, v{GA}'); a(f'v_rcp_f32 v{GA}, v{GA}')
        a(f'ds_write_b32 v14, v{GA} offset:{GL}')
    order = list(cfg.ford)
    jobs = {'g': gate, '1': con_M1, '2': con_M2, '4': con_M4, '5': con_M5}
    def run_until(mark):
        while order:
            c = order.pop(0)
            if c == mark: return
            jobs[c](a)
    if not cfg.wEarly and 'w' not in cfg.abl:
        con_M1(a); order.remove('1'); wperm_finish(a)
    run_until('F')
    f0 = WK
    a(f'v_mov_b32 v{f0}, s{sNON}'); a(f'v_mov_b32 v{f0+1}, s{sNON+1}'); a(f'v_mov_b32 v{f0+2}, 0')
    a(f's_mul_i32 s{T0}, s2, {cfg.FS}'); a(f's_add_u32 s{T0}, s{T0}, {FLAGA}')
    a.wait(vm=0)
    a('s_mov_b64 exec, 1'); a(f'ds_add_rtn_u32 v{f0+3}, v{vCN}, v{vONE} offset:{cFA}')
    a(f'v_readfirstlane_b32 s{T1}, v{f0+3}')
    a(f's_cmp_eq_u32 s{T1}, 3'); a(f's_cselect_b32 s{T0}, s{T0}, {OOB}')
    a(f'buffer_store_dwordx2 {vr(f0,2)}, v{f0+2}, {sr(SA,4)}, s{T0} offen sc1')
    a('s_mov_b64 exec, -1')
    stamp(a, cfg, 'flag', 'F')
    HB, XS = N64, N64 + 16
    run_until('P')
    vIN = 13
    a(f'v_lshlrev_b32 v{vIN}, 10, v{vN}'); a(f'v_lshl_add_u32 v{vIN}, v{vQ}, 6, v{vIN}')
    sI = 72
    a(f's_lshr_b32 s{T0}, s{sG0}, 2'); a(f's_lshl_b32 s{T0}, s{T0}, 3'); a(f's_add_u32 s{T0}, s{T0}, s{sJ}'); a(f's_mul_i32 s{T0}, s{T0}, {cfg.S1}')
    a(f's_and_b32 s{T1}, s{sG0}, 3'); a(f's_lshl_b32 s{T1}, s{T1}, 4'); a(f's_add_u32 s{T0}, s{T0}, s{T1}'); a(f's_lshl_b32 s{T1}, s{sW}, 8'); a(f's_add_u32 s{T0}, s{T0}, s{T1}')
    a(f's_add_u32 s{sI}, s{T0}, {E1}'); a(f's_add_u32 s{sI+1}, s{sI}, 16384')
    vWB, sWb = 11, 74
    a(f'v_lshlrev_b32 v{vWB}, 10, v{vQ}'); a(f'v_lshl_add_u32 v{vWB}, v{vN}, 4, v{vWB}')
    a(f's_mul_i32 s{T0}, s{sB}, {cfg.SW}'); a(f's_add_u32 s{T0}, s{T0}, s{T1}'); a(f's_add_u32 s{sWb}, s{T0}, {WB}'); a(f's_add_u32 s{sWb+1}, s{sWb}, 4096')
    t = IN + 4
    def fixups(a):
        t = IN + 4
        a(f's_cmp_eq_u32 s{sPAIR}, 0'); h = a.skip_begin('s_cbranch_scc1')
        a(f's_cmp_lg_u32 s{sJ}, 0'); h2 = a.skip_begin('s_cbranch_scc1')
        a(f's_and_b32 s{T0}, s{sW}, 1'); a(f'v_or_b32 v{t}, s{T0}, v{vN}'); a(f'v_cmp_eq_u32 vcc, 0, v{t}'); a(f'v_mov_b32 v{t}, 0xbf803f80')
        for sg in range(4):
            for k in range(2): a(f'v_cndmask_b32 v{M1+8*sg+4+k}, v{M1+8*sg+4+k}, v{t}, vcc')
        a(f'v_cmp_eq_u32 vcc, 0, v{vQ}'); a(f'v_mov_b32 v{t+2}, 0xffff')
        a(f'v_mov_b32 v{t}, 0x3f00'); a(f'v_bfi_b32 v{t}, v{t+2}, v{t}, v{M5}'); a(f'v_cndmask_b32 v{M5}, v{M5}, v{t}, vcc')
        a(f'v_and_b32 v{t}, 1, v{vN}'); a(f'v_lshlrev_b32 v{t}, 15, v{t}'); a(f'v_or_b32 v{t}, 0x3f00, v{t}'); a(f'v_bfi_b32 v{t}, v{t+2}, v{t}, v{M5+2}'); a(f'v_cndmask_b32 v{M5+2}, v{M5+2}, v{t}, vcc')
        a.skip_end(h2)
        for sg in range(2):
            for k in range(4):
                a(f'v_mov_b32 v{M5+8*(sg+2)+4+k}, v{M5+8*sg+k}'); a(f'v_mov_b32 v{M5+8*(sg+2)+k}, 0'); a(f'v_mov_b32 v{M5+8*sg+4+k}, 0')
        a(f's_cmp_ge_u32 s{sW}, 2'); a(f's_cselect_b64 vcc, -1, 0')
        for sg in range(4):
            for k in range(2):
                for o in (0, 4):
                    a(f'v_cndmask_b32 v{M1+8*sg+o+2+k}, 0, v{M1+8*sg+o+k}, vcc'); a(f'v_cndmask_b32 v{M1+8*sg+o+k}, v{M1+8*sg+o+k}, 0, vcc')
        a.skip_end(h)
    stamp(a, cfg, 'prepoll', 'F')
    lgo = a.lab('go'); lp = a.lab('poll')
    a(f's_mul_i32 s{T0}, s{sW}, {64*cfg.FS}'); a(f's_add_u32 s{T0}, s{T0}, {FLAGA}'); a(f's_mov_b32 s{T1}, 0'); a(f'v_mul_u32_u24 v{IN+2}, {cfg.FS}, v1')
    a.wait(vm=0)
    if cfg.pollAt is not None: kf_spin(a, vCN, cfg.pollAt, IN + 4, sleep=True)
    stamp(a, cfg, 'poll', 'F')
    a.label(lp)
    a(f'buffer_load_dwordx2 {vr(IN,2)}, v{IN+2}, {sr(SA,4)}, s{T0} offen sc1')
    a(f'v_xor_b32 v{IN}, s{sNON}, v{IN}'); a(f'v_xor_b32 v{IN+1}, s{sNON+1}, v{IN+1}'); a(f'v_or_b32 v{IN}, v{IN}, v{IN+1}')
    a(f'v_cmp_ne_u32 vcc, 0, v{IN}')
    a(f's_cbranch_vccz {lgo}')
    a(f's_sleep {cfg.slpA}'); a(f's_add_u32 s{T1}, s{T1}, 1'); a(f's_cmp_lt_u32 s{T1}, {cfg.spin}'); a(f's_cbranch_scc1 {lp}')
    a.label(lgo)
    lds_arrive(a, vCN, cGO, vONE)
    stampv(a, cfg, 'pollsA', 'F', T1)
    lds_spin(a, vCN, cGO, 4, IN+3, sleep=True)
    stamp(a, cfg, 'go', 'F')
    if 'q' in cfg.abl: a('s_branch L_FQ')
    for tt in range(2):
        a(f's_lshl_b32 s{T0}, s{sW}, 11'); a(f's_add_u32 m0, s{T0}, {FA + 1024*tt}')
        a(f'buffer_load_dwordx4 v{vIN}, {sr(SA,4)}, s{sI+tt} offen sc1 lds', tag='in')
    WR = N8
    for t2 in range(2): a(f'buffer_load_dwordx4 {vr(WR+4*t2,4)}, v{vWB}, {sr(SA,4)}, s{sWb+t2} offen sc1')
    a(f's_cmp_lg_u32 s{sB}, 0'); h = a.skip_begin('s_cbranch_scc1')
    a(f'v_lshlrev_b32 v{vWB}, 4, v{vQ}'); a(f's_lshr_b32 s{T0}, s{sW}, 1'); a(f's_lshl_b32 s{T0}, s{T0}, 7'); a(f's_add_u32 s{T0}, s{T0}, {WBX}')
    for t2 in range(2): a(f'buffer_load_dwordx4 {vr(XS+4*t2,4)}, v{vWB}, {sr(SA,4)}, s{T0} offen offset:{64*t2} sc1')
    a.skip_end(h, drop=True)
    def stage(a):
        kf_spin(a, vCN, kK, IN, sleep=True)
        a(f's_mul_i32 s{T0}, s{sJ}, {REG}'); a(f's_add_u32 s{T0}, s{T0}, {W2P}')
        srd(a, SB, sWS, REG, f's{T0}')
        a(f'v_and_b32 v{IN}, 31, v1'); a(f's_lshr_b32 s{T0}, s{sW}, 1'); a(f's_lshl_b32 s{T0}, s{T0}, 4'); a(f'v_xor_b32 v{IN}, s{T0}, v{IN}')
        a(f'v_lshrrev_b32 v{IN+1}, 5, v1'); a(f'v_lshlrev_b32 v{IN+1}, 9, v{IN+1}'); a(f'v_lshl_add_u32 v{IN}, v{IN}, 4, v{IN+1}')
        a(f's_lshl_b32 s{T0}, s{sW}, 11'); a(f'v_add_u32 v14, s{T0}, v{IN}'); a(f's_mul_i32 s{T1}, s{sW}, {NPL*2048}')
        def stageP(i0, i1):
            for i in range(i0, i1):
                a(f's_add_u32 m0, s{T1}, {PST + i*2048}'); a(f's_mov_b32 s{T0}, {(22 - NPL + i)*8192}')
                for hb in range(2): a(f'buffer_load_dwordx4 v14, {sr(SB,4)}, s{T0} offen offset:{1024*hb} {cfg.pfl} lds', tag='pl')
        stageP(0, NPL)
        stamp(a, cfg, 'pst', 'F')
    t = IN
    if cfg.stageAt == 'in': stage(a)
    run_until('I')
    a.wait_tag('in')
    lds_arrive(a, vCN, cF1, vONE)
    def unpackW(a, dst, src):
        a(f's_mov_b32 s{T0}, {f32(2.0**-19)}')
        for k in range(8):
            a(f'v_lshlrev_b32 v{dst+2*k}, 16, v{src+k}'); a(f'v_and_b32 v{dst+2*k+1}, 0xffff0000, v{src+k}')
        for k in range(16): a(f'v_mul_f32 v{dst+k}, s{T0}, v{dst+k}')
    run_until('.')
    fixups(a)
    unpackW(a, WF, WR)
    lds_spin(a, vCN, cF1, 4, IN)
    stamp(a, cfg, 'in', 'F')
    for u in range(8): a(f'ds_read_b128 {vr(IN+4*u,4)}, v{vL16} offset:{FA + 1024*u}')
    C1 = WK
    for sg in range(4):
        for tt in range(2):
            for c in range(2):
                d = C1 + 8*c + 4*tt
                a(f'{MF16} {vr(d,4)}, {vr(IN+8*sg+4*tt,4)}, {vr(M1+8*sg+4*c,4)}, {vr(d,4) if sg else 0}')
    for c in range(2):
        for k in range(4): a(f'v_cvt_pk_bf16_f32 v{PK+4*c+k}, v{C1+8*c+2*k}, v{C1+8*c+2*k+1}')
    lsp = a.lab('special'); ljn = a.lab('join')
    a(f's_cmp_eq_u32 s{sB}, 0'); a(f's_cbranch_scc1 {lsp}')
    snap = (list(a.hist), list(a.vq), list(a.lq))
    Cre, Cim, Yre, Yim = IN, IN + 8, IN + 16, IN + 24
    for t2 in range(2):
        a(f'{MF16} {vr(Cre+4*t2,4)}, {vr(M2+12*t2,4)}, {vr(PK,4)}, 0')
        a(f'{MF16} {vr(Cim+4*t2,4)}, {vr(M2+12*t2+8,4)}, {vr(PK,4)}, 0')
    for t2 in range(2):
        a(f'{MF16} {vr(Cre+4*t2,4)}, {vr(M2+12*t2+4,4)}, {vr(PK+4,4)}, {vr(Cre+4*t2,4)}')
        a(f'{MF16} {vr(Cim+4*t2,4)}, {vr(M2+12*t2,4)}, {vr(PK+4,4)}, {vr(Cim+4*t2,4)}')
    for k in range(8):
        a(f'v_mul_f32 v{Yre+k}, v{Cre+k}, v{WF+2*k}'); a(f'v_mul_f32 v{Yim+k}, v{Cre+k}, v{WF+2*k+1}')
    for k in range(8):
        a(f'v_fma_f32 v{Yre+k}, -v{Cim+k}, v{WF+2*k+1}, v{Yre+k}'); a(f'v_fmac_f32 v{Yim+k}, v{Cim+k}, v{WF+2*k}')
    for k in range(4): a(f'v_cvt_pk_bf16_f32 v{PK+k}, v{Yre+2*k}, v{Yre+2*k+1}')
    for k in range(4): a(f'v_cvt_pk_bf16_f32 v{PK+4+k}, v{Yim+2*k}, v{Yim+2*k+1}')
    a.label(ljn)
    C3 = WK
    for tt in range(2):
        a(f'{MF16} {vr(C3+8*tt,4)}, {vr(PK,4)}, {vr(M4+12*tt,4)}, 0')
        a(f'{MF16} {vr(C3+8*tt+4,4)}, {vr(PK,4)}, {vr(M4+12*tt+4,4)}, 0')
    for tt in range(2):
        a(f'{MF16} {vr(C3+8*tt,4)}, {vr(PK+4,4)}, {vr(M4+12*tt+8,4)}, {vr(C3+8*tt,4)}')
        a(f'{MF16} {vr(C3+8*tt+4,4)}, {vr(PK+4,4)}, {vr(M4+12*tt,4)}, {vr(C3+8*tt+4,4)}')
    a(f's_lshl_b32 s{T0}, s{sW}, 11'); a(f'v_add_u32 v{vIN}, s{T0}, v{vL16}')
    for k in range(8): a(f'v_cvt_pk_bf16_f32 v{PK+k}, v{C3+2*k}, v{C3+2*k+1}')
    for tt in range(2): a(f'ds_write_b128 v{vIN}, {vr(PK+4*tt,4)} offset:{FB + 1024*tt}')
    a.wait(lg=0)
    lds_arrive(a, vCN, cF2, vONE)
    lds_spin(a, vCN, cF2, 4, IN)
    for u in range(8): a(f'ds_read_b128 {vr(IN+4*u,4)}, v{vL16} offset:{FB + 1024*u}')
    C4 = WK
    for sg in range(4):
        for tt in range(2):
            for c in range(2):
                d = C4 + 8*tt + 4*c
                a(f'{MF16} {vr(d,4)}, {vr(M5+8*sg+4*c,4)}, {vr(IN+8*sg+4*tt,4)}, {vr(d,4) if sg else 0}')
    for k in range(8): a(f'v_cvt_pk_bf16_f32 v{PK+k}, v{C4+2*k}, v{C4+2*k+1}')
    if cfg.clrF:
        for k in range(8): a(f'v_min_u32 v{PK+k}, -2, v{PK+k}')
    for tt in range(2): a(f'buffer_store_dwordx4 {vr(PK+4*tt,4)}, v{vE2}, {sr(SA,4)}, s{sE2+tt} offen sc1', tag='e2')
    stamp(a, cfg, 'e2st', 'F')
    if cfg.stageAt == 'e2': stage(a)
    t = IN
    dft8(a, t, lambda dh, st, kind: N8 + 12*dh + 6*st + {'s': 0, 'c': 2, 'm': 4}[kind])
    vL3, vX3 = 11, 13
    a(f'v_cmp_eq_u32 vcc, 0, v{vQ}')
    a(f'v_and_b32 v{t}, 7, v1'); a(f's_lshl_b32 s{T0}, s{sW}, 3'); a(f'v_add_u32 v{t}, s{T0}, v{t}')
    a(f'v_cmp_eq_u32 {sr(mK0,2)}, 0, v{t}'); a(f's_andn2_b64 {sr(mK5,2)}, {sr(mK0,2)}, vcc'); a(f's_mov_b64 {sr(mK04,2)}, vcc')
    a(f'v_lshl_add_u32 v{t}, v{t}, 3, v{vQ}'); a(f'v_lshlrev_b32 v{t}, 6, v{t}'); a(f'v_bfe_u32 v{t+1}, v1, 3, 1'); a(f'v_lshl_add_u32 v{vL3}, v{t+1}, 4, v{t}')
    a(f's_lshr_b32 s{T0}, s{sG0}, 1'); a(f's_lshl_b32 s{T0}, s{T0}, 3'); a(f's_add_u32 s{T0}, s{T0}, s{sJ}'); a(f's_mul_i32 s{T0}, s{T0}, {cfg.S2}')
    a(f's_and_b32 s{T1}, s{sG0}, 1'); a(f's_lshl_b32 s{T1}, s{T1}, 5'); a(f's_add_u32 s{T0}, s{T0}, s{T1}'); a(f's_add_u32 s{sI}, s{T0}, {E2}')
    a(f'v_lshrrev_b32 v{t}, 1, v{vQ}'); a(f'v_lshlrev_b32 v{t}, 12, v{t}'); a(f'v_and_b32 v{t+1}, 1, v{vQ}'); a(f'v_lshl_add_u32 v{t}, v{t+1}, 8, v{t}')
    a(f'v_lshl_add_u32 v{t}, v{vN}, 4, v{t}'); a(f's_lshl_b32 s{T1}, s{sW}, 9'); a(f'v_add_u32 v{vX3}, s{T1}, v{t}')
    def n64(nt):
        a(f'v_add_f32 v{t}, {f32(16.0*nt)}, v{vNf}'); a(f'v_mul_f32 v{t}, {f32(1/64)}, v{t}')
        a(f'v_mul_f32 v{t+1}, 4.0, v{vQf}'); a(f'v_mul_f32 v{t+1}, v{t+1}, v{t}')
        cs_pairs(a, t+1, t, [16*st + r for st in range(2) for r in range(4)], t+2,
                 lambda pi: [('c', N64 + 8*nt + 4*(pi//2) + pi % 2), ('m', N64 + 8*nt + 4*(pi//2) + 2 + pi % 2)])
    for nt in range(cfg.n64pre): n64(nt)
    a.wait_tag('e2')
    stamp(a, cfg, 'e2dr', 'F')
    D3 = WF
    if cfg.clrF:
        for st in range(2): a(f'buffer_load_dwordx4 {vr(D3+4*st,4)}, v{vL3}, {sr(SA,4)}, s{sI} offen offset:{256*st} sc1')
        for nt in range(cfg.n64pre, 4): n64(nt)
        a(f'v_mov_b32 v{t+2}, 0xffff')
        a(f'v_and_b32 v{t}, 1, v{vN}'); a(f'v_lshlrev_b32 v{t}, 15, v{t}'); a(f'v_or_b32 v{t}, 0x3f80, v{t}')
        for nt in range(4):
            a(f'v_bfi_b32 v{t+1}, v{t+2}, v{t}, v{N64+8*nt+2}'); a(f'v_cndmask_b32 v{N64+8*nt+2}, v{N64+8*nt+2}, v{t+1}, {sr(mK04,2)}')
        l3 = a.lab('e2poll'); l3ok = a.lab('e2ok')
        a(f's_mov_b32 s{T1}, 0')
        a.wait_tag('pl'); a(f'v_add_u32 v14, s{sW}, v{vCN}'); a(f'ds_write_b8 v14, v{vONE} offset:{4*kP}')
        a.wait(vm=0)
        a.label(l3)
        a(f'v_max3_u32 v{IN+8}, v{D3}, v{D3+1}, v{D3+2}'); a(f'v_max3_u32 v{IN+9}, v{D3+3}, v{D3+4}, v{D3+5}')
        a(f'v_max3_u32 v{IN+8}, v{IN+8}, v{D3+6}, v{D3+7}'); a(f'v_max_u32 v{IN+8}, v{IN+8}, v{IN+9}')
        a(f'v_cmp_eq_u32 vcc, -1, v{IN+8}')
        a(f's_cbranch_vccz {l3ok}')
        for st in range(2): a(f'buffer_load_dwordx4 {vr(D3+4*st,4)}, v{vL3}, {sr(SA,4)}, s{sI} offen offset:{256*st} sc1')
        a('s_waitcnt vmcnt(0)')
        a(f's_add_u32 s{T1}, s{T1}, 1'); a(f's_cmp_lt_u32 s{T1}, {cfg.spin}'); a(f's_cbranch_scc1 {l3}')
        a.label(l3ok)
    else:
        f0 = WK
        a(f'v_mov_b32 v{f0}, s{sNON}'); a(f'v_mov_b32 v{f0+1}, s{sNON+1}'); a(f'v_mov_b32 v{f0+2}, 0')
        a(f's_mul_i32 s{T0}, s2, {cfg.FS}'); a(f's_add_u32 s{T0}, s{T0}, {FLAGC}')
        a('s_mov_b64 exec, 1'); a(f'ds_add_rtn_u32 v{f0+3}, v{vCN}, v{vONE} offset:{cFC}')
        a(f'v_readfirstlane_b32 s{T1}, v{f0+3}')
        a(f's_cmp_eq_u32 s{T1}, 3'); a(f's_cselect_b32 s{T0}, s{T0}, {OOB}')
        a(f'buffer_store_dwordx2 {vr(f0,2)}, v{f0+2}, {sr(SA,4)}, s{T0} offen sc1')
        a('s_mov_b64 exec, -1')
        for nt in range(cfg.n64pre, 4): n64(nt)
        a(f'v_mov_b32 v{t+2}, 0xffff')
        a(f'v_and_b32 v{t}, 1, v{vN}'); a(f'v_lshlrev_b32 v{t}, 15, v{t}'); a(f'v_or_b32 v{t}, 0x3f80, v{t}')
        for nt in range(4):
            a(f'v_bfi_b32 v{t+1}, v{t+2}, v{t}, v{N64+8*nt+2}'); a(f'v_cndmask_b32 v{N64+8*nt+2}, v{N64+8*nt+2}, v{t+1}, {sr(mK04,2)}')
        lgc = a.lab('goC'); lpc = a.lab('pollC')
        a(f's_mul_i32 s{T0}, s{sW}, {64*cfg.FS}'); a(f's_add_u32 s{T0}, s{T0}, {FLAGC}'); a(f's_mov_b32 s{T1}, 0'); a(f'v_mul_u32_u24 v{IN+2}, {cfg.FS}, v1')
        if cfg.slpC0: a(f's_sleep {cfg.slpC0}')
        a.wait_tag('pl'); a(f'v_add_u32 v14, s{sW}, v{vCN}'); a(f'ds_write_b8 v14, v{vONE} offset:{4*kP}')
        a.wait(vm=0)
        a.label(lpc)
        a(f'buffer_load_dwordx2 {vr(IN,2)}, v{IN+2}, {sr(SA,4)}, s{T0} offen sc1')
        a(f'v_xor_b32 v{IN}, s{sNON}, v{IN}'); a(f'v_xor_b32 v{IN+1}, s{sNON+1}, v{IN+1}'); a(f'v_or_b32 v{IN}, v{IN}, v{IN+1}')
        a(f'v_cmp_ne_u32 vcc, 0, v{IN}')
        a(f's_cbranch_vccz {lgc}')
        a(f's_sleep {cfg.slpC}'); a(f's_add_u32 s{T1}, s{T1}, 1'); a(f's_cmp_lt_u32 s{T1}, {cfg.spin}'); a(f's_cbranch_scc1 {lpc}')
        a.label(lgc)
        lds_arrive(a, vCN, cGOC, vONE)
        lds_spin(a, vCN, cGOC, 4, IN+3, sleep=True)
        for st in range(2): a(f'buffer_load_dwordx4 {vr(D3+4*st,4)}, v{vL3}, {sr(SA,4)}, s{sI} offen offset:{256*st} sc1')
        a.wait(vm=0)
    stamp(a, cfg, 'e2ok', 'F'); stampv(a, cfg, 'polls', 'F', T1)
    VI, VR = IN + 8, IN + 12
    for k in range(4):
        a(f'v_cndmask_b32 v{VI+k}, v{D3+k}, 0, {sr(mK5,2)}'); a(f'v_cndmask_b32 v{VR+k}, v{D3+4+k}, 0, {sr(mK5,2)}')
    C5 = WK
    for dh in range(2):
        a(f'{MF16} {vr(C5+8*dh,4)}, {vr(D3,4)}, {vr(N8+12*dh+2,4)}, 0')
        a(f'{MF16} {vr(C5+8*dh+4,4)}, {vr(D3+4,4)}, {vr(N8+12*dh+6,4)}, 0')
    for dh in range(2):
        a(f'{MF16} {vr(C5+8*dh,4)}, {vr(VR,4)}, {vr(N8+12*dh+8,4)}, {vr(C5+8*dh,4)}')
        a(f'{MF16} {vr(C5+8*dh+4,4)}, {vr(VI,4)}, {vr(N8+12*dh,4)}, {vr(C5+8*dh+4,4)}')
    for k in range(8): a(f'v_cvt_pk_bf16_f32 v{PK+k}, v{C5+2*k}, v{C5+2*k+1}')
    for dh in range(2): a(f'ds_write_b128 v{vX3}, {vr(PK+4*dh,4)} offset:{FA + 2048*dh}')
    a.wait(lg=0)
    lds_arrive(a, vCN, cF3, vONE)
    a(f's_and_b32 s{T0}, s{sW}, 1'); a(f's_lshl_b32 s{T0}, s{T0}, 12'); a(f's_lshr_b32 s{T1}, s{sW}, 1'); a(f's_lshl_b32 s{T2}, s{T1}, 11'); a(f's_add_u32 s{T0}, s{T0}, s{T2}')
    a(f'v_add_u32 v{vX3}, s{T0}, v{vL16}')
    a(f's_lshl_b32 s{T1}, s{T1}, 2'); a(f'v_add_u32 v{IN+9}, s{T1}, v{vQ}'); a(f'v_lshrrev_b32 v{IN+10}, 1, v{vN}'); a(f'v_xor_b32 v{IN+9}, v{IN+9}, v{IN+10}')
    a(f'v_lshlrev_b32 v{IN+9}, 4, v{IN+9}'); a(f'v_lshl_add_u32 v{IN+9}, v{vN}, 7, v{IN+9}')
    a(f's_and_b32 s{T0}, s{sW}, 1'); a(f's_lshl_b32 s{T0}, s{T0}, 3'); a(f'v_add_u32 v{vL3}, s{T0}, v{IN+9}')
    lds_spin(a, vCN, cF3, 4, IN+8)
    for st in range(2): a(f'ds_read_b128 {vr(IN+4*st,4)}, v{vX3} offset:{FA + 1024*st}')
    for st in range(2):
        for nt in range(4):
            a(f'{MF16} {vr(C5+4*nt,4)}, {vr(IN+4*st,4)}, {vr(N64+8*nt+4*st,4)}, {vr(C5+4*nt,4) if st else 0}')
    for k in range(8): a(f'v_cvt_pk_bf16_f32 v{PK+k}, v{C5+2*k}, v{C5+2*k+1}')
    for nt in range(4): a(f'ds_write_b64 v{vL3}, {vr(PK+2*nt,2)} offset:{FB + 2048*nt}')
    a.wait(lg=0)
    a.label('L_FQ')
    stamp(a, cfg, 'Fend', 'F')
    a(f's_or_b32 s{T0}, s2, s{sW}'); a(f's_cmp_eq_u32 s{T0}, 0'); a(f's_cselect_b32 s{T0}, {NONCE}, {OOB}')
    a(f'v_mov_b32 v{IN}, s{sNON}'); a(f'v_mov_b32 v{IN+1}, s{sNON+1}'); a(f'v_mov_b32 v{IN+2}, 0'); a('s_mov_b64 exec, 1')
    a(f'buffer_store_dwordx2 {vr(IN,2)}, v{IN+2}, {sr(SA,4)}, s{T0} offen')
    a('s_mov_b64 exec, -1')
    a('s_barrier')
    if cfg.stamps: stamps_out(a, cfg, 10, SA)
    a('s_endpgm')
    a.label(lsp)
    a.hist, a.vq, a.lq = snap
    P1_, M3_, P2_, P4_ = IN, IN + 8, IN + 16, IN + 24
    for t2 in range(2):
        a(f'{MF16} {vr(P1_+4*t2,4)}, {vr(M2+12*t2,4)}, {vr(PK,4)}, 0')
        a(f'{MF16} {vr(M3_+4*t2,4)}, {vr(M2+12*t2+8,4)}, {vr(PK,4)}, 0')
        a(f'{MF16} {vr(P2_+4*t2,4)}, {vr(M2+12*t2+4,4)}, {vr(PK+4,4)}, 0')
        a(f'{MF16} {vr(P4_+4*t2,4)}, {vr(M2+12*t2,4)}, {vr(PK+4,4)}, 0')
    a('s_waitcnt vmcnt(0)')
    unpackW(a, HB, XS)
    a(f's_and_b32 s{T0}, s{sW}, 1'); a(f'v_or_b32 v{WK}, s{T0}, v{vN}'); a(f'v_cmp_eq_u32 vcc, 0, v{WK}')
    for k in range(16): a(f'v_cndmask_b32 v{HB+k}, v{WF+k}, v{HB+k}, vcc')
    for k in range(8):
        x, y = WK + 2*(k & 1), WK + 1 + 2*(k & 1)
        a(f'v_mul_f32 v{x}, v{P1_+k}, v{WF+2*k}'); a(f'v_mul_f32 v{y}, v{P1_+k}, v{WF+2*k+1}')
        a(f'v_fma_f32 v{x}, -v{M3_+k}, v{WF+2*k+1}, v{x}'); a(f'v_fmac_f32 v{y}, v{M3_+k}, v{WF+2*k}')
        a(f'v_fma_f32 v{x}, -v{P4_+k}, v{HB+2*k+1}, v{x}'); a(f'v_fmac_f32 v{y}, v{P4_+k}, v{HB+2*k}')
        a(f'v_fma_f32 v{P1_+k}, v{P2_+k}, v{HB+2*k}, v{x}'); a(f'v_fma_f32 v{M3_+k}, v{P2_+k}, v{HB+2*k+1}, v{y}')
    for k in range(4): a(f'v_cvt_pk_bf16_f32 v{PK+k}, v{P1_+2*k}, v{P1_+2*k+1}')
    for k in range(4): a(f'v_cvt_pk_bf16_f32 v{PK+4+k}, v{M3_+2*k}, v{M3_+2*k+1}')
    a('s_nop 1')
    a(f's_branch {ljn}')

HEADER = open('gated_mix__spectral_gfnet__dense_activation_mish__prompt.s.ref').read().split('; Override')[0] if True else ''
def build(cfg):
    Stream.gid = 0
    a = Stream(); prologue(a, cfg)
    g = Stream(); g.hist, g.vq, g.lq = list(a.hist), list(a.vq), list(a.lq); gen_G(g, cfg)
    f = Stream(); f.hist, f.vq, f.lq = list(a.hist), list(a.vq), list(a.lq); gen_F(f, cfg)
    assert g.text().count('s_barrier') == f.text().count('s_barrier'), 'barrier mismatch'
    return f"""{HEADER}; One persistent launch: 256 workgroups x 8 waves (waves 0-3: MLP, waves 4-7: spectral branch). Generated by my own script.
; @launch grid=(256,1,1) block=(512,1,1) lds={LDSZ}
.amdgcn_target "amdgcn-amd-amdhsa--gfx950"
.text
.globl {KN}
.p2align 8
.type {KN},@function
{KN}:
{a.text()}{g.text()}{f.text()}L_END:
    s_endpgm
.section .rodata,"a"
.p2align 6
.amdhsa_kernel {KN}
  .amdhsa_next_free_vgpr 256
  .amdhsa_next_free_sgpr 102
  .amdhsa_accum_offset 256
  .amdhsa_group_segment_fixed_size 0
  .amdhsa_kernarg_size 88
  .amdhsa_user_sgpr_count 2
  .amdhsa_user_sgpr_kernarg_segment_ptr 1
  .amdhsa_system_sgpr_workgroup_id_x 1
  .amdhsa_float_denorm_mode_32 3
.end_amdhsa_kernel
"""
if __name__ == '__main__':
    cfg = Cfg()
    out = sys.argv[1]
    for kv in sys.argv[2:]:
        k, v = kv.split('='); setattr(cfg, k, eval(v))
    open(out, 'w').write(build(cfg))
```

```python
import sys, struct
from sa import Stream
KN = 'gated_mix__spectral_gfnet__dense_activation_mish__prompt_kernel'
MB = 1 << 20
FLAGB = 65536; FLAGC = 196608
NONCE, FLAGA, E1, E2, WB, WBX, W2P, ACT, STAMP, WSZ = 0, 131072, 1*MB, 4*MB, 7*MB, 10*MB, 11*MB, 13*MB, 19*MB, 20*MB
OOB = 0x40000000
XP = 1040
NSLOT, SLAB = 6, 12288
FA = 0; FB = FA + 8192; GW = FB + 8192; GL = GW + 1024; CNT = GL + 256
XT = CNT + 128; RING = XT + 64*XP; LDSZ = RING + NSLOT*SLAB
REG = 86*2048
PST = XT; RED = RING
NPL = 7; assert PST + 4*NPL*2048 <= RING
assert RED + 49152 <= LDSZ <= 163840
cGO, cF1, cF2, cF3, cACT, cGOB, cFA, cFC, cGOC = 72, 76, 80, 84, 88, 92, 96, 100, 104
ALL4 = 0x01010101
kS = 6
kP = 5
kI = 4
kX, kL, kK, kE = 0, 1, 2, 3
def f32(x): return '0x%08x' % struct.unpack('<I', struct.pack('<f', x))[0]
def vr(a, n): return f'v[{a}:{a+n-1}]' if n > 1 else f'v{a}'
def sr(a, n): return f's[{a}:{a+n-1}]'
sX, sWR, sWI, sW1, sB1, sW2, sGWp, sOUT, sWS = 4, 6, 8, 12, 14, 16, 18, 20, 22
sG0, sJ, sWV, sW = 24, 25, 26, 27
SX, SA, SB, SC, SD, SE = 28, 32, 36, 40, 44, 48
T0, T1, T2, T3 = 52, 53, 54, 55
sNON = 56
sST = 80
MF16 = 'v_mfma_f32_16x16x32_bf16'; MF32 = 'v_mfma_f32_32x32x16_bf16'

class Cfg:
    stamps = False; dbgst = False
    gst = ['start', 'X', 'Kend', 'mish', 'go', 'drain', 'goB', 'g2end', 'fbar', 'end']
    fst = ['start', 'X', 'fft1', 'flag', 'prepoll', 'go', 'in', 'e2st', 'e2ok', 'Fend']
    kA = 9
    tslab = 250
    NP, NQ = 15, 7
    prioG = 0; prioF = 2; prioM = 3; prioG2 = 0
    spin = 200000
    conFirst = True; kIat = 15; gateEarly = False; slpC0 = 0; slpC = 8; S1 = 32768; S2 = 16384; SW = 8192; plAt = 8; hold = True; holdAt = 2; ford = 'g1F245PI.'; FS = 64; stageAt = 'e2'; diagx = False; abl = ''; pfl = 'sc1'; map84 = True; wEarly = True; pollB = 22; permEarly = False; pollAt = 1; m2early = False; n64pre = 2; slpA = 8
    clrF = True; p0 = 1; p1 = 4; np1 = 4

def srd(a, d, base, nbytes, off=None):
    if off is None:
        a(f's_mov_b32 s{d}, s{base}'); a(f's_mov_b32 s{d+1}, s{base+1}')
    else:
        a(f's_add_u32 s{d}, s{base}, {off}'); a(f's_addc_u32 s{d+1}, s{base+1}, 0')
    a(f's_mov_b32 s{d+2}, {nbytes}'); a(f's_mov_b32 s{d+3}, 0x20000')

def stamp(a, cfg, name, role=None):
    if not cfg.stamps: return
    L = cfg.gst if role == 'G' else cfg.fst
    if name in L:
        i = L.index(name)
        a(f's_memtime {sr(sST+2*i, 2)}' if name.startswith('c') and name[1:2] == '_' else f's_memrealtime {sr(sST+2*i, 2)}')
    if 'C' + name in L: a(f's_memtime {sr(sST+2*L.index("C" + name), 2)}')
def stampv(a, cfg, name, role, sreg):
    if not cfg.stamps: return
    L = cfg.gst if role == 'G' else cfg.fst
    if name in L: a(f's_mov_b32 s{sST+2*L.index(name)}, s{sreg}')

def stamps_out(a, cfg, n, srdws):
    if not cfg.stamps: return
    a('s_waitcnt lgkmcnt(0)')
    if cfg.dbgst:
        l = a.lab('nodbg')
        a(f's_cmp_lg_u32 s{sWV}, 0'); a(f's_cbranch_scc1 {l}')
        a('s_load_dwordx2 s[4:5], s[0:1], 72'); a('s_waitcnt lgkmcnt(0)')
        srd(a, SB, 4, 256)
        a('s_mov_b64 exec, 1'); a('v_mov_b32 v2, 0')
        a(f's_not_b32 s{T0}, s{sST}'); a(f'v_mov_b32 v3, s{T0}')
        a(f'buffer_atomic_umax v3, v2, {sr(SB,4)}, 0 offen')
        for i in range(n):
            a(f'v_mov_b32 v{4+i}, s{sST+2*i}')
            a(f'buffer_atomic_umax v{4+i}, v2, {sr(SB,4)}, 0 offen offset:{4+4*i}')
        a.label(l)
        return
    a(f's_lshl_b32 s{T0}, s2, 3'); a(f's_add_u32 s{T0}, s{T0}, s{sWV}'); a(f's_lshl_b32 s{T0}, s{T0}, 6'); a(f's_add_u32 s{T0}, s{T0}, {STAMP}')
    a('s_mov_b64 exec, 1'); a('v_mov_b32 v2, 0')
    for i in range(n):
        a(f'v_mov_b32 v3, s{sST+2*i}')
        a(f'buffer_store_dword v3, v2, {sr(srdws,4)}, s{T0} offen offset:{4*i}')
        a('s_nop 1')
    a('s_mov_b64 exec, -1')

def lds_spin(a, vaddr, off, target, vt, sleep=False):
    l = a.lab('spin')
    a.wait(lg=0)
    if sleep:
        l2 = a.lab('spin'); a(f's_branch {l2}'); a.label(l); a('s_sleep 1'); a.label(l2)
    else: a.label(l)
    a(f'ds_read_b32 v{vt}, v{vaddr} offset:{off}')
    a('s_waitcnt lgkmcnt(0)')
    a(f'v_readfirstlane_b32 s{T3}, v{vt}')
    a(f's_cmp_lt_u32 s{T3}, {target}')
    a(f's_cbranch_scc1 {l}')

def kf_spin(a, vaddr, idx, vt, sleep=False):
    l = a.lab('spin4')
    a.wait(lg=0)
    if sleep:
        l2 = a.lab('spin'); a(f's_branch {l2}'); a.label(l); a('s_sleep 1'); a.label(l2)
    else: a.label(l)
    a(f'ds_read_b32 v{vt}, v{vaddr} offset:{4*idx}')
    a('s_waitcnt lgkmcnt(0)')
    a(f'v_cmp_ne_u32 vcc, {ALL4}, v{vt}')
    a(f's_cbranch_vccnz {l}')

def lds_arrive(a, vaddr, off, vone):
    a('s_mov_b64 exec, 1')
    a(f'ds_add_u32 v{vaddr}, v{vone} offset:{off}')
    a('s_mov_b64 exec, -1')

def prologue(a, cfg):
    a('s_cmp_ge_u32 s2, 256'); a('s_cbranch_scc1 L_END')
    stamp(a, cfg, 'start', 'G'); stamp(a, cfg, 'c_start', 'G')
    a('s_load_dwordx16 s[4:19], s[0:1], 0')
    a('s_load_dwordx2 s[20:21], s[0:1], 64')
    a('s_load_dwordx2 s[22:23], s[0:1], 80')
    a('v_lshrrev_b32 v2, 6, v0'); a('v_and_b32 v1, 63, v0')
    a(f'v_readfirstlane_b32 s{sWV}, v2')
    if cfg.map84:
        a(f's_and_b32 s3, s2, 6'); a(f's_lshl_b32 s{sG0}, s3, 2'); a('s_lshr_b32 s3, s2, 5'); a(f's_add_u32 s{sG0}, s{sG0}, s3')
        a(f's_bfe_u32 s{sJ}, s2, 0x20003'); a('s_and_b32 s3, s2, 1'); a('s_lshl_b32 s3, s3, 2'); a(f's_add_u32 s{sJ}, s{sJ}, s3')
    else:
        a(f's_and_b32 s3, s2, 7'); a(f's_lshl_b32 s{sG0}, s3, 2'); a('s_lshr_b32 s3, s2, 6'); a(f's_add_u32 s{sG0}, s{sG0}, s3')
        a(f's_lshr_b32 s{sJ}, s2, 3'); a(f's_and_b32 s{sJ}, s{sJ}, 7')
    a('v_lshlrev_b32 v12, 4, v1')
    a(f's_and_b32 s{sW}, s{sWV}, 3')
    a(f'v_mov_b32 v4, {CNT}'); a('v_mov_b32 v5, 0'); a('v_and_b32 v3, 31, v1'); a('v_lshl_add_u32 v3, v3, 2, v4')
    a('ds_write_b32 v3, v5')
    a('s_waitcnt lgkmcnt(0)'); a('s_barrier')
    a(f's_cmp_ge_u32 s{sWV}, 4'); a('s_cbranch_scc1 L_F')

def nonce(a):
    a(f's_mul_i32 s{sNON}, s{sNON}, 0x9e3779b1'); a(f's_add_u32 s{sNON}, s{sNON}, 0x7f4a7c15')
    a(f's_mul_i32 s{sNON+1}, s{sNON+1}, 0x85ebca6b'); a(f's_add_u32 s{sNON+1}, s{sNON+1}, 0xc2b2ae35')

def gen_G(a, cfg):
    vCN, vD, vL16 = 4, 5, 12
    vP, vQ0, vQ1, vPW, vSV = 13, 14, 15, 8, 9
    vT, vX0, vX1 = 10, 11, 2
    PR, ACC2, QR = 16, 136, 200
    ACC1, ACCX, FR, TM = 136, 184, 16, 232
    BI = 56
    RW = NSLOT*3072
    sU0, sNU, sRH, sFH, sSL = 58, 59, 60, 61, 62
    sAO = 63
    sK = 66
    if cfg.prioG: a(f's_setprio {cfg.prioG}')
    a(f's_lshl_b32 s{T0}, s{sW}, 9'); a(f's_add_u32 s{T0}, s{T0}, s{sG0}'); a(f's_lshl_b32 s{T0}, s{T0}, 10')
    a(f's_mul_i32 s{T1}, s{sW}, {16*XP}')
    srd(a, SX, sX, 2*MB)
    a(f's_load_dwordx2 {sr(sNON,2)}, {sr(sWS,2)}, {NONCE}')
    a(f'v_add_u32 v{vPW}, s{sW}, v{vCN}'); a(f'v_mov_b32 v{vSV}, 1')
    def post(i): a(f'ds_write_b8 v{vPW}, v{vSV} offset:{4*i}')
    for i in range(16):
        a(f's_add_u32 m0, s{T1}, {XT + i*XP}')
        if i: a(f's_add_u32 s{T0}, s{T0}, 32768')
        a(f'buffer_load_dwordx4 v12, {sr(SX,4)}, s{T0} offen lds', tag='x')
        if i == cfg.kIat: post(kI)
    srd(a, SA, sW1, 512*2752)
    a(f's_min_u32 s{sU0}, s{sJ}, 3'); a(f's_mul_i32 s{T0}, s{sJ}, 5'); a(f's_add_u32 s{sU0}, s{sU0}, s{T0}')
    a(f's_cmp_lt_u32 s{sJ}, 3'); a(f's_cselect_b32 s{sNU}, 6, 5')
    a(f's_and_b32 s{sRH}, s{sW}, 1'); a(f's_lshr_b32 s{sFH}, s{sW}, 1')
    a(f's_mul_i32 s{T2}, s{sFH}, 3')
    a(f's_add_u32 s{T0}, s{sU0}, s{T2}'); a(f's_lshl_b32 s{T0}, s{T0}, 6'); a(f's_sub_u32 s{T3}, s{sNU}, s{T2}')
    t = TM
    for u in range(3):
        a(f'v_add_u32 v{t}, {64*u}, v1')
        a(f'v_mul_u32_u24 v{t+1}, 5462, v{t}'); a(f'v_lshrrev_b32 v{t+1}, 16, v{t+1}')
        a(f'v_mul_u32_u24 v{t+2}, 12, v{t+1}'); a(f'v_sub_u32 v{t}, v{t}, v{t+2}')
        a(f'v_lshrrev_b32 v{t+2}, 2, v{t}'); a(f'v_cmp_gt_u32 vcc, s{T3}, v{t+2}')
        a(f'v_mul_u32_u24 v{t+1}, 2752, v{t+1}'); a(f'v_lshl_add_u32 v{t}, v{t}, 4, v{t+1}'); a(f'v_add_u32 v{t}, s{T0}, v{t}')
        a(f'v_mov_b32 v{t+1}, {OOB}')
        if u: a(f'v_subrev_u32 v{t}, {1024*u}, v{t}')
        a(f'v_cndmask_b32 v{vD+u}, v{t+1}, v{t}, vcc')
    a(f's_mul_i32 s{sSL}, s{sRH}, {256*2752}')
    a(f's_mul_i32 s{T1}, s{sW}, {RW}')
    def dma_m0(s):
        if s <= 15: a(f's_add_u32 m0, s{T1}, {RING + (s % NSLOT)*3072}')
    def dma_so(s):
        if 0 < s <= 15: a(f's_add_u32 s{sSL}, s{sSL}, {16*2752}')
    def dma1(s, u):
        if s <= 15: a(f'buffer_load_dwordx4 v{vD+u}, {sr(SA,4)}, s{sSL} offen offset:{1024*u} lds', tag=f'w{s}')
    def dma(s):
        dma_m0(s); dma_so(s)
        for u in range(3): dma1(s, u)
    dma(0)
    srd(a, SB, sB1, 2752)
    a(f'v_and_b32 v{t}, 31, v1'); a(f'v_lshlrev_b32 v{t}, 1, v{t}'); a(f'v_cmp_gt_u32 vcc, 32, v1')
    a(f'v_mov_b32 v{t+1}, {OOB}'); a(f'v_cndmask_b32 v{t}, v{t+1}, v{t}, vcc')
    for T in range(3):
        a(f's_add_u32 s{T3}, s{T2}, {T}'); a(f's_cmp_lt_u32 s{T3}, s{sNU}')
        a(f's_cselect_b32 s{T0}, 0, {OOB}')
        a(f's_add_u32 s{T3}, s{T3}, s{sU0}')
        a(f's_lshl_b32 s{sAO+T}, s{T3}, 12'); a(f's_add_u32 s{sAO+T}, s{sAO+T}, s{T0}')
        a(f's_lshl_b32 s{T3}, s{T3}, 6'); a(f's_add_u32 s{T3}, s{T3}, s{T0}')
        a(f'buffer_load_ushort v{BI+4*T}, v{t}, {sr(SB,4)}, s{T3} offen')
    for s in range(1, cfg.p0): dma(s)
    a(f's_mul_i32 s{T0}, s{sG0}, {REG}'); a(f's_add_u32 s{T0}, s{T0}, {ACT}')
    srd(a, SC, sWS, REG, f's{T0}')
    a(f's_mul_i32 s{T0}, s{sJ}, {REG}'); a(f's_add_u32 s{T0}, s{T0}, {W2P}')
    srd(a, SD, sWS, REG, f's{T0}')
    srd(a, SE, sOUT, 2*MB)
    a(f's_lshl_b32 s{T0}, s{sRH}, 10'); a(f'v_add_u32 v{vQ0}, s{T0}, v{vL16}')
    a(f'v_lshrrev_b32 v{t}, 5, v1'); a(f'v_lshlrev_b32 v{t}, 3, v{t}'); a(f'v_bfe_u32 v{t+1}, v1, 2, 2'); a(f'v_add_u32 v{t}, v{t}, v{t+1}')
    a(f'v_mul_u32_u24 v{t}, 192, v{t}')
    a(f'v_bfe_u32 v{t+2}, v1, 4, 1'); a(f'v_lshl_add_u32 v{t}, v{t+2}, 5, v{t}')
    a(f'v_and_b32 v{t+2}, 3, v1'); a(f'v_lshl_add_u32 v{t}, v{t+2}, 3, v{t}')
    a(f's_add_u32 s{T0}, s{T1}, {RING}'); a(f'v_add_u32 v{vT}, s{T0}, v{t}')
    a(f'v_add_u32 v{vP}, s{T0}, v{vL16}')
    a(f's_xor_b32 s{T0}, s{sW}, 1'); a(f's_mul_i32 s{T0}, s{T0}, {RW}'); a(f's_add_u32 s{T0}, s{T0}, {RING}'); a(f'v_add_u32 v{vQ1}, s{T0}, v{vL16}')
    a(f'v_and_b32 v{t}, 31, v1'); a(f'v_mul_u32_u24 v{t}, {XP}, v{t}'); a(f'v_lshrrev_b32 v{t+1}, 5, v1'); a(f'v_lshl_add_u32 v{t}, v{t+1}, 4, v{t}')
    a(f's_mul_i32 s{T0}, s{sRH}, {32*XP + 512}'); a(f'v_add_u32 v{vX0}, s{T0}, v{t}')
    a(f's_mul_i32 s{T0}, s{sRH}, {512 - 32*XP}'); a(f's_add_u32 s{T0}, s{T0}, {32*XP}'); a(f'v_add_u32 v{vX1}, s{T0}, v{t}')
    for T in range(3):
        for k in range(1, 4): a(f'v_mov_b32 v{BI+4*T+k}, 0')
    a(f'v_cmp_gt_u32 vcc, 32, v1'); a(f'v_mov_b32 v{t}, 0x3f80'); a(f'v_mov_b32 v{BI+13}, 0'); a(f'v_mov_b32 v{BI+14}, 0'); a(f'v_mov_b32 v{BI+15}, 0')
    a(f'v_cndmask_b32 v{BI+12}, 0, v{t}, vcc')
    a(f's_mov_b32 s{sK}, {f32(-1.4426950408889634)}'); a(f's_mov_b32 s{sK+1}, {f32(-1.4426950408889634)}')
    a(f's_mov_b32 s{sK+2}, 0.5'); a(f's_mov_b32 s{sK+3}, 0.5')
    nonce(a)
    stamp(a, cfg, 'iss', 'G')
    a.wait_tag('x'); post(kX)
    stamp(a, cfg, 'X', 'G')
    for s in range(cfg.p0, cfg.p1): dma(s)
    for T in range(3): a(f'{MF32} {vr(ACC1+16*T,16)}, {vr(BI+4*T,4)}, {vr(BI+12,4)}, 0')
    def reads(s):
        if s > 15: return [None]*8
        f = FR + 20*(s & 1)
        L = [f'ds_read_b128 {vr(f,4)}, v{vX0} offset:{XT + s*32}', f'ds_read_b128 {vr(f+4,4)}, v{vX1} offset:{XT + s*32}']
        for T in range(3):
            for hf in range(2):
                L.append(f'ds_read_b64_tr_b16 {vr(f+8+4*T+2*hf,2)}, v{vT} offset:{(s % NSLOT)*3072 + 768*hf + 64*T}')
        return L
    def rd(s, i, j):
        for x in reads(s)[i:j]:
            if x: a(x, tag=f'r{s}')
    def mf(s, T, rt):
        f = FR + 20*(s & 1); d = (ACCX if rt else ACC1) + 16*T
        a(f'{MF32} {vr(d,16)}, {vr(f+8+4*T,4)}, {vr(f+4*rt,4)}, {vr(d,16) if (s or not rt) else 0}')
    kf_spin(a, vCN, kX, TM)
    a.wait_tag('w0')
    rd(0, 0, 8)
    n = NSLOT - 1
    if not cfg.hold:
        for s in range(cfg.p1, n): dma(s)
    nxt = max(cfg.p1, n) if not cfg.hold else cfg.p1
    for s in range(16):
        stamp(a, cfg, f'k{s}', 'G')
        if cfg.hold and s == cfg.holdAt:
            kf_spin(a, vCN, kS, TM, sleep=True)
            stamp(a, cfg, 'kS', 'G')
            while nxt < s + n: dma(nxt); nxt += 1
        ld = nxt if (nxt == s + n and (not cfg.hold or s >= cfg.holdAt)) else 99
        a.wait_ltag(f'r{s}')
        mf(s, 0, 0)
        a.wait_tag(f'w{s+1}')
        if s == 14: post(kL)
        rd(s+1, 0, 2)
        mf(s, 0, 1); rd(s+1, 2, 4); dma_m0(ld)
        mf(s, 1, 0); rd(s+1, 4, 6); dma_so(ld)
        mf(s, 1, 1); rd(s+1, 6, 8); dma1(ld, 0)
        mf(s, 2, 0); dma1(ld, 1)
        mf(s, 2, 1); dma1(ld, 2)
        if ld != 99: nxt += 1
    assert nxt >= 16
    stamp(a, cfg, 'Kl', 'G')
    if cfg.prioM != cfg.prioG: a(f's_setprio {cfg.prioM}')
    for q in range(12): a(f'ds_write_b128 v{vP}, {vr(ACCX+4*q,4)} offset:{1024*q}')
    a.wait(lg=0); post(kK)
    kf_spin(a, vCN, kK, TM)
    for q in range(12): a(f'ds_read_b128 {vr(ACCX+4*q,4)}, v{vQ1} offset:{1024*q}')
    stamp(a, cfg, 'Kend', 'G')
    a(f'v_and_b32 v{t+1}, 31, v1'); a(f's_lshl_b32 s{T0}, s{sFH}, 4'); a(f'v_xor_b32 v{t+1}, s{T0}, v{t+1}')
    a(f'v_lshrrev_b32 v{t+2}, 5, v1'); a(f'v_lshlrev_b32 v{t+2}, 9, v{t+2}'); a(f'v_lshl_add_u32 v{vP}, v{t+1}, 4, v{t+2}')
    a(f's_lshl_b32 s{T0}, s{sW}, 11'); a(f'v_add_u32 v{vP}, s{T0}, v{vP}')
    a(f's_mul_i32 s{T1}, s{sW}, {NPL*2048}')
    pend = []
    for i in range(cfg.NP):
        r = PR + 8*i
        pend.append([f's_mov_b32 s{sSL}, {i*8192}', f'buffer_load_dwordx4 {vr(r,4)}, v{vP}, {sr(SD,4)}, s{sSL} offen {cfg.pfl}'])
        pend.append([f'buffer_load_dwordx4 {vr(r+4,4)}, v{vP}, {sr(SD,4)}, s{sSL} offen offset:1024 {cfg.pfl}'])
    def popP(n):
        for _ in range(n):
            if pend:
                for l in pend.pop(0): a(l, tag='p')
    for T in range(3):
        for hb in range(2):
            h = ACC1 + 16*T + 8*hb
            e, u, o = TM, TM + 8, TM + 16 + 4*((2*T+hb) % 2)
            for k in range(4): a(f'v_pk_add_f32 {vr(h+2*k,2)}, {vr(h+2*k,2)}, {vr(h+48+2*k,2)}')
            for k in range(4): a(f'v_pk_mul_f32 {vr(e+2*k,2)}, {vr(h+2*k,2)}, {sr(sK,2)}')
            for k in range(8): a(f'v_exp_f32 v{e+k}, v{e+k}')
            for k in range(4): a(f'v_pk_add_f32 {vr(u+2*k,2)}, {vr(e+2*k,2)}, {sr(sK+2,2)}')
            for k in range(4): a(f'v_pk_fma_f32 {vr(e+2*k,2)}, {vr(e+2*k,2)}, {vr(e+2*k,2)}, {vr(u+2*k,2)}')
            for k in range(8): a(f'v_rcp_f32 v{e+k}, v{e+k}')
            for k in range(4): a(f'v_pk_mul_f32 {vr(e+2*k,2)}, {vr(e+2*k,2)}, {vr(u+2*k,2)} clamp')
            for k in range(4): a(f'v_pk_mul_f32 {vr(e+2*k,2)}, {vr(e+2*k,2)}, {vr(h+2*k,2)}')
            for k in range(4): a(f'v_cvt_pk_bf16_f32 v{o+k}, v{e+2*k}, v{e+2*k+1}')
            a(f'buffer_store_dwordx4 {vr(o,4)}, v{vQ0}, {sr(SC,4)}, s{sAO+T} offen offset:{2048*hb} sc1', tag='act')
    stamp(a, cfg, 'mish', 'G')
    if cfg.prioM != cfg.prioG2: a(f's_setprio {cfg.prioG2}')
    lds_spin(a, vCN, cGO, 4, TM, sleep=True); stamp(a, cfg, 'go', 'G')
    popP(cfg.np1)
    srd(a, SA, sWS, WSZ)
    a(f'v_mov_b32 v{TM+8}, 1'); a(f'v_mov_b32 v{TM+10}, s{sNON}'); a(f'v_mov_b32 v{TM+11}, s{sNON+1}')
    a(f'v_and_b32 v{TM+12}, 7, v1'); a(f'v_lshlrev_b32 v{TM+12}, 7, v{TM+12}'); a(f'v_mov_b32 v{TM+13}, 0')
    a(f's_lshl_b32 s{T0}, s{sG0}, 10'); a(f's_add_u32 s{T0}, s{T0}, {FLAGB}'); a(f's_lshl_b32 s{T2}, s{sJ}, 7'); a(f's_add_u32 s{T2}, s{T2}, s{T0}')
    a.wait_tag('act')
    stamp(a, cfg, 'drain', 'G')
    a('s_mov_b64 exec, 1'); a(f'ds_add_rtn_u32 v{TM+9}, v{vCN}, v{TM+8} offset:{cACT}'); a('s_mov_b64 exec, -1')
    a(f'v_readfirstlane_b32 s{T3}, v{TM+9}')
    lnp = a.lab('nopollB'); lpb = a.lab('pollB'); lgb = a.lab('goB')
    a(f's_cmp_eq_u32 s{T3}, 3'); a(f's_cselect_b32 s{T2}, s{T2}, {OOB}'); a(f's_mov_b32 s{sNU}, s{T3}')
    a('s_mov_b64 exec, 1'); a(f'buffer_store_dwordx2 {vr(TM+10,2)}, v{TM+13}, {sr(SA,4)}, s{T2} offen sc1'); a('s_mov_b64 exec, -1')
    done = cfg.np1
    a(f's_cmp_eq_u32 s{sNU}, 3'); a(f's_cselect_b32 s{T3}, s{T0}, {OOB}')
    for k in range(cfg.np1, 2*cfg.NP):
        if k == cfg.pollB: a(f'buffer_load_dwordx2 {vr(TM,2)}, v{TM+12}, {sr(SA,4)}, s{sNU+11} offen sc1', tag='pb')
        if k == cfg.np1: a(f's_mov_b32 s{sNU+11}, s{T3}')
        popP(1)
    stamp(a, cfg, 'piss', 'G')
    a(f's_mov_b32 s{sU0}, 0')
    a(f's_cmp_lg_u32 s{sNU}, 3'); a(f's_cbranch_scc1 {lnp}')
    vq = list(a.vq)
    a.wait_tag('pb')
    a.label(lpb)
    a(f'v_xor_b32 v{TM}, s{sNON}, v{TM}'); a(f'v_xor_b32 v{TM+1}, s{sNON+1}, v{TM+1}'); a(f'v_or_b32 v{TM}, v{TM}, v{TM+1}')
    a(f'v_cmp_ne_u32 vcc, 0, v{TM}'); a(f's_cbranch_vccz {lgb}')
    a(f'buffer_load_dwordx2 {vr(TM,2)}, v{TM+12}, {sr(SA,4)}, s{T0} offen sc1')
    a('s_waitcnt vmcnt(0)')
    a(f's_add_u32 s{sU0}, s{sU0}, 1'); a(f's_cmp_lt_u32 s{sU0}, {cfg.spin}'); a(f's_cbranch_scc1 {lpb}')
    a.label(lgb)
    lds_arrive(a, vCN, cGOB, TM+8)
    a.label(lnp)
    a.vq = vq
    a(f's_lshl_b32 s{T0}, s{sW}, 11'); a(f's_lshl_b32 s{T2}, s{sRH}, 10'); a(f's_add_u32 s{T0}, s{T0}, s{T2}')
    a(f'v_add_u32 v{vQ0}, s{T0}, v{vL16}'); a(f'v_xor_b32 v{vQ1}, 1024, v{vQ0}')
    a(f'v_add_u32 v{vP}, s{T1}, v{vL16}')
    lds_spin(a, vCN, cGOB, 1, TM + 2, sleep=True)
    stamp(a, cfg, 'goB', 'G')
    def loadP(i):
        r = PR + 8*(i % cfg.NP)
        for hb in range(2): a(f'ds_read_b128 {vr(r+4*hb,4)}, v{vP} offset:{PST + (i-cfg.NP)*2048 + 1024*hb}')
    def loadQ(i, hb):
        k = i % cfg.NQ; r = QR + 8*k
        if hb == 0: a(f's_mov_b32 s{sSL}, {i*8192}')
        a(f'buffer_load_dwordx4 {vr(r+4*hb,4)}, v{vQ0+hb}, {sr(SC,4)}, s{sSL} offen sc1')
    for i in range(cfg.NQ - 1):
        loadQ(i, 0); loadQ(i, 1)
    NS = 22
    for i in range(NS):
        p = PR + 8*(i % cfg.NP); q = QR + 8*(i % cfg.NQ)
        stamp(a, cfg, f'g{i}', 'G')
        for mt in range(2):
            for nt in range(2):
                d = ACC2 + 32*mt + 16*nt
                a(f'{MF32} {vr(d,16)}, {vr(p+4*mt,4)}, {vr(q+4*nt,4)}, {vr(d,16) if i else 0}')
                if nt == 0 and i + cfg.NQ - 1 < NS: loadQ(i + cfg.NQ - 1, mt)
        if i == cfg.plAt: kf_spin(a, vCN, kP, 2)
        if cfg.plAt <= i < cfg.plAt + NPL: loadP(cfg.NP + i - cfg.plAt)
    stamp(a, cfg, 'g2end', 'G')
    def quad(k, mt, rr): return ACC2 + 32*mt + 16*(k & 1) + 4*(2*(k >> 1) + rr)
    for k in range(1, 4):
        a(f's_xor_b32 s{T0}, s{sW}, {k}'); a(f's_mul_i32 s{T0}, s{T0}, 12288'); a(f's_add_u32 s{T0}, s{T0}, {RED}'); a(f'v_add_u32 v{2+k}, s{T0}, v{vL16}')
    for k in range(1, 4):
        for mt in range(2):
            for rr in range(2):
                a(f'ds_write_b128 v{2+k}, {vr(quad(k,mt,rr),4)} offset:{(k-1)*4096 + (2*mt+rr)*1024}')
    vRA, vAA, vGA, vO = 6, 7, 8, 9
    a(f's_mul_i32 s{T0}, s{sW}, 12288'); a(f's_add_u32 s{T0}, s{T0}, {RED}'); a(f'v_add_u32 v{vRA}, s{T0}, v{vL16}')
    a(f'v_and_b32 v10, 31, v1'); a(f's_and_b32 s{T0}, s{sW}, 1'); a(f's_lshl_b32 s{T0}, s{T0}, 5'); a(f'v_add_u32 v10, s{T0}, v10')
    a(f'v_lshrrev_b32 v11, 5, v1'); a(f's_lshr_b32 s{T0}, s{sW}, 1'); a(f's_lshl_b32 s{T0}, s{T0}, 2'); a(f'v_add_u32 v11, s{T0}, v11')
    a(f'v_lshlrev_b32 v{vGA}, 2, v10'); a(f'v_add_u32 v{vGA}, {GL}, v{vGA}')
    a(f'v_bfe_u32 v13, v10, 1, 3'); a('v_xor_b32 v13, v13, v11'); a(f'v_lshlrev_b32 v{vAA}, 7, v10'); a(f'v_lshl_add_u32 v{vAA}, v13, 4, v{vAA}'); a(f'v_add_u32 v{vAA}, {FB}, v{vAA}')
    a(f'v_xor_b32 v13, 32, v{vAA}')
    a(f'v_lshlrev_b32 v{vO}, 15, v10'); a(f'v_lshl_add_u32 v{vO}, v11, 7, v{vO}')
    a(f's_lshl_b32 s{T1}, s{sG0}, 10'); a(f's_lshl_b32 s{T0}, s{sJ}, 4'); a(f's_add_u32 s{T1}, s{T1}, s{T0}')
    a.wait(lg=0); a('s_barrier')
    stamp(a, cfg, 'fbar', 'G')
    RD = PR
    for k in range(1, 4):
        for mq in range(4): a(f'ds_read_b128 {vr(RD+16*(k-1)+4*mq,4)}, v{vRA} offset:{(k-1)*4096 + mq*1024}')
    AA = PR + 48
    a(f'ds_read_b128 {vr(AA,4)}, v{vAA}'); a(f'ds_read_b128 {vr(AA+4,4)}, v13'); a(f'ds_read_b32 v14, v{vGA}')
    for k in range(1, 4):
        for mt in range(2):
            for rr in range(2):
                for pp in range(2):
                    d = quad(0, mt, rr) + 2*pp; s_ = RD + 16*(k-1) + 4*(2*mt+rr) + 2*pp
                    a(f'v_pk_add_f32 {vr(d,2)}, {vr(d,2)}, {vr(s_,2)}')
    U = PR + 56
    for rr in range(2):
        for k in range(4):
            lo, hi = U + 2*k, U + 2*k + 1
            b0, b1 = quad(0, 0, rr) + k, quad(0, 1, rr) + k
            a(f'v_lshlrev_b32 v{lo}, 16, v{AA+4*rr+k}'); a(f'v_and_b32 v{hi}, 0xffff0000, v{AA+4*rr+k}')
            a(f'v_sub_f32 v{lo}, v{lo}, v{b0}'); a(f'v_sub_f32 v{hi}, v{hi}, v{b1}')
            a(f'v_fmac_f32 v{b0}, v14, v{lo}'); a(f'v_fmac_f32 v{b1}, v14, v{hi}')
        for k in range(4): a(f'v_cvt_pk_bf16_f32 v{U+8+4*rr+k}, v{quad(0,0,rr)+k}, v{quad(0,1,rr)+k}')
        a(f'buffer_store_dwordx4 {vr(U+8+4*rr,4)}, v{vO}, {sr(SE,4)}, s{T1} offen offset:{256*rr}')
    stamp(a, cfg, 'end', 'G')
    if cfg.stamps and 'end2' in cfg.gst:
        a('s_waitcnt vmcnt(0)'); stamp(a, cfg, 'end2', 'G')
    if cfg.stamps:
        stamp(a, cfg, 'c_end', 'G'); stampv(a, cfg, 'retry', 'G', sU0); srd(a, SA, sWS, WSZ); stamps_out(a, cfg, 10, SA)
    a('s_endpgm')

def cs_pairs(a, base, step, mults, tmp, outs):
    for g in range(len(mults)//4):
        an, c, s = tmp, tmp + 4, tmp + 8
        for k in range(4):
            m = mults[4*g+k]
            if m: a(f'v_fmamk_f32 v{an+k}, v{step}, {f32(float(m))}, v{base}')
        src = lambda k: an + k if mults[4*g+k] else base
        for k in range(4): a(f'v_cos_f32 v{c+k}, v{src(k)}')
        for k in range(4): a(f'v_sin_f32 v{s+k}, v{src(k)}')
        L = [(kind, dst, p) for p in range(2) for kind, dst in outs(2*g+p)]
        L.sort(key=lambda x: x[0] != 'c')
        for kind, dst, p in L:
            if kind == 'c': a(f'v_cvt_pk_bf16_f32 v{dst}, v{c+2*p}, v{c+2*p+1}')
            elif kind == 's': a(f'v_cvt_pk_bf16_f32 v{dst}, v{s+2*p}, v{s+2*p+1}')
            else: a(f'v_cvt_pk_bf16_f32 v{dst}, -v{s+2*p}, -v{s+2*p+1}')

def gen_F(a, cfg):
    a0 = a
    vN, vQ, vL16, vCN, vONE = 2, 3, 12, 4, 5
    vE2, vMA, vMB, vNf, vQf, vN4 = 6, 7, 8, 9, 10, 15
    M1, M2, M4, M5, N8, N64, WF, IN, WK, PK = 16, 48, 72, 96, 128, 152, 184, 200, 232, 248
    sB, sK1, sROT, sPAIR = 58, 59, 60, 61
    mK0, mK5, mK04 = 62, 64, 66
    sWD = 68; sTK = 69
    sE2, sE1, sIH, sKH = 70, 72, 74, 75
    a0.label('L_F')
    if cfg.prioF and not cfg.conFirst: a(f's_setprio {cfg.prioF}')
    t = WK
    a(f'v_and_b32 v{vN}, 15, v1'); a(f'v_lshrrev_b32 v{vQ}, 4, v1')
    L2 = M1
    LW = M4
    LM = M4 + 16
    vSG, vWD, vMD, vBL, vBU = M5, M5 + 1, M5 + 2, M5 + 3, M5 + 4
    mZ, mP = 76, 78
    vK, vC, vK1 = t+2, t+3, t+4
    def wperm_loads(a):
        a(f's_cmp_eq_u32 s{sG0}, 0'); a(f's_cselect_b64 {sr(mZ,2)}, -1, 0')
        a(f's_lshl_b32 s{T0}, s{sJ}, 8'); a(f's_lshl_b32 s{T2}, s{sW}, 6')
        for up in range(2):
            if up: a(f'v_sub_u32 v{vC}, 63, v1')
            a(f'v_and_b32 v{vK}, 7, v{vC if up else 1}'); a(f'v_add_u32 v{vC}, s{T2}, v{vC if up else 1}')
            a(f'v_cmp_lt_u32 vcc, 4, v{vK}'); a(f's_and_b64 vcc, vcc, {sr(mZ,2)}')
            a(f'v_mov_b32 v{t+6}, 32'); a(f'v_mov_b32 v{vK1}, s{sG0}'); a(f'v_cndmask_b32 v{vK1}, v{vK1}, v{t+6}, vcc')
            a(f'v_add_u32 v{vK1}, s{T0}, v{vK1}')
            if not up:
                a(f'v_mul_u32_u24 v{t+6}, 514, v{vK1}'); a(f'v_lshl_add_u32 v{t+6}, v{vC}, 1, v{t+6}')
                for r in range(4):
                    a(f's_mov_b32 s{T1}, {r*64*514}')
                    a(f'buffer_load_ushort v{LW+r}, v{t+6}, {sr(SC,4)}, s{T1} offen')
                    a(f'buffer_load_ushort v{LW+4+r}, v{t+6}, {sr(SD,4)}, s{T1} offen')
        a(f'v_and_b32 v{t+7}, 3, v{vK}'); a(f'v_cmp_eq_u32 vcc, 0, v{t+7}'); a(f's_and_b64 {sr(mP,2)}, vcc, {sr(mZ,2)}')
        a(f'v_sub_u32 v{t+7}, 2048, v{vK1}'); a(f'v_add_u32 v{t+8}, 32, v{vK1}'); a(f'v_cndmask_b32 v{t+7}, v{t+7}, v{t+8}, {sr(mP,2)}')
        a(f'v_mov_b32 v{t+8}, -64'); a(f'v_mov_b32 v{t+9}, 64'); a(f'v_cndmask_b32 v{t+8}, v{t+8}, v{t+9}, {sr(mP,2)}')
        a(f'v_sub_u32 v{t+9}, 256, v{vC}'); a(f'v_cndmask_b32 v{t+9}, v{t+9}, v{vC}, {sr(mP,2)}'); a(f'v_lshlrev_b32 v{t+9}, 1, v{t+9}')
        a(f'v_mov_b32 v{vSG}, 0x80000000'); a(f'v_cndmask_b32 v{vSG}, v{vSG}, 0, {sr(mP,2)}')
        for r in range(4):
            a(f'v_and_b32 v{t+10+r}, 2047, v{t+7}'); a(f'v_mul_u32_u24 v{t+10+r}, 514, v{t+10+r}'); a(f'v_add_u32 v{t+10+r}, v{t+10+r}, v{t+9}')
            if r < 3: a(f'v_add_u32 v{t+7}, v{t+7}, v{t+8}')
            a(f'buffer_load_ushort v{LW+8+r}, v{t+10+r}, {sr(SC,4)}, 0 offen')
            a(f'buffer_load_ushort v{LW+12+r}, v{t+10+r}, {sr(SD,4)}, 0 offen')
        a(f'v_lshrrev_b32 v{t}, 2, v1'); a(f'v_and_b32 v{t+1}, 3, v1')
        a(f'v_and_b32 v{t+2}, 1, v{t}'); a(f'v_lshrrev_b32 v{t+3}, 1, v{t}')
        a(f'v_lshlrev_b32 v{t+4}, 5, v{t+2}'); a(f'v_mov_b32 v{t+5}, s{sG0}'); a(f'v_cndmask_b32 v{t+4}, v{t+5}, v{t+4}, {sr(mZ,2)}')
        a(f'v_cndmask_b32 v{t+5}, v{t+2}, v{t+3}, {sr(mZ,2)}'); a(f'v_lshlrev_b32 v{t+5}, 9, v{t+5}')
        a(f'v_lshl_add_u32 v{t+4}, v{t+1}, 6, v{t+4}'); a(f'v_add_u32 v{t+4}, s{T0}, v{t+4}')
        a(f'v_sub_u32 v{t+6}, 2048, v{t+4}'); a(f'v_and_b32 v{t+6}, 2047, v{t+6}')
        a(f'v_mul_u32_u24 v{t+4}, 514, v{t+4}'); a(f'v_add_u32 v{t+4}, v{t+4}, v{t+5}')
        a(f'v_mul_u32_u24 v{t+6}, 514, v{t+6}'); a(f'v_add_u32 v{t+6}, v{t+6}, v{t+5}')
        a(f's_cmp_eq_u32 s{sG0}, 0'); a(f's_cselect_b32 s{T1}, 16, 8'); a(f's_cmp_eq_u32 s{sW}, 3'); a(f's_cselect_b32 s{T1}, s{T1}, 0')
        a(f'v_cmp_gt_u32 {sr(mP,2)}, s{T1}, v1'); a(f'v_mov_b32 v{t+7}, {OOB}')
        a(f'v_cndmask_b32 v{t+4}, v{t+7}, v{t+4}, {sr(mP,2)}'); a(f'v_cndmask_b32 v{t+6}, v{t+7}, v{t+6}, {sr(mP,2)}')
        a(f'buffer_load_ushort v{LM}, v{t+4}, {sr(SC,4)}, 0 offen'); a(f'buffer_load_ushort v{LM+1}, v{t+4}, {sr(SD,4)}, 0 offen')
        a(f'buffer_load_ushort v{LM+2}, v{t+6}, {sr(SC,4)}, 0 offen'); a(f'buffer_load_ushort v{LM+3}, v{t+6}, {sr(SD,4)}, 0 offen')
        a(f's_mul_i32 s{T0}, s{sG0}, {8*cfg.SW}'); a(f's_lshl_b32 s{T1}, s{sJ}, 10'); a(f's_add_u32 s{sWD}, s{T0}, s{T1}'); a(f's_add_u32 s{sWD}, s{sWD}, {WB}')
        a(f'v_lshlrev_b32 v{t+4}, 9, v{t+2}'); a(f'v_add_u32 v{t+4}, s{sWD}, v{t+4}')
        a(f's_lshl_b32 s{T1}, s{sJ}, 4'); a(f's_add_u32 s{T1}, s{T1}, {WBX}'); a(f'v_lshlrev_b32 v{t+5}, 7, v{t+2}'); a(f'v_add_u32 v{t+5}, s{T1}, v{t+5}')
        a(f'v_cmp_eq_u32 vcc, 0, v{t+3}'); a(f'v_cndmask_b32 v{vMD}, v{t+5}, v{t+4}, vcc'); a(f'v_lshl_add_u32 v{vMD}, v{t+1}, 2, v{vMD}')
        a(f'v_cndmask_b32 v{vMD}, v{t+7}, v{vMD}, {sr(mP,2)}')
        a(f'v_lshrrev_b32 v{t}, 3, v1'); a(f'v_and_b32 v{t+1}, 7, v1'); a(f'v_lshl_add_u32 v{vBL}, v{t+1}, 3, v{t}')
        a(f'v_sub_u32 v{vBU}, 63, v{vBL}'); a(f'v_lshlrev_b32 v{vBU}, 2, v{vBU}')
        a(f'v_add_u32 v{t+2}, s{T2}, v{vBL}'); a(f'v_cmp_eq_u32 vcc, 0, v{t+2}'); a(f'v_lshlrev_b32 v{vBL}, 2, v{vBL}')
        a(f'v_mul_u32_u24 v{vWD}, {cfg.SW}, v{t}'); a(f'v_lshl_add_u32 v{vWD}, v{t+1}, 4, v{vWD}'); a(f's_lshl_b32 s{T1}, s{sW}, 7'); a(f'v_add_u32 v{vWD}, s{T1}, v{vWD}')
        a(f'v_cndmask_b32 v{vWD}, v{vWD}, v{t+7}, vcc')
    def wperm_finish(a):
        P1 = M5 + 8
        for r in range(4):
            a(f'v_lshl_or_b32 v{LW+r}, v{LW+4+r}, 16, v{LW+r}')
            a(f'ds_bpermute_b32 v{P1+r}, v{vBL}, v{LW+r}')
        for r in range(4):
            a(f'v_lshl_or_b32 v{LW+8+r}, v{LW+12+r}, 16, v{LW+8+r}'); a(f'v_xor_b32 v{LW+8+r}, v{LW+8+r}, v{vSG}')
            a(f'ds_bpermute_b32 v{P1+4+r}, v{vBU}, v{LW+8+r}')
        for k in range(4): a(f'v_lshlrev_b32 v{LM+k}, 16, v{LM+k}')
        a(f'v_add_f32 v{LM}, v{LM}, v{LM+2}'); a(f'v_sub_f32 v{LM+1}, v{LM+1}, v{LM+3}')
        a(f'v_mul_f32 v{LM}, 0.5, v{LM}'); a(f'v_mul_f32 v{LM+1}, 0.5, v{LM+1}'); a(f'v_cvt_pk_bf16_f32 v{LM}, v{LM}, v{LM+1}')
        a(f'buffer_store_dwordx4 {vr(P1,4)}, v{vWD}, {sr(SA,4)}, s{sWD} offen sc1')
        a(f'buffer_store_dwordx4 {vr(P1+4,4)}, v{vWD}, {sr(SA,4)}, s{sWD} offen offset:512 sc1')
        a(f'buffer_store_dword v{LM}, v{vMD}, {sr(SA,4)}, 0 offen sc1')
    def early_loads(a):
        a(f'v_and_b32 v{t}, 255, v0'); a(f'v_lshlrev_b32 v{t+1}, 2, v{t}')
        a(f's_mul_i32 s{T0}, s{sG0}, 5'); a(f's_add_u32 s{T0}, s{T0}, s{sJ}'); a(f's_sub_u32 s{T0}, s{T0}, 3')
        a(f's_add_u32 s{T1}, s{sG0}, 160'); a(f's_cmp_eq_u32 s{sJ}, 2'); a(f's_cselect_b32 s{T1}, s{T1}, 200'); a(f's_cmp_ge_u32 s{sJ}, 3'); a(f's_cselect_b32 s{sTK}, s{T0}, s{T1}')
        a(f's_lshr_b32 s{T0}, s{sTK}, 1'); a(f's_lshl_b32 s{T0}, s{T0}, 14'); a(f's_and_b32 s{T1}, s{sTK}, 1'); a(f's_lshl_b32 s{T1}, s{T1}, 12'); a(f's_add_u32 s{T0}, s{T0}, s{T1}')
        a(f's_add_u32 s{T1}, s{T0}, 8192')
        srd(a, SB, sW2, 1376*1024)
        for e in range(8): a(f'buffer_load_dword v{L2+e}, v{t+1}, {sr(SB,4)}, s{T0 if e < 4 else T1} offen offset:{1024*(e&3)}')
        srd(a, SE, sGWp, 1024)
        a(f's_mov_b32 m0, {GW}')
        a(f'buffer_load_dwordx4 v{vL16}, {sr(SE,4)}, 0 offen lds', tag='gw')
        a(f's_load_dwordx2 {sr(sNON,2)}, {sr(sWS,2)}, {NONCE}')
        srd(a, SA, sWS, WSZ); srd(a, SC, sWR, 2048*514); srd(a, SD, sWI, 2048*514)
        a(f'v_mov_b32 v{vONE}, 1')
        if cfg.wEarly and 'w' not in cfg.abl: wperm_loads(a)
        stamp(a, cfg, 'iss', 'F')
    if not cfg.conFirst: early_loads(a)
    F64, F8 = 128, 144
    a(f's_and_b32 s{sIH}, s{sW}, 1'); a(f's_lshr_b32 s{sKH}, s{sW}, 1')
    a(f'v_cvt_f32_u32 v{vNf}, v{vN}'); a(f'v_cvt_f32_u32 v{vQf}, v{vQ}')
    a(f's_lshl_b32 s{T0}, s{sKH}, 4'); a(f'v_add_u32 v{t}, s{T0}, v{vN}'); a(f'v_cmp_eq_u32 {sr(mK0,2)}, 0, v{t}')
    a(f'v_cvt_f32_u32 v{t}, v{t}'); a(f'v_mul_f32 v{t}, {f32(1/64)}, v{t}'); a(f'v_mul_f32 v{t+1}, {f32(8.0)}, v{vQf}'); a(f'v_mul_f32 v{t+1}, v{t+1}, v{t}')
    cs_pairs(a, t+1, t, [32*st + e for st in range(2) for e in range(8)], t+2,
             lambda pi: [('c', F64 + 8*(pi//4) + pi % 4), ('m', F64 + 8*(pi//4) + 4 + pi % 4)])
    a(f'v_mov_b32 v{t}, 0xbf803f80')
    for st in range(2):
        for k in range(4): a(f'v_cndmask_b32 v{F64+8*st+4+k}, v{F64+8*st+4+k}, v{t}, {sr(mK0,2)}')
    a(f'v_and_b32 v{t}, 1, v1'); a(f'v_lshlrev_b32 v{t}, 4, v{t}'); a(f'v_mov_b32 v{t+1}, 0xffff'); a(f'v_lshlrev_b32 v{t}, v{t}, v{t+1}')
    a(f'v_and_b32 v{t+1}, 2, v1'); a(f'v_cmp_eq_u32 vcc, 0, v{t+1}')
    a(f'v_lshrrev_b32 v{vN4}, 2, v{vN}'); a(f'v_cvt_f32_u32 v{vN4}, v{vN4}'); a(f'v_mul_f32 v{vN4}, {f32(0.125)}, v{vN4}')
    a(f'v_cndmask_b32 v{vMA}, 0, v{t}, vcc'); a(f'v_xor_b32 v{vMB}, v{vMA}, v{t}')
    def dft8(a, t, emit):
        a(f'v_add_f32 v{t}, 0.5, v{vN4}'); a(f'v_add_f32 v{t+1}, 4.0, v{vQf}')
        for i in range(2):
            for k in range(2): a(f'v_mul_f32 v{t+2+2*i+k}, v{t if i else vN4}, v{t+1 if k else vQf}')
        for u in range(4): a(f'v_cos_f32 v{t+6+u}, v{t+2+u}')
        for u in range(4): a(f'v_sin_f32 v{t+10+u}, v{t+2+u}')
        for u in range(4): a(f'v_cvt_pk_bf16_f32 v{t+6+u}, v{t+6+u}, v{t+6+u}')
        for u in range(4): a(f'v_cvt_pk_bf16_f32 v{t+2+u}, -v{t+10+u}, -v{t+10+u}')
        for u in range(4): a(f'v_cvt_pk_bf16_f32 v{t+10+u}, v{t+10+u}, v{t+10+u}')
        for u in range(4):
            for kind, src in (('c', t+6+u), ('m', t+2+u), ('s', t+10+u)):
                d = emit(u >> 1, u & 1, kind)
                a(f'v_and_b32 v{d}, v{src}, v{vMA}'); a(f'v_and_b32 v{d+1}, v{src}, v{vMB}')
    dft8(a, t, lambda t2, tt, kind: F8 + 12*t2 + {'c': 0, 's': 4, 'm': 8}[kind] + 2*tt)
    stamp(a, cfg, 'con1', 'F')
    vTR, vE1 = 11, 13
    a(f'v_lshlrev_b32 v{t}, 3, v{vQ}'); a(f'v_bfe_u32 v{t+1}, v1, 2, 2'); a(f'v_add_u32 v{t}, v{t}, v{t+1}'); a(f'v_mul_u32_u24 v{t}, {XP}, v{t}')
    a(f'v_and_b32 v{t+1}, 3, v1'); a(f'v_lshl_add_u32 v{t}, v{t+1}, 7, v{t}')
    a(f's_lshl_b32 s{T0}, s{sJ}, 4'); a(f's_lshl_b32 s{T1}, s{sIH}, 3'); a(f's_add_u32 s{T0}, s{T0}, s{T1}'); a(f'v_add_u32 v{vTR}, s{T0}, v{t}')
    a(f'v_lshrrev_b32 v{t}, 2, v{vN}'); a(f's_lshl_b32 s{T0}, s{sKH}, 2'); a(f'v_add_u32 v{t}, s{T0}, v{t}'); a(f'v_lshl_add_u32 v{t}, v{t}, 3, v{vQ}')
    a(f'v_mul_u32_u24 v{t}, {cfg.S1}, v{t}'); a(f'v_and_b32 v{t+1}, 3, v{vN}'); a(f'v_lshl_add_u32 v{vE1}, v{t+1}, 4, v{t}')
    a(f's_lshl_b32 s{T0}, s{sG0}, 3'); a(f's_add_u32 s{sB}, s{T0}, s{sJ}')
    a(f's_lshl_b32 s{T0}, s{sB}, 7'); a(f's_lshl_b32 s{T1}, s{sIH}, 6'); a(f's_add_u32 s{T0}, s{T0}, s{T1}'); a(f's_add_u32 s{sE1}, s{T0}, {E1}'); a(f's_add_u32 s{sE1+1}, s{sE1}, {4*cfg.S1}')
    a(f'v_cmp_eq_u32 vcc, 0, v{vQ}'); a(f's_and_b64 {sr(mK04,2)}, vcc, {sr(mK0,2)}'); a(f's_andn2_b64 {sr(mK5,2)}, {sr(mK0,2)}, vcc')
    a(f'v_lshrrev_b32 v{t}, 1, v{vN}'); a(f'v_lshrrev_b32 v{vE2}, 1, v{vQ}'); a(f'v_lshl_add_u32 v{t}, v{t}, 3, v{vE2}'); a(f'v_mul_u32_u24 v{vE2}, {cfg.S2}, v{t}')
    a(f'v_and_b32 v{t}, 1, v{vN}'); a(f'v_lshl_add_u32 v{vE2}, v{t}, 5, v{vE2}'); a(f'v_and_b32 v{t}, 1, v{vQ}'); a(f'v_lshl_add_u32 v{vE2}, v{t}, 4, v{vE2}')
    a(f's_lshl_b32 s{T0}, s{sB}, 6'); a(f's_mul_i32 s{T1}, s{sW}, {2*cfg.S2}')
    a(f's_add_u32 s{sE2}, s{T0}, s{T1}'); a(f's_add_u32 s{sE2}, s{sE2}, {E2}'); a(f's_add_u32 s{sE2+1}, s{sE2}, {64*cfg.S2}')
    def perm_finish(a):
        P0 = M1 + 8
        a(f'v_and_b32 v{P0+8}, 255, v0'); a(f'v_bfe_u32 v{P0+9}, v{P0+8}, 2, 3'); a(f's_mov_b32 s{T0}, {REG}'); a(f'v_mul_lo_u32 v{P0+9}, v{P0+9}, s{T0}')
        a(f'v_lshrrev_b32 v{P0+10}, 5, v{P0+8}'); a(f'v_lshl_add_u32 v{P0+9}, v{P0+10}, 6, v{P0+9}'); a(f'v_and_b32 v{P0+10}, 3, v{P0+8}'); a(f'v_lshl_add_u32 v{P0+9}, v{P0+10}, 4, v{P0+9}')
        a(f's_lshr_b32 s{T2}, s{sTK}, 1'); a(f's_lshl_b32 s{T2}, s{T2}, 11'); a(f's_and_b32 s{T1}, s{sTK}, 1'); a(f's_lshl_b32 s{T1}, s{T1}, 9'); a(f's_add_u32 s{T2}, s{T2}, s{T1}')
        a(f's_add_u32 s{T2}, s{T2}, {W2P}'); a(f's_cmp_lt_u32 s{sTK}, 172'); a(f's_cselect_b32 s{T2}, s{T2}, {OOB}')
        a(f's_mov_b32 s{T0}, 0x05040100'); a(f's_mov_b32 s{T1}, 0x07060302')
        for k in range(4):
            a(f'v_perm_b32 v{P0+k}, v{L2+2*k+1}, v{L2+2*k}, s{T0}'); a(f'v_perm_b32 v{P0+4+k}, v{L2+2*k+1}, v{L2+2*k}, s{T1}')
        a(f'buffer_store_dwordx4 {vr(P0,4)}, v{P0+9}, {sr(SA,4)}, s{T2} offen sc1')
        a(f'buffer_store_dwordx4 {vr(P0+4,4)}, v{P0+9}, {sr(SA,4)}, s{T2} offen offset:1024 sc1')
        for k in range(4): a(f'v_mov_b32 v{P0+12+k}, -1')
        for tt in range(2):
            if cfg.clrF: a(f'buffer_store_dwordx4 {vr(P0+12,4)}, v{vE2}, {sr(SA,4)}, s{sE2+tt} offen sc1')
    if cfg.conFirst:
        kf_spin(a, vCN, kI, IN, sleep=True)
        if cfg.prioF: a(f's_setprio {cfg.prioF}')
        early_loads(a)
    if cfg.permEarly: perm_finish(a)
    stamp(a, cfg, 'perm', 'F')
    stamp(a, cfg, 'preX', 'F')
    kf_spin(a, vCN, kX, IN, sleep=True)
    stamp(a, cfg, 'X', 'F')
    DA, C1, C2, Z = IN, IN + 16, WK, 168
    for st in range(2):
        for tt in range(2):
            for hf in range(2):
                a(f'ds_read_b64_tr_b16 {vr(DA+8*st+4*tt+2*hf,2)}, v{vTR} offset:{XT + (32*st+4*hf)*XP + 512*tt}')
    for st in range(2):
        for tt in range(2):
            for c in range(2):
                d = C1 + 8*c + 4*tt
                a(f'{MF16} {vr(d,4)}, {vr(DA+8*st+4*tt,4)}, {vr(F64+8*st+4*c,4)}, {vr(d,4) if st else 0}')
    for c in range(2):
        for k in range(4): a(f'v_cvt_pk_bf16_f32 v{PK+4*c+k}, v{C1+8*c+2*k}, v{C1+8*c+2*k+1}')
    BM = DA
    for k in range(4): a(f'v_cndmask_b32 v{BM+k}, v{PK+4+k}, 0, {sr(mK0,2)}')
    for t2 in range(2):
        cc, ss, mm = F8 + 12*t2, F8 + 12*t2 + 4, F8 + 12*t2 + 8
        a(f'{MF16} {vr(C2+8*t2,4)}, {vr(cc,4)}, {vr(PK,4)}, 0')
        a(f'{MF16} {vr(C2+8*t2+4,4)}, {vr(mm,4)}, {vr(PK,4)}, 0')
    for t2 in range(2):
        cc, ss, mm = F8 + 12*t2, F8 + 12*t2 + 4, F8 + 12*t2 + 8
        a(f'{MF16} {vr(C2+8*t2,4)}, {vr(ss,4)}, {vr(BM,4)}, {vr(C2+8*t2,4)}')
        a(f'{MF16} {vr(C2+8*t2+4,4)}, {vr(cc,4)}, {vr(BM,4)}, {vr(C2+8*t2+4,4)}')
    a(f'{MF16} {vr(Z,4)}, {vr(F8,4)}, {vr(PK+4,4)}, 0')
    a(f'{MF16} {vr(Z+4,4)}, {vr(F8+12,4)}, {vr(PK+4,4)}, 0')
    a(f'{MF16} {vr(Z+8,4)}, {vr(F8+20,4)}, {vr(PK+4,4)}, 0')
    O = C1
    for k in range(8): a(f'v_cvt_pk_bf16_f32 v{O+k}, v{C2+2*k}, v{C2+2*k+1}')
    for k in range(6): a(f'v_cvt_pk_bf16_f32 v{O+8+k}, v{Z+2*k}, v{Z+2*k+1}')
    for k in range(2):
        a(f'v_cndmask_b32 v{O+2+k}, v{O+2+k}, v{O+8+k}, {sr(mK04,2)}')
        a(f'v_cndmask_b32 v{O+6+k}, v{O+6+k}, v{O+10+k}, {sr(mK04,2)}')
        a(f'v_cndmask_b32 v{O+4+k}, v{O+4+k}, v{O+10+k}, {sr(mK5,2)}')
        a(f'v_cndmask_b32 v{O+6+k}, v{O+6+k}, v{O+12+k}, {sr(mK5,2)}')
    for t2 in range(2):
        if 'e' not in cfg.abl: a(f'buffer_store_dwordx4 {vr(O+4*t2,4)}, v{vE1}, {sr(SA,4)}, s{sE1+t2} offen sc1', tag='e1')
    stamp(a, cfg, 'fft1', 'F')
    if not cfg.permEarly and 'p' not in cfg.abl: perm_finish(a)
    if not cfg.wEarly and 'w' not in cfg.abl: wperm_loads(a)
    if cfg.wEarly and 'w' not in cfg.abl: wperm_finish(a)
    if cfg.hold: a(f'v_add_u32 v14, s{sW}, v{vCN}'); a(f'ds_write_b8 v14, v{vONE} offset:{4*kS}')
    stamp(a, cfg, 'wiss', 'F')
    a(f's_cmp_eq_u32 s{sG0}, 0'); a(f's_cselect_b32 s{T0}, 1, 0')
    a(f's_and_b32 s{T1}, s{sJ}, 3'); a(f's_cmp_eq_u32 s{T1}, 0'); a(f's_cselect_b32 s{sPAIR}, s{T0}, 0')
    a(f's_cmp_gt_u32 s{sJ}, 4'); a(f's_cselect_b32 s{T1}, s{T0}, 0')
    a(f's_mul_i32 s{sROT}, s{T1}, {f32(0.25)}')
    a(f's_lshr_b32 s{T2}, s{sW}, 1')
    a(f's_and_b32 s{T2}, s{T2}, s{sPAIR}'); a(f's_or_b32 s{T1}, s{T1}, s{T2}'); a(f's_lshl_b32 s{T1}, s{T1}, 5')
    a(f's_add_u32 s{sK1}, s{sG0}, s{T1}')
    nonce(a)
    t = IN
    def con_M1(a):
        if 'f' in cfg.abl: return
        a(f's_lshl_b32 s{T0}, s{sPAIR}, 1'); a(f's_andn2_b32 s{T0}, s{sW}, s{T0}'); a(f's_lshl_b32 s{T0}, s{T0}, 7'); a(f's_add_u32 s{T0}, s{T0}, s{sJ}')
        a(f'v_lshlrev_b32 v{t}, 3, v{vN}'); a(f'v_add_u32 v11, s{T0}, v{t}'); a(f'v_cvt_f32_u32 v{t}, v11'); a(f'v_mul_f32 v{t}, {f32(1/512)}, v{t}')
        a(f'v_mul_f32 v{t+1}, 4.0, v{vQf}'); a(f'v_mul_f32 v{t+1}, v{t+1}, v{t}')
        cs_pairs(a, t+1, t, [16*sg + e for sg in range(4) for e in range(4)], t+2,
                 lambda pi: [('c', M1 + 8*(pi//2) + pi % 2), ('s', M1 + 8*(pi//2) + 2 + pi % 2), ('m', M1 + 8*(pi//2) + 4 + pi % 2), ('c', M1 + 8*(pi//2) + 6 + pi % 2)])
    def con_M2(a):
        if 'f' in cfg.abl: return
        for t2 in range(2):
            a(f'v_lshlrev_b32 v{t}, 6, v{vN}'); a(f's_add_u32 s{T0}, s{sK1}, {1024*t2}'); a(f'v_add_u32 v{t}, s{T0}, v{t}'); a(f'v_cvt_f32_u32 v{t}, v{t}'); a(f'v_mul_f32 v{t}, {f32(1/2048)}, v{t}')
            a(f'v_mul_f32 v{t+1}, 4.0, v{vQf}'); a(f'v_mul_f32 v{t+1}, v{t+1}, v{t}')
            cs_pairs(a, t+1, t, [16*tt + r for tt in range(2) for r in range(4)], t+2,
                     lambda pi: [('c', M2 + 12*t2 + pi), ('s', M2 + 12*t2 + 4 + pi), ('m', M2 + 12*t2 + 8 + pi)])
    def con_M4(a):
        if 'f' in cfg.abl: return
        a(f'v_lshlrev_b32 v{t+14}, 8, v{vQ}'); a(f'v_add_u32 v{t+14}, s{sK1}, v{t+14}'); a(f'v_cvt_f32_u32 v{t+14}, v{t+14}'); a(f'v_mul_f32 v{t+14}, {f32(1/64)}, v{t+14}')
        for tt in range(2):
            a(f'v_add_f32 v{t}, {f32(16.0*tt)}, v{vNf}'); a(f'v_mul_f32 v{t}, {f32(1/32)}, v{t}')
            a(f'v_fma_f32 v{t+1}, v{t}, v{t+14}, s{sROT}')
            cs_pairs(a, t+1, t, [16*t2 + r for t2 in range(2) for r in range(4)], t+2,
                     lambda pi: [('c', M4 + 12*tt + pi), ('s', M4 + 12*tt + 4 + pi), ('m', M4 + 12*tt + 8 + pi)])
    def con_M5(a):
        if 'f' in cfg.abl: return
        a(f's_lshl_b32 s{T0}, s{sW}, 4'); a(f'v_add_u32 v{t}, s{T0}, v{vN}'); a(f'v_cvt_f32_u32 v{t}, v{t}'); a(f'v_mul_f32 v{t}, {f32(1/64)}, v{t}')
        a(f'v_lshlrev_b32 v{t+1}, 5, v{vQ}'); a(f'v_add_u32 v{t+1}, s{sJ}, v{t+1}'); a(f'v_cvt_f32_u32 v{t+1}, v{t+1}'); a(f'v_mul_f32 v{t+1}, {f32(0.125)}, v{t+1}'); a(f'v_mul_f32 v{t+1}, v{t+1}, v{t}')
        cs_pairs(a, t+1, t, [16*sg + e for sg in range(4) for e in range(4)], t+2,
                 lambda pi: [('c', M5 + 8*(pi//2) + pi % 2), ('m', M5 + 8*(pi//2) + 2 + pi % 2), ('s', M5 + 8*(pi//2) + 4 + pi % 2), ('c', M5 + 8*(pi//2) + 6 + pi % 2)])
    def gate(a):
        t = WK + 4
        vGX, vGG = 11, 13
        a(f's_lshl_b32 s{T0}, s{sW}, 4'); a(f'v_add_u32 v{t}, s{T0}, v{vN}'); a(f'v_lshlrev_b32 v14, 2, v{t}'); a(f'v_mul_u32_u24 v{t}, {XP}, v{t}')
        a(f'v_lshl_add_u32 v{vGX}, v{vQ}, 4, v{t}'); a(f'v_lshlrev_b32 v{vGG}, 4, v{vQ}')
        GA = WK + 8
        a.wait_tag('gw')
        GB = 128
        for b in range(0 if 'f' in cfg.abl else 2):
            for k in range(8):
                ks = 8*b + k
                a(f'ds_read_b128 {vr(GB+8*k,4)}, v{vGX} offset:{XT + 64*ks}'); a(f'ds_read_b128 {vr(GB+8*k+4,4)}, v{vGG} offset:{GW + 64*ks}')
            for k in range(8):
                a(f'{MF16} {vr(GA+4*(k&1),4)}, {vr(GB+8*k+4,4)}, {vr(GB+8*k,4)}, {vr(GA+4*(k&1),4) if (b or k > 1) else 0}')
        a(f'v_add_f32 v{GA}, v{GA}, v{GA+4}')
        a(f'v_mul_f32 v{GA}, {f32(-1.4426950408889634)}, v{GA}'); a(f'v_exp_f32 v{GA}, v{GA}'); a(f'v_add_f32 v{GA}, 1.0, v{GA}'); a(f'v_rcp_f32 v{GA}, v{GA}')
        a(f'ds_write_b32 v14, v{GA} offset:{GL}')
    order = list(cfg.ford)
    jobs = {'g': gate, '1': con_M1, '2': con_M2, '4': con_M4, '5': con_M5}
    def run_until(mark):
        while order:
            c = order.pop(0)
            if c == mark: return
            jobs[c](a)
    if not cfg.wEarly and 'w' not in cfg.abl:
        con_M1(a); order.remove('1'); wperm_finish(a)
    run_until('F')
    if cfg.diagx:
        a('s_load_dwordx2 s[4:5], s[0:1], 72'); a('s_getreg_b32 s6, hwreg(HW_REG_XCC_ID)'); a('s_sub_u32 s6, s6, s2'); a('s_and_b32 s6, s6, 7'); a('s_lshl_b32 s6, 1, s6')
        a('s_waitcnt lgkmcnt(0)'); srd(a, SE, 4, 256)
        a(f'v_mov_b32 v{WK+4}, s6'); a(f'v_mov_b32 v{WK+5}, 0'); a('s_mov_b64 exec, 1')
        a(f'buffer_atomic_or v{WK+4}, v{WK+5}, {sr(SE,4)}, 0 offen'); a('s_mov_b64 exec, -1')
    f0 = WK
    a(f'v_mov_b32 v{f0}, s{sNON}'); a(f'v_mov_b32 v{f0+1}, s{sNON+1}'); a(f'v_mov_b32 v{f0+2}, 0')
    a(f's_mul_i32 s{T0}, s2, {cfg.FS}'); a(f's_add_u32 s{T0}, s{T0}, {FLAGA}')
    a.wait(vm=0)
    a('s_mov_b64 exec, 1'); a(f'ds_add_rtn_u32 v{f0+3}, v{vCN}, v{vONE} offset:{cFA}')
    a(f'v_readfirstlane_b32 s{T1}, v{f0+3}')
    a(f's_cmp_eq_u32 s{T1}, 3'); a(f's_cselect_b32 s{T0}, s{T0}, {OOB}')
    a(f'buffer_store_dwordx2 {vr(f0,2)}, v{f0+2}, {sr(SA,4)}, s{T0} offen sc1')
    a('s_mov_b64 exec, -1')
    stamp(a, cfg, 'flag', 'F')
    HB, XS = N64, N64 + 16
    run_until('P')
    vIN = 13
    a(f'v_lshlrev_b32 v{vIN}, 10, v{vN}'); a(f'v_lshl_add_u32 v{vIN}, v{vQ}, 6, v{vIN}')
    sI = 72
    a(f's_lshr_b32 s{T0}, s{sG0}, 2'); a(f's_lshl_b32 s{T0}, s{T0}, 3'); a(f's_add_u32 s{T0}, s{T0}, s{sJ}'); a(f's_mul_i32 s{T0}, s{T0}, {cfg.S1}')
    a(f's_and_b32 s{T1}, s{sG0}, 3'); a(f's_lshl_b32 s{T1}, s{T1}, 4'); a(f's_add_u32 s{T0}, s{T0}, s{T1}'); a(f's_lshl_b32 s{T1}, s{sW}, 8'); a(f's_add_u32 s{T0}, s{T0}, s{T1}')
    a(f's_add_u32 s{sI}, s{T0}, {E1}'); a(f's_add_u32 s{sI+1}, s{sI}, 16384')
    vWB, sWb = 11, 74
    a(f'v_lshlrev_b32 v{vWB}, 10, v{vQ}'); a(f'v_lshl_add_u32 v{vWB}, v{vN}, 4, v{vWB}')
    a(f's_mul_i32 s{T0}, s{sB}, {cfg.SW}'); a(f's_add_u32 s{T0}, s{T0}, s{T1}'); a(f's_add_u32 s{sWb}, s{T0}, {WB}'); a(f's_add_u32 s{sWb+1}, s{sWb}, 4096')
    t = IN + 4
    def fixups(a):
        t = IN + 4
        a(f's_cmp_eq_u32 s{sPAIR}, 0'); h = a.skip_begin('s_cbranch_scc1')
        a(f's_cmp_lg_u32 s{sJ}, 0'); h2 = a.skip_begin('s_cbranch_scc1')
        a(f's_and_b32 s{T0}, s{sW}, 1'); a(f'v_or_b32 v{t}, s{T0}, v{vN}'); a(f'v_cmp_eq_u32 vcc, 0, v{t}'); a(f'v_mov_b32 v{t}, 0xbf803f80')
        for sg in range(4):
            for k in range(2): a(f'v_cndmask_b32 v{M1+8*sg+4+k}, v{M1+8*sg+4+k}, v{t}, vcc')
        a(f'v_cmp_eq_u32 vcc, 0, v{vQ}'); a(f'v_mov_b32 v{t+2}, 0xffff')
        a(f'v_mov_b32 v{t}, 0x3f00'); a(f'v_bfi_b32 v{t}, v{t+2}, v{t}, v{M5}'); a(f'v_cndmask_b32 v{M5}, v{M5}, v{t}, vcc')
        a(f'v_and_b32 v{t}, 1, v{vN}'); a(f'v_lshlrev_b32 v{t}, 15, v{t}'); a(f'v_or_b32 v{t}, 0x3f00, v{t}'); a(f'v_bfi_b32 v{t}, v{t+2}, v{t}, v{M5+2}'); a(f'v_cndmask_b32 v{M5+2}, v{M5+2}, v{t}, vcc')
        a.skip_end(h2)
        for sg in range(2):
            for k in range(4):
                a(f'v_mov_b32 v{M5+8*(sg+2)+4+k}, v{M5+8*sg+k}'); a(f'v_mov_b32 v{M5+8*(sg+2)+k}, 0'); a(f'v_mov_b32 v{M5+8*sg+4+k}, 0')
        a(f's_cmp_ge_u32 s{sW}, 2'); a(f's_cselect_b64 vcc, -1, 0')
        for sg in range(4):
            for k in range(2):
                for o in (0, 4):
                    a(f'v_cndmask_b32 v{M1+8*sg+o+2+k}, 0, v{M1+8*sg+o+k}, vcc'); a(f'v_cndmask_b32 v{M1+8*sg+o+k}, v{M1+8*sg+o+k}, 0, vcc')
        a.skip_end(h)
    stamp(a, cfg, 'prepoll', 'F')
    lgo = a.lab('go'); lp = a.lab('poll')
    a(f's_mul_i32 s{T0}, s{sW}, {64*cfg.FS}'); a(f's_add_u32 s{T0}, s{T0}, {FLAGA}'); a(f's_mov_b32 s{T1}, 0'); a(f'v_mul_u32_u24 v{IN+2}, {cfg.FS}, v1')
    a.wait(vm=0)
    if cfg.pollAt is not None: kf_spin(a, vCN, cfg.pollAt, IN + 4, sleep=True)
    stamp(a, cfg, 'poll', 'F')
    a.label(lp)
    a(f'buffer_load_dwordx2 {vr(IN,2)}, v{IN+2}, {sr(SA,4)}, s{T0} offen sc1')
    a(f'v_xor_b32 v{IN}, s{sNON}, v{IN}'); a(f'v_xor_b32 v{IN+1}, s{sNON+1}, v{IN+1}'); a(f'v_or_b32 v{IN}, v{IN}, v{IN+1}')
    a(f'v_cmp_ne_u32 vcc, 0, v{IN}')
    a(f's_cbranch_vccz {lgo}')
    a(f's_sleep {cfg.slpA}'); a(f's_add_u32 s{T1}, s{T1}, 1'); a(f's_cmp_lt_u32 s{T1}, {cfg.spin}'); a(f's_cbranch_scc1 {lp}')
    a.label(lgo)
    lds_arrive(a, vCN, cGO, vONE)
    stampv(a, cfg, 'pollsA', 'F', T1)
    lds_spin(a, vCN, cGO, 4, IN+3, sleep=True)
    stamp(a, cfg, 'go', 'F')
    if 'q' in cfg.abl: a('s_branch L_FQ')
    for tt in range(2):
        a(f's_lshl_b32 s{T0}, s{sW}, 11'); a(f's_add_u32 m0, s{T0}, {FA + 1024*tt}')
        a(f'buffer_load_dwordx4 v{vIN}, {sr(SA,4)}, s{sI+tt} offen sc1 lds', tag='in')
    WR = N8
    for t2 in range(2): a(f'buffer_load_dwordx4 {vr(WR+4*t2,4)}, v{vWB}, {sr(SA,4)}, s{sWb+t2} offen sc1')
    a(f's_cmp_lg_u32 s{sB}, 0'); h = a.skip_begin('s_cbranch_scc1')
    a(f'v_lshlrev_b32 v{vWB}, 4, v{vQ}'); a(f's_lshr_b32 s{T0}, s{sW}, 1'); a(f's_lshl_b32 s{T0}, s{T0}, 7'); a(f's_add_u32 s{T0}, s{T0}, {WBX}')
    for t2 in range(2): a(f'buffer_load_dwordx4 {vr(XS+4*t2,4)}, v{vWB}, {sr(SA,4)}, s{T0} offen offset:{64*t2} sc1')
    a.skip_end(h, drop=True)
    def stage(a):
        kf_spin(a, vCN, kK, IN, sleep=True)
        a(f's_mul_i32 s{T0}, s{sJ}, {REG}'); a(f's_add_u32 s{T0}, s{T0}, {W2P}')
        srd(a, SB, sWS, REG, f's{T0}')
        a(f'v_and_b32 v{IN}, 31, v1'); a(f's_lshr_b32 s{T0}, s{sW}, 1'); a(f's_lshl_b32 s{T0}, s{T0}, 4'); a(f'v_xor_b32 v{IN}, s{T0}, v{IN}')
        a(f'v_lshrrev_b32 v{IN+1}, 5, v1'); a(f'v_lshlrev_b32 v{IN+1}, 9, v{IN+1}'); a(f'v_lshl_add_u32 v{IN}, v{IN}, 4, v{IN+1}')
        a(f's_lshl_b32 s{T0}, s{sW}, 11'); a(f'v_add_u32 v14, s{T0}, v{IN}'); a(f's_mul_i32 s{T1}, s{sW}, {NPL*2048}')
        def stageP(i0, i1):
            for i in range(i0, i1):
                a(f's_add_u32 m0, s{T1}, {PST + i*2048}'); a(f's_mov_b32 s{T0}, {(22 - NPL + i)*8192}')
                for hb in range(2): a(f'buffer_load_dwordx4 v14, {sr(SB,4)}, s{T0} offen offset:{1024*hb} {cfg.pfl} lds', tag='pl')
        stageP(0, NPL)
        stamp(a, cfg, 'pst', 'F')
    t = IN
    if cfg.stageAt == 'in': stage(a)
    run_until('I')
    a.wait_tag('in')
    lds_arrive(a, vCN, cF1, vONE)
    def unpackW(a, dst, src):
        a(f's_mov_b32 s{T0}, {f32(2.0**-19)}')
        for k in range(8):
            a(f'v_lshlrev_b32 v{dst+2*k}, 16, v{src+k}'); a(f'v_and_b32 v{dst+2*k+1}, 0xffff0000, v{src+k}')
        for k in range(16): a(f'v_mul_f32 v{dst+k}, s{T0}, v{dst+k}')
    run_until('.')
    fixups(a)
    unpackW(a, WF, WR)
    lds_spin(a, vCN, cF1, 4, IN)
    stamp(a, cfg, 'in', 'F')
    for u in range(8): a(f'ds_read_b128 {vr(IN+4*u,4)}, v{vL16} offset:{FA + 1024*u}')
    C1 = WK
    for sg in range(4):
        for tt in range(2):
            for c in range(2):
                d = C1 + 8*c + 4*tt
                a(f'{MF16} {vr(d,4)}, {vr(IN+8*sg+4*tt,4)}, {vr(M1+8*sg+4*c,4)}, {vr(d,4) if sg else 0}')
    for c in range(2):
        for k in range(4): a(f'v_cvt_pk_bf16_f32 v{PK+4*c+k}, v{C1+8*c+2*k}, v{C1+8*c+2*k+1}')
    lsp = a.lab('special'); ljn = a.lab('join')
    a(f's_cmp_eq_u32 s{sB}, 0'); a(f's_cbranch_scc1 {lsp}')
    snap = (list(a.hist), list(a.vq), list(a.lq))
    Cre, Cim, Yre, Yim = IN, IN + 8, IN + 16, IN + 24
    for t2 in range(2):
        a(f'{MF16} {vr(Cre+4*t2,4)}, {vr(M2+12*t2,4)}, {vr(PK,4)}, 0')
        a(f'{MF16} {vr(Cim+4*t2,4)}, {vr(M2+12*t2+8,4)}, {vr(PK,4)}, 0')
    for t2 in range(2):
        a(f'{MF16} {vr(Cre+4*t2,4)}, {vr(M2+12*t2+4,4)}, {vr(PK+4,4)}, {vr(Cre+4*t2,4)}')
        a(f'{MF16} {vr(Cim+4*t2,4)}, {vr(M2+12*t2,4)}, {vr(PK+4,4)}, {vr(Cim+4*t2,4)}')
    for k in range(8):
        a(f'v_mul_f32 v{Yre+k}, v{Cre+k}, v{WF+2*k}'); a(f'v_mul_f32 v{Yim+k}, v{Cre+k}, v{WF+2*k+1}')
    for k in range(8):
        a(f'v_fma_f32 v{Yre+k}, -v{Cim+k}, v{WF+2*k+1}, v{Yre+k}'); a(f'v_fmac_f32 v{Yim+k}, v{Cim+k}, v{WF+2*k}')
    for k in range(4): a(f'v_cvt_pk_bf16_f32 v{PK+k}, v{Yre+2*k}, v{Yre+2*k+1}')
    for k in range(4): a(f'v_cvt_pk_bf16_f32 v{PK+4+k}, v{Yim+2*k}, v{Yim+2*k+1}')
    a.label(ljn)
    C3 = WK
    for tt in range(2):
        a(f'{MF16} {vr(C3+8*tt,4)}, {vr(PK,4)}, {vr(M4+12*tt,4)}, 0')
        a(f'{MF16} {vr(C3+8*tt+4,4)}, {vr(PK,4)}, {vr(M4+12*tt+4,4)}, 0')
    for tt in range(2):
        a(f'{MF16} {vr(C3+8*tt,4)}, {vr(PK+4,4)}, {vr(M4+12*tt+8,4)}, {vr(C3+8*tt,4)}')
        a(f'{MF16} {vr(C3+8*tt+4,4)}, {vr(PK+4,4)}, {vr(M4+12*tt,4)}, {vr(C3+8*tt+4,4)}')
    a(f's_lshl_b32 s{T0}, s{sW}, 11'); a(f'v_add_u32 v{vIN}, s{T0}, v{vL16}')
    for k in range(8): a(f'v_cvt_pk_bf16_f32 v{PK+k}, v{C3+2*k}, v{C3+2*k+1}')
    for tt in range(2): a(f'ds_write_b128 v{vIN}, {vr(PK+4*tt,4)} offset:{FB + 1024*tt}')
    a.wait(lg=0)
    lds_arrive(a, vCN, cF2, vONE)
    lds_spin(a, vCN, cF2, 4, IN)
    for u in range(8): a(f'ds_read_b128 {vr(IN+4*u,4)}, v{vL16} offset:{FB + 1024*u}')
    C4 = WK
    for sg in range(4):
        for tt in range(2):
            for c in range(2):
                d = C4 + 8*tt + 4*c
                a(f'{MF16} {vr(d,4)}, {vr(M5+8*sg+4*c,4)}, {vr(IN+8*sg+4*tt,4)}, {vr(d,4) if sg else 0}')
    for k in range(8): a(f'v_cvt_pk_bf16_f32 v{PK+k}, v{C4+2*k}, v{C4+2*k+1}')
    if cfg.clrF:
        for k in range(8): a(f'v_min_u32 v{PK+k}, -2, v{PK+k}')
    for tt in range(2): a(f'buffer_store_dwordx4 {vr(PK+4*tt,4)}, v{vE2}, {sr(SA,4)}, s{sE2+tt} offen sc1', tag='e2')
    stamp(a, cfg, 'e2st', 'F')
    if cfg.stageAt == 'e2': stage(a)
    t = IN
    dft8(a, t, lambda dh, st, kind: N8 + 12*dh + 6*st + {'s': 0, 'c': 2, 'm': 4}[kind])
    vL3, vX3 = 11, 13
    a(f'v_cmp_eq_u32 vcc, 0, v{vQ}')
    a(f'v_and_b32 v{t}, 7, v1'); a(f's_lshl_b32 s{T0}, s{sW}, 3'); a(f'v_add_u32 v{t}, s{T0}, v{t}')
    a(f'v_cmp_eq_u32 {sr(mK0,2)}, 0, v{t}'); a(f's_andn2_b64 {sr(mK5,2)}, {sr(mK0,2)}, vcc'); a(f's_mov_b64 {sr(mK04,2)}, vcc')
    a(f'v_lshl_add_u32 v{t}, v{t}, 3, v{vQ}'); a(f'v_lshlrev_b32 v{t}, 6, v{t}'); a(f'v_bfe_u32 v{t+1}, v1, 3, 1'); a(f'v_lshl_add_u32 v{vL3}, v{t+1}, 4, v{t}')
    a(f's_lshr_b32 s{T0}, s{sG0}, 1'); a(f's_lshl_b32 s{T0}, s{T0}, 3'); a(f's_add_u32 s{T0}, s{T0}, s{sJ}'); a(f's_mul_i32 s{T0}, s{T0}, {cfg.S2}')
    a(f's_and_b32 s{T1}, s{sG0}, 1'); a(f's_lshl_b32 s{T1}, s{T1}, 5'); a(f's_add_u32 s{T0}, s{T0}, s{T1}'); a(f's_add_u32 s{sI}, s{T0}, {E2}')
    a(f'v_lshrrev_b32 v{t}, 1, v{vQ}'); a(f'v_lshlrev_b32 v{t}, 12, v{t}'); a(f'v_and_b32 v{t+1}, 1, v{vQ}'); a(f'v_lshl_add_u32 v{t}, v{t+1}, 8, v{t}')
    a(f'v_lshl_add_u32 v{t}, v{vN}, 4, v{t}'); a(f's_lshl_b32 s{T1}, s{sW}, 9'); a(f'v_add_u32 v{vX3}, s{T1}, v{t}')
    def n64(nt):
        a(f'v_add_f32 v{t}, {f32(16.0*nt)}, v{vNf}'); a(f'v_mul_f32 v{t}, {f32(1/64)}, v{t}')
        a(f'v_mul_f32 v{t+1}, 4.0, v{vQf}'); a(f'v_mul_f32 v{t+1}, v{t+1}, v{t}')
        cs_pairs(a, t+1, t, [16*st + r for st in range(2) for r in range(4)], t+2,
                 lambda pi: [('c', N64 + 8*nt + 4*(pi//2) + pi % 2), ('m', N64 + 8*nt + 4*(pi//2) + 2 + pi % 2)])
    for nt in range(cfg.n64pre): n64(nt)
    a.wait_tag('e2')
    stamp(a, cfg, 'e2dr', 'F')
    D3 = WF
    if cfg.clrF:
        for st in range(2): a(f'buffer_load_dwordx4 {vr(D3+4*st,4)}, v{vL3}, {sr(SA,4)}, s{sI} offen offset:{256*st} sc1')
        for nt in range(cfg.n64pre, 4): n64(nt)
        a(f'v_mov_b32 v{t+2}, 0xffff')
        a(f'v_and_b32 v{t}, 1, v{vN}'); a(f'v_lshlrev_b32 v{t}, 15, v{t}'); a(f'v_or_b32 v{t}, 0x3f80, v{t}')
        for nt in range(4):
            a(f'v_bfi_b32 v{t+1}, v{t+2}, v{t}, v{N64+8*nt+2}'); a(f'v_cndmask_b32 v{N64+8*nt+2}, v{N64+8*nt+2}, v{t+1}, {sr(mK04,2)}')
        l3 = a.lab('e2poll'); l3ok = a.lab('e2ok')
        a(f's_mov_b32 s{T1}, 0')
        a.wait_tag('pl'); a(f'v_add_u32 v14, s{sW}, v{vCN}'); a(f'ds_write_b8 v14, v{vONE} offset:{4*kP}')
        a.wait(vm=0)
        a.label(l3)
        a(f'v_max3_u32 v{IN+8}, v{D3}, v{D3+1}, v{D3+2}'); a(f'v_max3_u32 v{IN+9}, v{D3+3}, v{D3+4}, v{D3+5}')
        a(f'v_max3_u32 v{IN+8}, v{IN+8}, v{D3+6}, v{D3+7}'); a(f'v_max_u32 v{IN+8}, v{IN+8}, v{IN+9}')
        a(f'v_cmp_eq_u32 vcc, -1, v{IN+8}')
        a(f's_cbranch_vccz {l3ok}')
        for st in range(2): a(f'buffer_load_dwordx4 {vr(D3+4*st,4)}, v{vL3}, {sr(SA,4)}, s{sI} offen offset:{256*st} sc1')
        a('s_waitcnt vmcnt(0)')
        a(f's_add_u32 s{T1}, s{T1}, 1'); a(f's_cmp_lt_u32 s{T1}, {cfg.spin}'); a(f's_cbranch_scc1 {l3}')
        a.label(l3ok)
    else:
        f0 = WK
        a(f'v_mov_b32 v{f0}, s{sNON}'); a(f'v_mov_b32 v{f0+1}, s{sNON+1}'); a(f'v_mov_b32 v{f0+2}, 0')
        a(f's_mul_i32 s{T0}, s2, {cfg.FS}'); a(f's_add_u32 s{T0}, s{T0}, {FLAGC}')
        a('s_mov_b64 exec, 1'); a(f'ds_add_rtn_u32 v{f0+3}, v{vCN}, v{vONE} offset:{cFC}')
        a(f'v_readfirstlane_b32 s{T1}, v{f0+3}')
        a(f's_cmp_eq_u32 s{T1}, 3'); a(f's_cselect_b32 s{T0}, s{T0}, {OOB}')
        a(f'buffer_store_dwordx2 {vr(f0,2)}, v{f0+2}, {sr(SA,4)}, s{T0} offen sc1')
        a('s_mov_b64 exec, -1')
        for nt in range(cfg.n64pre, 4): n64(nt)
        a(f'v_mov_b32 v{t+2}, 0xffff')
        a(f'v_and_b32 v{t}, 1, v{vN}'); a(f'v_lshlrev_b32 v{t}, 15, v{t}'); a(f'v_or_b32 v{t}, 0x3f80, v{t}')
        for nt in range(4):
            a(f'v_bfi_b32 v{t+1}, v{t+2}, v{t}, v{N64+8*nt+2}'); a(f'v_cndmask_b32 v{N64+8*nt+2}, v{N64+8*nt+2}, v{t+1}, {sr(mK04,2)}')
        lgc = a.lab('goC'); lpc = a.lab('pollC')
        a(f's_mul_i32 s{T0}, s{sW}, {64*cfg.FS}'); a(f's_add_u32 s{T0}, s{T0}, {FLAGC}'); a(f's_mov_b32 s{T1}, 0'); a(f'v_mul_u32_u24 v{IN+2}, {cfg.FS}, v1')
        if cfg.slpC0: a(f's_sleep {cfg.slpC0}')
        a.wait_tag('pl'); a(f'v_add_u32 v14, s{sW}, v{vCN}'); a(f'ds_write_b8 v14, v{vONE} offset:{4*kP}')
        a.wait(vm=0)
        a.label(lpc)
        a(f'buffer_load_dwordx2 {vr(IN,2)}, v{IN+2}, {sr(SA,4)}, s{T0} offen sc1')
        a(f'v_xor_b32 v{IN}, s{sNON}, v{IN}'); a(f'v_xor_b32 v{IN+1}, s{sNON+1}, v{IN+1}'); a(f'v_or_b32 v{IN}, v{IN}, v{IN+1}')
        a(f'v_cmp_ne_u32 vcc, 0, v{IN}')
        a(f's_cbranch_vccz {lgc}')
        a(f's_sleep {cfg.slpC}'); a(f's_add_u32 s{T1}, s{T1}, 1'); a(f's_cmp_lt_u32 s{T1}, {cfg.spin}'); a(f's_cbranch_scc1 {lpc}')
        a.label(lgc)
        lds_arrive(a, vCN, cGOC, vONE)
        lds_spin(a, vCN, cGOC, 4, IN+3, sleep=True)
        for st in range(2): a(f'buffer_load_dwordx4 {vr(D3+4*st,4)}, v{vL3}, {sr(SA,4)}, s{sI} offen offset:{256*st} sc1')
        a.wait(vm=0)
    stamp(a, cfg, 'e2ok', 'F'); stampv(a, cfg, 'polls', 'F', T1)
    VI, VR = IN + 8, IN + 12
    for k in range(4):
        a(f'v_cndmask_b32 v{VI+k}, v{D3+k}, 0, {sr(mK5,2)}'); a(f'v_cndmask_b32 v{VR+k}, v{D3+4+k}, 0, {sr(mK5,2)}')
    C5 = WK
    for dh in range(2):
        a(f'{MF16} {vr(C5+8*dh,4)}, {vr(D3,4)}, {vr(N8+12*dh+2,4)}, 0')
        a(f'{MF16} {vr(C5+8*dh+4,4)}, {vr(D3+4,4)}, {vr(N8+12*dh+6,4)}, 0')
    for dh in range(2):
        a(f'{MF16} {vr(C5+8*dh,4)}, {vr(VR,4)}, {vr(N8+12*dh+8,4)}, {vr(C5+8*dh,4)}')
        a(f'{MF16} {vr(C5+8*dh+4,4)}, {vr(VI,4)}, {vr(N8+12*dh,4)}, {vr(C5+8*dh+4,4)}')
    for k in range(8): a(f'v_cvt_pk_bf16_f32 v{PK+k}, v{C5+2*k}, v{C5+2*k+1}')
    for dh in range(2): a(f'ds_write_b128 v{vX3}, {vr(PK+4*dh,4)} offset:{FA + 2048*dh}')
    a.wait(lg=0)
    lds_arrive(a, vCN, cF3, vONE)
    a(f's_and_b32 s{T0}, s{sW}, 1'); a(f's_lshl_b32 s{T0}, s{T0}, 12'); a(f's_lshr_b32 s{T1}, s{sW}, 1'); a(f's_lshl_b32 s{T2}, s{T1}, 11'); a(f's_add_u32 s{T0}, s{T0}, s{T2}')
    a(f'v_add_u32 v{vX3}, s{T0}, v{vL16}')
    a(f's_lshl_b32 s{T1}, s{T1}, 2'); a(f'v_add_u32 v{IN+9}, s{T1}, v{vQ}'); a(f'v_lshrrev_b32 v{IN+10}, 1, v{vN}'); a(f'v_xor_b32 v{IN+9}, v{IN+9}, v{IN+10}')
    a(f'v_lshlrev_b32 v{IN+9}, 4, v{IN+9}'); a(f'v_lshl_add_u32 v{IN+9}, v{vN}, 7, v{IN+9}')
    a(f's_and_b32 s{T0}, s{sW}, 1'); a(f's_lshl_b32 s{T0}, s{T0}, 3'); a(f'v_add_u32 v{vL3}, s{T0}, v{IN+9}')
    lds_spin(a, vCN, cF3, 4, IN+8)
    for st in range(2): a(f'ds_read_b128 {vr(IN+4*st,4)}, v{vX3} offset:{FA + 1024*st}')
    for st in range(2):
        for nt in range(4):
            a(f'{MF16} {vr(C5+4*nt,4)}, {vr(IN+4*st,4)}, {vr(N64+8*nt+4*st,4)}, {vr(C5+4*nt,4) if st else 0}')
    for k in range(8): a(f'v_cvt_pk_bf16_f32 v{PK+k}, v{C5+2*k}, v{C5+2*k+1}')
    for nt in range(4): a(f'ds_write_b64 v{vL3}, {vr(PK+2*nt,2)} offset:{FB + 2048*nt}')
    a.wait(lg=0)
    a.label('L_FQ')
    if cfg.diagx:
        a(f'v_mov_b32 v{IN+1}, 0'); a(f'buffer_load_dword v{IN}, v{IN+1}, {sr(SE,4)}, 0 offen sc1'); a(f'v_readfirstlane_b32 s6, v{IN}'); a('s_bcnt1_i32_b32 s6, s6')
        a('s_cmp_le_u32 s6, 1'); a('s_cbranch_scc1 L_DX'); a('s_memrealtime s[8:9]'); a('s_waitcnt lgkmcnt(0)')
        a.label('L_DY'); a('s_memrealtime s[10:11]'); a('s_waitcnt lgkmcnt(0)'); a('s_sub_u32 s10, s10, s8'); a('s_cmp_lt_u32 s10, 3000'); a('s_cbranch_scc1 L_DY')
        a.label('L_DX')
    stamp(a, cfg, 'Fend', 'F')
    a(f's_or_b32 s{T0}, s2, s{sW}'); a(f's_cmp_eq_u32 s{T0}, 0'); a(f's_cselect_b32 s{T0}, {NONCE}, {OOB}')
    a(f'v_mov_b32 v{IN}, s{sNON}'); a(f'v_mov_b32 v{IN+1}, s{sNON+1}'); a(f'v_mov_b32 v{IN+2}, 0'); a('s_mov_b64 exec, 1')
    a(f'buffer_store_dwordx2 {vr(IN,2)}, v{IN+2}, {sr(SA,4)}, s{T0} offen')
    a('s_mov_b64 exec, -1')
    a('s_barrier')
    if cfg.stamps: stamps_out(a, cfg, 10, SA)
    a('s_endpgm')
    a.label(lsp)
    a.hist, a.vq, a.lq = snap
    P1_, M3_, P2_, P4_ = IN, IN + 8, IN + 16, IN + 24
    for t2 in range(2):
        a(f'{MF16} {vr(P1_+4*t2,4)}, {vr(M2+12*t2,4)}, {vr(PK,4)}, 0')
        a(f'{MF16} {vr(M3_+4*t2,4)}, {vr(M2+12*t2+8,4)}, {vr(PK,4)}, 0')
        a(f'{MF16} {vr(P2_+4*t2,4)}, {vr(M2+12*t2+4,4)}, {vr(PK+4,4)}, 0')
        a(f'{MF16} {vr(P4_+4*t2,4)}, {vr(M2+12*t2,4)}, {vr(PK+4,4)}, 0')
    a('s_waitcnt vmcnt(0)')
    unpackW(a, HB, XS)
    a(f's_and_b32 s{T0}, s{sW}, 1'); a(f'v_or_b32 v{WK}, s{T0}, v{vN}'); a(f'v_cmp_eq_u32 vcc, 0, v{WK}')
    for k in range(16): a(f'v_cndmask_b32 v{HB+k}, v{WF+k}, v{HB+k}, vcc')
    for k in range(8):
        x, y = WK + 2*(k & 1), WK + 1 + 2*(k & 1)
        a(f'v_mul_f32 v{x}, v{P1_+k}, v{WF+2*k}'); a(f'v_mul_f32 v{y}, v{P1_+k}, v{WF+2*k+1}')
        a(f'v_fma_f32 v{x}, -v{M3_+k}, v{WF+2*k+1}, v{x}'); a(f'v_fmac_f32 v{y}, v{M3_+k}, v{WF+2*k}')
        a(f'v_fma_f32 v{x}, -v{P4_+k}, v{HB+2*k+1}, v{x}'); a(f'v_fmac_f32 v{y}, v{P4_+k}, v{HB+2*k}')
        a(f'v_fma_f32 v{P1_+k}, v{P2_+k}, v{HB+2*k}, v{x}'); a(f'v_fma_f32 v{M3_+k}, v{P2_+k}, v{HB+2*k+1}, v{y}')
    for k in range(4): a(f'v_cvt_pk_bf16_f32 v{PK+k}, v{P1_+2*k}, v{P1_+2*k+1}')
    for k in range(4): a(f'v_cvt_pk_bf16_f32 v{PK+4+k}, v{M3_+2*k}, v{M3_+2*k+1}')
    a('s_nop 1')
    a(f's_branch {ljn}')

HEADER = open('gated_mix__spectral_gfnet__dense_activation_mish__prompt.s.ref').read().split('; Override')[0] if True else ''
def build(cfg):
    Stream.gid = 0
    a = Stream(); prologue(a, cfg)
    g = Stream(); g.hist, g.vq, g.lq = list(a.hist), list(a.vq), list(a.lq); gen_G(g, cfg)
    f = Stream(); f.hist, f.vq, f.lq = list(a.hist), list(a.vq), list(a.lq); gen_F(f, cfg)
    assert g.text().count('s_barrier') == f.text().count('s_barrier'), 'barrier mismatch'
    return f"""{HEADER}; One persistent launch: 256 workgroups x 8 waves (waves 0-3: MLP, waves 4-7: spectral branch). Generated by my own script.
; @launch grid=(256,1,1) block=(512,1,1) lds={LDSZ}
.amdgcn_target "amdgcn-amd-amdhsa--gfx950"
.text
.globl {KN}
.p2align 8
.type {KN},@function
{KN}:
{a.text()}{g.text()}{f.text()}L_END:
    s_endpgm
.section .rodata,"a"
.p2align 6
.amdhsa_kernel {KN}
  .amdhsa_next_free_vgpr 256
  .amdhsa_next_free_sgpr 102
  .amdhsa_accum_offset 256
  .amdhsa_group_segment_fixed_size 0
  .amdhsa_kernarg_size 88
  .amdhsa_user_sgpr_count 2
  .amdhsa_user_sgpr_kernarg_segment_ptr 1
  .amdhsa_system_sgpr_workgroup_id_x 1
  .amdhsa_float_denorm_mode_32 3
.end_amdhsa_kernel
"""
if __name__ == '__main__':
    cfg = Cfg()
    out = sys.argv[1]
    for kv in sys.argv[2:]:
        k, v = kv.split('='); setattr(cfg, k, eval(v))
    open(out, 'w').write(build(cfg))
```

```python
import sys, struct
from sa import Stream
KN = 'gated_mix__spectral_gfnet__dense_activation_mish__prompt_kernel'
MB = 1 << 20
FLAGB = 65536; FLAGC = 196608; FLAGA2 = 262144
NONCE, FLAGA, E1, E2, WB, WBX, W2P, ACT, STAMP, WSZ = 0, 131072, 1*MB, 4*MB, 7*MB, 10*MB, 11*MB, 13*MB, 19*MB, 20*MB
OOB = 0x40000000
XP = 1040
NSLOT, SLAB = 6, 12288
WP = 528
FA = 0; FB = FA + 8704; GW = FB + 8192; GL = GW + 1024; CNT = GL + 256
XT = CNT + 128; RING = XT + 64*XP; LDSZ = RING + NSLOT*SLAB
REG = 86*2048
PST = XT; RED = RING
NPL = 7; assert PST + 4*NPL*2048 <= RING
assert RED + 49152 <= LDSZ <= 163840
cGO, cF1, cF2, cF3, cACT, cGOB, cFA, cFC, cGOC, cFA2, cGO2 = 72, 76, 80, 84, 88, 92, 96, 100, 104, 108, 112
ALL4 = 0x01010101
kD = 7
kM = 5
kS = 6
kW = 4
kX, kL, kK, kE = 0, 1, 2, 3
def f32(x): return '0x%08x' % struct.unpack('<I', struct.pack('<f', x))[0]
def vr(a, n): return f'v[{a}:{a+n-1}]' if n > 1 else f'v{a}'
def sr(a, n): return f's[{a}:{a+n-1}]'
sX, sWR, sWI, sW1, sB1, sW2, sGWp, sOUT, sWS = 4, 6, 8, 12, 14, 16, 18, 20, 22
sG0, sJ, sWV, sW = 24, 25, 26, 27
SX, SA, SB, SC, SD, SE = 28, 32, 36, 40, 44, 48
T0, T1, T2, T3 = 52, 53, 54, 55
sNON = 56
sTK = 3
sST = 80
MF16 = 'v_mfma_f32_16x16x32_bf16'; MF32 = 'v_mfma_f32_32x32x16_bf16'

class Cfg:
    stamps = False; dbgst = False
    gst = ['start', 'X', 'Kend', 'mish', 'go', 'drain', 'goB', 'g2end', 'fbar', 'end']
    fst = ['start', 'X', 'fft1', 'flag', 'prepoll', 'go', 'in', 'e2st', 'e2ok', 'Fend']
    NP, NQ = 15, 7
    prioG = 1; prioF = 2; prioM = 3; prioG2 = 1
    spin = 200000
    S1 = 32768; S2 = 16384; SW = 8192; FS = 64; FS2 = 8
    map84 = True; x0 = 8; stgFirst = True; p0 = 1; p1 = 4; lateSet = True; hold = False; holdAt = 2
    pre = ''; ford = 'Erwbch1A245kaiXYI'
    pollAt = 1; slpA = 8; n64pre = 2
    pAt = 16; mAt = 22; dAt = 11; slpB = 0; gateAt = 'B'; unpLate = False; npre = 15; dP = 6; np1 = 4; pollB = 18; pfl = 'sc1'
    diagx = False; diagt = 0; enc = None; abl = ''; clrF = False; slp3 = 0; slpC = 0

def srd(a, d, base, nbytes, off=None):
    if off is None:
        a(f's_mov_b32 s{d}, s{base}'); a(f's_mov_b32 s{d+1}, s{base+1}')
    else:
        a(f's_add_u32 s{d}, s{base}, {off}'); a(f's_addc_u32 s{d+1}, s{base+1}, 0')
    a(f's_mov_b32 s{d+2}, {nbytes}'); a(f's_mov_b32 s{d+3}, 0x20000')

def enc_spin(a, cfg, role):
    if cfg.enc and cfg.enc[0] == role:
        l = a.lab('enc')
        a('s_waitcnt lgkmcnt(0)'); a('s_sub_u32 s96, s96, s98'); a('s_lshl_b32 s96, s96, 2'); a('s_add_u32 s96, s96, 3000')
        a.label(l); a('s_sleep 2'); a('s_memrealtime s[94:95]'); a('s_waitcnt lgkmcnt(0)'); a('s_sub_u32 s94, s94, s98'); a('s_cmp_lt_u32 s94, s96'); a(f's_cbranch_scc1 {l}')
def stamp(a, cfg, name, role=None):
    if cfg.enc == (role, name): a('s_memrealtime s[96:97]')
    if not cfg.stamps: return
    L = cfg.gst if role == 'G' else cfg.fst
    if name in L:
        i = L.index(name)
        a(f's_memtime {sr(sST+2*i, 2)}' if name.startswith('c') and name[1:2] == '_' else f's_memrealtime {sr(sST+2*i, 2)}')
    if 'C' + name in L: a(f's_memtime {sr(sST+2*L.index("C" + name), 2)}')
def stampv(a, cfg, name, role, sreg):
    if not cfg.stamps: return
    L = cfg.gst if role == 'G' else cfg.fst
    if name in L: a(f's_mov_b32 s{sST+2*L.index(name)}, s{sreg}')

def stamps_out(a, cfg, n, srdws):
    if not cfg.stamps: return
    a('s_waitcnt lgkmcnt(0)')
    if cfg.dbgst:
        l = a.lab('nodbg')
        a(f's_cmp_lg_u32 s{sWV}, 0'); a(f's_cbranch_scc1 {l}')
        a('s_load_dwordx2 s[4:5], s[0:1], 72'); a('s_waitcnt lgkmcnt(0)')
        srd(a, SB, 4, 256)
        a('s_mov_b64 exec, 1'); a('v_mov_b32 v2, 0')
        a(f's_not_b32 s{T0}, s{sST}'); a(f'v_mov_b32 v3, s{T0}')
        a(f'buffer_atomic_umax v3, v2, {sr(SB,4)}, 0 offen')
        for i in range(n):
            a(f'v_mov_b32 v{4+i}, s{sST+2*i}')
            a(f'buffer_atomic_umax v{4+i}, v2, {sr(SB,4)}, 0 offen offset:{4+4*i}')
        a.label(l)
        return
    a(f's_lshl_b32 s{T0}, s2, 3'); a(f's_add_u32 s{T0}, s{T0}, s{sWV}'); a(f's_lshl_b32 s{T0}, s{T0}, 6'); a(f's_add_u32 s{T0}, s{T0}, {STAMP}')
    a('s_mov_b64 exec, 1'); a('v_mov_b32 v2, 0')
    for i in range(n):
        a(f'v_mov_b32 v3, s{sST+2*i}')
        a(f'buffer_store_dword v3, v2, {sr(srdws,4)}, s{T0} offen offset:{4*i}')
        a('s_nop 1')
    a('s_mov_b64 exec, -1')

def lds_spin(a, vaddr, off, target, vt, sleep=False):
    l = a.lab('spin')
    a.wait(lg=0)
    if sleep:
        l2 = a.lab('spin'); a(f's_branch {l2}'); a.label(l); a('s_sleep 1'); a.label(l2)
    else: a.label(l)
    a(f'ds_read_b32 v{vt}, v{vaddr} offset:{off}')
    a('s_waitcnt lgkmcnt(0)')
    a(f'v_readfirstlane_b32 s{T3}, v{vt}')
    a(f's_cmp_lt_u32 s{T3}, {target}')
    a(f's_cbranch_scc1 {l}')

def kf_spin(a, vaddr, idx, vt, sleep=False):
    l = a.lab('spin4')
    a.wait(lg=0)
    if sleep:
        l2 = a.lab('spin'); a(f's_branch {l2}'); a.label(l); a('s_sleep 1'); a.label(l2)
    else: a.label(l)
    a(f'ds_read_b32 v{vt}, v{vaddr} offset:{4*idx}')
    a('s_waitcnt lgkmcnt(0)')
    a(f'v_cmp_ne_u32 vcc, {ALL4}, v{vt}')
    a(f's_cbranch_vccnz {l}')

def lds_arrive(a, vaddr, off, vone):
    a('s_mov_b64 exec, 1')
    a(f'ds_add_u32 v{vaddr}, v{vone} offset:{off}')
    a('s_mov_b64 exec, -1')

def prologue(a, cfg):
    a('s_cmp_ge_u32 s2, 256'); a('s_cbranch_scc1 L_END')
    stamp(a, cfg, 'start', 'G'); stamp(a, cfg, 'c_start', 'G')
    if cfg.diagt or cfg.enc: a('s_memrealtime s[98:99]')
    a('s_load_dwordx16 s[4:19], s[0:1], 0')
    a('s_load_dwordx2 s[20:21], s[0:1], 64')
    a('s_load_dwordx2 s[22:23], s[0:1], 80')
    a('v_lshrrev_b32 v2, 6, v0'); a('v_and_b32 v1, 63, v0')
    a(f'v_readfirstlane_b32 s{sWV}, v2')
    if cfg.map84:
        a(f's_and_b32 s3, s2, 6'); a(f's_lshl_b32 s{sG0}, s3, 2'); a('s_lshr_b32 s3, s2, 5'); a(f's_add_u32 s{sG0}, s{sG0}, s3')
        a(f's_bfe_u32 s{sJ}, s2, 0x20003'); a('s_and_b32 s3, s2, 1'); a('s_lshl_b32 s3, s3, 2'); a(f's_add_u32 s{sJ}, s{sJ}, s3')
    else:
        a(f's_and_b32 s3, s2, 7'); a(f's_lshl_b32 s{sG0}, s3, 2'); a('s_lshr_b32 s3, s2, 6'); a(f's_add_u32 s{sG0}, s{sG0}, s3')
        a(f's_lshr_b32 s{sJ}, s2, 3'); a(f's_and_b32 s{sJ}, s{sJ}, 7')
    a(f's_mul_i32 s{T0}, s{sG0}, 5'); a(f's_add_u32 s{T0}, s{T0}, s{sJ}'); a(f's_sub_u32 s{T0}, s{T0}, 8')
    a(f's_add_u32 s{T1}, s{sG0}, 154'); a(f's_cmp_eq_u32 s{sJ}, 2'); a(f's_cselect_b32 s{T1}, s{T1}, 200'); a(f's_cmp_ge_u32 s{sJ}, 3'); a(f's_cselect_b32 s{sTK}, s{T0}, s{T1}')
    a(f's_cmp_eq_u32 s{sG0}, 0'); a(f's_cselect_b32 s{sTK}, 200, s{sTK}')
    a('v_lshlrev_b32 v12, 4, v1')
    a(f's_and_b32 s{sW}, s{sWV}, 3')
    a(f'v_mov_b32 v4, {CNT}'); a('v_mov_b32 v5, 0'); a('v_and_b32 v3, 31, v1'); a('v_lshl_add_u32 v3, v3, 2, v4')
    a('ds_write_b32 v3, v5')
    a('s_waitcnt lgkmcnt(0)')
    a(f's_cmp_ge_u32 s{sWV}, 4'); a('s_cbranch_scc1 L_F')

def nonce(a):
    a(f's_mul_i32 s{sNON}, s{sNON}, 0x9e3779b1'); a(f's_add_u32 s{sNON}, s{sNON}, 0x7f4a7c15')
    a(f's_mul_i32 s{sNON+1}, s{sNON+1}, 0x85ebca6b'); a(f's_add_u32 s{sNON+1}, s{sNON+1}, 0xc2b2ae35')

def gate_code(a, cfg, GB, GA, t):
    vGX, vGG, vGL = t + 1, t + 2, t + 3
    nb = 8 if cfg.gateAt == 'F' else 4
    a(f'v_and_b32 v{t}, 15, v1'); a(f's_lshl_b32 s{T2}, s{sW}, 4'); a(f'v_add_u32 v{t}, s{T2}, v{t}'); a(f'v_lshlrev_b32 v{vGL}, 2, v{t}'); a(f'v_mul_u32_u24 v{t}, {XP}, v{t}')
    a(f'v_and_b32 v{vGG}, 48, v1'); a(f'v_add_u32 v{vGX}, v{vGG}, v{t}')
    for b in range(16 // nb):
        for k in range(nb):
            ks = nb*b + k
            a(f'ds_read_b128 {vr(GB+8*k,4)}, v{vGX} offset:{XT + 64*ks}'); a(f'ds_read_b128 {vr(GB+8*k+4,4)}, v{vGG} offset:{GW + 64*ks}')
        for k in range(nb):
            a(f'{MF16} {vr(GA+4*(k&1),4)}, {vr(GB+8*k+4,4)}, {vr(GB+8*k,4)}, {vr(GA+4*(k&1),4) if (b or k > 1) else 0}')
    a(f'v_add_f32 v{GA}, v{GA}, v{GA+4}')
    a(f'v_mul_f32 v{GA}, {f32(-1.4426950408889634)}, v{GA}'); a(f'v_exp_f32 v{GA}, v{GA}'); a(f'v_add_f32 v{GA}, 1.0, v{GA}'); a(f'v_rcp_f32 v{GA}, v{GA}')
    a(f'ds_write_b32 v{vGL}, v{GA} offset:{GL}')

def gen_G(a, cfg):
    vCN, vD, vL16 = 4, 5, 12
    vP, vQ0, vQ1, vPW, vSV = 13, 14, 15, 8, 9
    vT, vX0, vX1, vPA = 10, 11, 2, 3
    PR, ACC2, QR = 16, 136, 200
    ACC1, ACCX, FR, TM = 136, 184, 16, 232
    BI = 56
    RW = NSLOT*3072
    sU0, sNU, sRH, sFH, sSL = 58, 59, 60, 61, 62
    sAO = 63
    sK = 66
    if cfg.prioG: a(f's_setprio {cfg.prioG}')
    a(f's_lshl_b32 s{T0}, s{sW}, 9'); a(f's_add_u32 s{T0}, s{T0}, s{sG0}'); a(f's_lshl_b32 s{T0}, s{T0}, 10')
    a(f's_mul_i32 s{T1}, s{sW}, {16*XP}')
    srd(a, SX, sX, 2*MB)
    a(f's_load_dwordx2 {sr(sNON,2)}, {sr(sWS,2)}, {NONCE}')
    a(f'v_add_u32 v{vPW}, s{sW}, v{vCN}'); a(f'v_mov_b32 v{vSV}, 1')
    def post(i): a(f'ds_write_b8 v{vPW}, v{vSV} offset:{4*i}')
    sXO, sXM = 70, 71
    a(f's_mov_b32 s{sXO}, s{T0}'); a(f's_mov_b32 s{sXM}, s{T1}')
    def xdma(i0, i1):
        for i in range(i0, i1):
            a(f's_add_u32 m0, s{sXM}, {XT + i*XP}')
            if i: a(f's_add_u32 s{sXO}, s{sXO}, 32768')
            a(f'buffer_load_dwordx4 v12, {sr(SX,4)}, s{sXO} offen lds', tag='x')
    xdma(0, cfg.x0)
    a('s_barrier')
    t = TM
    vWA = FR
    a(f's_and_b32 s{T0}, s{sW}, 1'); a(f's_cmp_eq_u32 s{T0}, 0')
    a(f's_cselect_b32 s{SE}, s{sWR}, s{sWI}'); a(f's_cselect_b32 s{SE+1}, s{sWR+1}, s{sWI+1}')
    a(f's_sub_u32 s{SE}, s{SE}, 2048'); a(f's_subb_u32 s{SE+1}, s{SE+1}, 0'); a(f's_mov_b32 s{SE+2}, {2048*514 + 2048}'); a(f's_mov_b32 s{SE+3}, 0x20000')
    a(f's_cmp_ge_u32 s{sW}, 2'); a('s_cselect_b64 vcc, -1, 0')
    a(f's_lshl_b32 s{T0}, s{sJ}, 8'); a(f's_add_u32 s{T0}, s{T0}, s{sG0}')
    def waddr(k1off):
        for u in range(3):
            r_ = FR + 8 + 3*u; d_ = vWA + 3*k1off + u
            if not k1off:
                a(f'v_add_u32 v{r_}, {64*u}, v1'); a(f'v_mul_u32_u24 v{r_+1}, 1986, v{r_}'); a(f'v_lshrrev_b32 v{r_+1}, 16, v{r_+1}')
                a(f'v_mul_u32_u24 v{r_+2}, 33, v{r_+1}'); a(f'v_sub_u32 v{r_}, v{r_}, v{r_+2}'); a(f'v_lshlrev_b32 v{r_}, 4, v{r_}')
                a(f'v_add_u32 v{r_}, {2048 - 1024*u}, v{r_}')
                a(f'v_lshlrev_b32 v{r_+1}, 6, v{r_+1}'); a(f'v_add_u32 v{r_+1}, s{T0}, v{r_+1}')
            else: a(f'v_add_u32 v{r_+1}, 32, v{r_+1}')
            a(f'v_sub_u32 v{r_+2}, 2048, v{r_+1}'); a(f'v_and_b32 v{r_+2}, 2047, v{r_+2}'); a(f'v_cndmask_b32 v{r_+2}, v{r_+1}, v{r_+2}, vcc')
            a(f'v_mul_u32_u24 v{r_+2}, 514, v{r_+2}'); a(f'v_and_b32 v{r_+2}, -16, v{r_+2}'); a(f'v_add_u32 v{d_}, v{r_+2}, v{r_}')
    def wrows(k1off):
        a(f's_mul_i32 s{T1}, s{sW}, {4*WP}'); a(f's_add_u32 m0, s{T1}, {FA + (16*WP if k1off else 0)}')
        for u in range(3):
            if u == 2: a('s_mov_b64 exec, 15')
            a(f'buffer_load_dwordx4 v{vWA+3*k1off+u}, {sr(SE,4)}, 0 offen offset:{1024*u} lds', tag='ws')
            if u == 2: a('s_mov_b64 exec, -1')
    waddr(0)
    sW2O = 72
    a(f's_lshr_b32 s{T0}, s{sTK}, 1'); a(f's_lshl_b32 s{T0}, s{T0}, 14'); a(f's_and_b32 s{T1}, s{sTK}, 1'); a(f's_lshl_b32 s{T1}, s{T1}, 12'); a(f's_add_u32 s{T0}, s{T0}, s{T1}')
    a(f's_lshr_b32 s{T1}, s{sW}, 1'); a(f's_lshl_b32 s{T1}, s{T1}, 13'); a(f's_add_u32 s{T0}, s{T0}, s{T1}'); a(f's_and_b32 s{T1}, s{sW}, 1'); a(f's_lshl_b32 s{T1}, s{T1}, 11'); a(f's_add_u32 s{sW2O}, s{T0}, s{T1}')
    vG4, vBO = FR + 6, FR + 7
    a(f'v_lshlrev_b32 v{vG4}, 2, v1')
    srd(a, SA, sW1, 512*2752)
    a(f's_min_u32 s{sU0}, s{sJ}, 3'); a(f's_mul_i32 s{T0}, s{sJ}, 5'); a(f's_add_u32 s{sU0}, s{sU0}, s{T0}')
    a(f's_cmp_lt_u32 s{sJ}, 3'); a(f's_cselect_b32 s{sNU}, 6, 5')
    a(f's_and_b32 s{sRH}, s{sW}, 1'); a(f's_lshr_b32 s{sFH}, s{sW}, 1')
    a(f's_mul_i32 s{T2}, s{sFH}, 3')
    a(f's_add_u32 s{T0}, s{sU0}, s{T2}'); a(f's_lshl_b32 s{T0}, s{T0}, 6'); a(f's_sub_u32 s{T3}, s{sNU}, s{T2}')
    for u in range(3):
        a(f'v_add_u32 v{t}, {64*u}, v1')
        a(f'v_mul_u32_u24 v{t+1}, 5462, v{t}'); a(f'v_lshrrev_b32 v{t+1}, 16, v{t+1}')
        a(f'v_mul_u32_u24 v{t+2}, 12, v{t+1}'); a(f'v_sub_u32 v{t}, v{t}, v{t+2}')
        a(f'v_lshrrev_b32 v{t+2}, 2, v{t}'); a(f'v_cmp_gt_u32 vcc, s{T3}, v{t+2}')
        a(f'v_mul_u32_u24 v{t+1}, 2752, v{t+1}'); a(f'v_lshl_add_u32 v{t}, v{t}, 4, v{t+1}'); a(f'v_add_u32 v{t}, s{T0}, v{t}')
        a(f'v_mov_b32 v{t+1}, {OOB}')
        if u: a(f'v_subrev_u32 v{t}, {1024*u}, v{t}')
        a(f'v_cndmask_b32 v{vD+u}, v{t+1}, v{t}, vcc')
    a(f's_mul_i32 s{sSL}, s{sRH}, {256*2752}')
    sRM = 73
    a(f's_mul_i32 s{sRM}, s{sW}, {RW}')
    def dma_m0(s):
        if s <= 15: a(f's_add_u32 m0, s{sRM}, {RING + (s % NSLOT)*3072}')
    def dma_so(s):
        if 0 < s <= 15: a(f's_add_u32 s{sSL}, s{sSL}, {16*2752}')
    def dma1(s, u):
        if s <= 15: a(f'buffer_load_dwordx4 v{vD+u}, {sr(SA,4)}, s{sSL} offen offset:{1024*u} lds', tag=f'w{s}')
    def dma(s):
        dma_m0(s); dma_so(s)
        for u in range(3): dma1(s, u)
    sBO = 74
    a(f'v_and_b32 v{t}, 31, v1'); a(f'v_lshlrev_b32 v{t}, 1, v{t}'); a(f'v_cmp_gt_u32 vcc, 32, v1')
    a(f'v_mov_b32 v{t+1}, {OOB}'); a(f'v_cndmask_b32 v{vBO}, v{t+1}, v{t}, vcc')
    for T in range(3):
        a(f's_add_u32 s{T3}, s{T2}, {T}'); a(f's_cmp_lt_u32 s{T3}, s{sNU}')
        a(f's_cselect_b32 s{T0}, 0, {OOB}')
        a(f's_add_u32 s{T3}, s{T3}, s{sU0}')
        a(f's_lshl_b32 s{sAO+T}, s{T3}, 12'); a(f's_add_u32 s{sAO+T}, s{sAO+T}, s{T0}')
        a(f's_lshl_b32 s{T3}, s{T3}, 6'); a(f's_add_u32 s{sBO+T}, s{T3}, s{T0}')
    def late_setup():
        a(f's_mul_i32 s{T0}, s{sG0}, {REG}'); a(f's_add_u32 s{T0}, s{T0}, {ACT}')
        srd(a, SC, sWS, REG, f's{T0}')
        a(f's_mul_i32 s{T0}, s{sJ}, {REG}'); a(f's_add_u32 s{T0}, s{T0}, {W2P}')
        srd(a, SD, sWS, REG, f's{T0}')
        a(f's_lshl_b32 s{T0}, s{sRH}, 10'); a(f'v_add_u32 v{vQ0}, s{T0}, v{vL16}')
        a(f'v_and_b32 v{t+1}, 31, v1'); a(f's_lshl_b32 s{T0}, s{sFH}, 4'); a(f'v_xor_b32 v{t+1}, s{T0}, v{t+1}')
        a(f'v_lshrrev_b32 v{t+2}, 5, v1'); a(f'v_lshlrev_b32 v{t+2}, 9, v{t+2}'); a(f'v_lshl_add_u32 v{vPA}, v{t+1}, 4, v{t+2}')
        a(f's_lshl_b32 s{T0}, s{sW}, 11'); a(f'v_add_u32 v{vPA}, s{T0}, v{vPA}')
        a(f'v_lshrrev_b32 v{t}, 5, v1'); a(f'v_lshlrev_b32 v{t}, 3, v{t}'); a(f'v_bfe_u32 v{t+1}, v1, 2, 2'); a(f'v_add_u32 v{t}, v{t}, v{t+1}')
        a(f'v_mul_u32_u24 v{t}, 192, v{t}')
        a(f'v_bfe_u32 v{t+2}, v1, 4, 1'); a(f'v_lshl_add_u32 v{t}, v{t+2}, 5, v{t}')
        a(f'v_and_b32 v{t+2}, 3, v1'); a(f'v_lshl_add_u32 v{t}, v{t+2}, 3, v{t}')
        a(f's_add_u32 s{T0}, s{sRM}, {RING}'); a(f'v_add_u32 v{vT}, s{T0}, v{t}')
        a(f'v_add_u32 v{vP}, s{T0}, v{vL16}')
        a(f's_xor_b32 s{T0}, s{sW}, 1'); a(f's_mul_i32 s{T0}, s{T0}, {RW}'); a(f's_add_u32 s{T0}, s{T0}, {RING}'); a(f'v_add_u32 v{vQ1}, s{T0}, v{vL16}')
        a(f'v_and_b32 v{t}, 31, v1'); a(f'v_mul_u32_u24 v{t}, {XP}, v{t}'); a(f'v_lshrrev_b32 v{t+1}, 5, v1'); a(f'v_lshl_add_u32 v{t}, v{t+1}, 4, v{t}')
        a(f's_mul_i32 s{T0}, s{sRH}, {32*XP + 512}'); a(f'v_add_u32 v{vX0}, s{T0}, v{t}')
        a(f's_mul_i32 s{T0}, s{sRH}, {512 - 32*XP}'); a(f's_add_u32 s{T0}, s{T0}, {32*XP}'); a(f'v_add_u32 v{vX1}, s{T0}, v{t}')
        for T in range(3):
            for k in range(1, 4): a(f'v_mov_b32 v{BI+4*T+k}, 0')
        a(f'v_cmp_gt_u32 vcc, 32, v1'); a(f'v_mov_b32 v{t}, 0x3f80'); a(f'v_mov_b32 v{BI+13}, 0'); a(f'v_mov_b32 v{BI+14}, 0'); a(f'v_mov_b32 v{BI+15}, 0')
        a(f'v_cndmask_b32 v{BI+12}, 0, v{t}, vcc')
        a(f's_mov_b32 s{sK}, {f32(-1.4426950408889634)}'); a(f's_mov_b32 s{sK+1}, {f32(-1.4426950408889634)}')
        a(f's_mov_b32 s{sK+2}, 0.5'); a(f's_mov_b32 s{sK+3}, 0.5')
        nonce(a)
    if not cfg.lateSet: late_setup()
    stamp(a, cfg, 'set', 'G')
    xdma(cfg.x0, 16)
    srd(a, SB, sB1, 2752)
    for T in range(3): a(f'buffer_load_ushort v{BI+4*T}, v{vBO}, {sr(SB,4)}, s{sBO+T} offen')
    def staging():
        wrows(0)
        a(f's_cmp_lg_u32 s{sG0}, 0'); h = a.skip_begin('s_cbranch_scc1')
        a(f's_cmp_ge_u32 s{sW}, 2'); a('s_cselect_b64 vcc, -1, 0'); waddr(1); wrows(1); a.skip_end(h, drop=True)
        srd(a, SB, sW2, 1376*1024)
        a(f's_lshl_b32 s{T1}, s{sW}, 11'); a(f's_add_u32 m0, s{T1}, {FB}')
        a(f's_cmp_ge_u32 s{sTK}, 172'); h = a.skip_begin('s_cbranch_scc1')
        for u in range(2): a(f'buffer_load_dwordx4 v12, {sr(SB,4)}, s{sW2O} offen offset:{1024*u} lds', tag='ws')
        a.skip_end(h, drop=True)
        srd(a, SB, sGWp, 1024)
        a(f's_lshl_b32 s{T0}, s{sW}, 8'); a(f's_add_u32 m0, s{T0}, {GW}')
        a(f'buffer_load_dword v{vG4}, {sr(SB,4)}, s{T0} offen lds', tag='ws')
        srd(a, SE, sOUT, 2*MB)
    if cfg.stgFirst: staging()
    for s in range(cfg.p0): dma(s)
    stamp(a, cfg, 'iss', 'G')
    a.wait_tag('x'); post(kX); stamp(a, cfg, 'X', 'G')
    if not cfg.stgFirst: staging()
    for s in range(cfg.p0, cfg.p1): dma(s)
    if cfg.lateSet: late_setup()
    for T in range(3): a(f'{MF32} {vr(ACC1+16*T,16)}, {vr(BI+4*T,4)}, {vr(BI+12,4)}, 0')
    def reads(s):
        if s > 15: return [None]*8
        f = FR + 20*(s & 1)
        L = [f'ds_read_b128 {vr(f,4)}, v{vX0} offset:{XT + s*32}', f'ds_read_b128 {vr(f+4,4)}, v{vX1} offset:{XT + s*32}']
        for T in range(3):
            for hf in range(2):
                L.append(f'ds_read_b64_tr_b16 {vr(f+8+4*T+2*hf,2)}, v{vT} offset:{(s % NSLOT)*3072 + 768*hf + 64*T}')
        return L
    def rd(s, i, j):
        for x in reads(s)[i:j]:
            if x: a(x, tag=f'r{s}')
    def mf(s, T, rt):
        f = FR + 20*(s & 1); d = (ACCX if rt else ACC1) + 16*T
        a(f'{MF32} {vr(d,16)}, {vr(f+8+4*T,4)}, {vr(f+4*rt,4)}, {vr(d,16) if (s or not rt) else 0}')
    a.wait_tag('w0')
    if cfg.stgFirst: post(kW)
    kf_spin(a, vCN, kX, TM)
    pend = []
    for i in list(range(7, cfg.npre)) + list(range(7)):
        r = PR + 8*i
        pend.append([f's_mov_b32 s77, {i*8192}', f'buffer_load_dwordx4 {vr(r,4)}, v{vPA}, {sr(SD,4)}, s77 offen {cfg.pfl}'])
        pend.append([f'buffer_load_dwordx4 {vr(r+4,4)}, v{vPA}, {sr(SD,4)}, s77 offen offset:1024 {cfg.pfl}'])
    early = [2*(cfg.npre - 7)]
    def popP(n):
        for _ in range(n):
            if pend:
                for l in pend.pop(0): a(l, tag='p')
    def popE(s):
        if s >= cfg.pAt and early[0]: popP(1); early[0] -= 1
    rd(0, 0, 8)
    n = NSLOT - 1
    if not cfg.hold:
        for s in range(cfg.p1, n): dma(s)
    nxt = max(cfg.p1, n) if not cfg.hold else cfg.p1
    for s in range(14):
        stamp(a, cfg, f'k{s}', 'G')
        if cfg.hold and s == cfg.holdAt:
            kf_spin(a, vCN, kS, TM, sleep=True)
            stamp(a, cfg, 'kS', 'G')
            while nxt < s + n: dma(nxt); nxt += 1
        ld = nxt if (nxt == s + n and (not cfg.hold or s >= cfg.holdAt)) else 99
        if s == cfg.pAt:
            lds_spin(a, vCN, cGO, 4, TM, sleep=True); stamp(a, cfg, 'go', 'G')
        if s == cfg.mAt: post(kM)
        if s == cfg.dAt: post(kD)
        a.wait_ltag(f'r{s}')
        mf(s, 0, 0)
        a.wait_tag(f'w{s+1}')
        if s == cfg.p0 - 1 and not cfg.stgFirst: post(kW)
        rd(s+1, 0, 2)
        mf(s, 0, 1); rd(s+1, 2, 4); dma_m0(ld)
        mf(s, 1, 0); rd(s+1, 4, 6); dma_so(ld)
        mf(s, 1, 1); rd(s+1, 6, 8); dma1(ld, 0); popE(s)
        mf(s, 2, 0); dma1(ld, 1); popE(s)
        mf(s, 2, 1); dma1(ld, 2); popE(s); popE(s)
        if ld != 99: nxt += 1
    assert nxt >= 16 and cfg.pAt > 15
    a.wait_ltag('r14')
    mf(14, 0, 1); a.wait_tag('w15'); post(kL); rd(15, 0, 4)
    mf(14, 1, 1); rd(15, 4, 8)
    mf(14, 2, 1); mf(14, 0, 0)
    a.wait_ltag('r15')
    for T in range(3): mf(15, T, 1)
    def exw(q): a(f'ds_write_b128 v{vP}, {vr(ACCX+4*q,4)} offset:{1024*q}')
    mf(14, 1, 0); mf(14, 2, 0)
    for q in range(0, 4): exw(q)
    mf(15, 0, 0)
    for q in range(4, 7): exw(q)
    mf(15, 1, 0)
    for q in range(7, 10): exw(q)
    mf(15, 2, 0)
    stamp(a, cfg, 'Kl', 'G')
    if cfg.prioM != cfg.prioG: a(f's_setprio {cfg.prioM}')
    for q in range(10, 12): exw(q)
    a.wait(lg=0); post(kK)
    kf_spin(a, vCN, kK, TM)
    if cfg.mAt == 16: post(kM)
    for q in range(12): a(f'ds_read_b128 {vr(ACCX+4*q,4)}, v{vQ1} offset:{1024*q}')
    stamp(a, cfg, 'Kend', 'G')
    for T in range(3):
        for hb in range(2):
            h = ACC1 + 16*T + 8*hb
            e, u, o = TM, TM + 8, TM + 16 + 4*((2*T+hb) % 2)
            for k in range(4): a(f'v_pk_add_f32 {vr(h+2*k,2)}, {vr(h+2*k,2)}, {vr(h+48+2*k,2)}')
            for k in range(4): a(f'v_pk_mul_f32 {vr(e+2*k,2)}, {vr(h+2*k,2)}, {sr(sK,2)}')
            for k in range(8): a(f'v_exp_f32 v{e+k}, v{e+k}')
            for k in range(4): a(f'v_pk_add_f32 {vr(u+2*k,2)}, {vr(e+2*k,2)}, {sr(sK+2,2)}')
            for k in range(4): a(f'v_pk_fma_f32 {vr(e+2*k,2)}, {vr(e+2*k,2)}, {vr(e+2*k,2)}, {vr(u+2*k,2)}')
            for k in range(8): a(f'v_rcp_f32 v{e+k}, v{e+k}')
            for k in range(4): a(f'v_pk_mul_f32 {vr(e+2*k,2)}, {vr(e+2*k,2)}, {vr(u+2*k,2)} clamp')
            for k in range(4): a(f'v_pk_mul_f32 {vr(e+2*k,2)}, {vr(e+2*k,2)}, {vr(h+2*k,2)}')
            for k in range(4): a(f'v_cvt_pk_bf16_f32 v{o+k}, v{e+2*k}, v{e+2*k+1}')
            a(f'buffer_store_dwordx4 {vr(o,4)}, v{vQ0}, {sr(SC,4)}, s{sAO+T} offen offset:{2048*hb} sc1', tag='act')
            if cfg.mAt == 20 + 2*T + hb: post(kM)
    stamp(a, cfg, 'mish', 'G')
    if cfg.prioM != cfg.prioG2: a(f's_setprio {cfg.prioG2}')
    def wait_go():
        lds_spin(a, vCN, cGO2 if 'B' in cfg.ford else cGO, 4, TM + 2, sleep=True); stamp(a, cfg, 'go', 'G')
    assert cfg.np1 == 0 or cfg.mAt != 26
    if cfg.np1: wait_go()
    popP(cfg.np1)
    srd(a, SA, sWS, WSZ)
    a(f'v_mov_b32 v{TM+8}, 1'); a(f'v_mov_b32 v{TM+10}, s{sNON}'); a(f'v_mov_b32 v{TM+11}, s{sNON+1}')
    a(f'v_and_b32 v{TM+12}, 7, v1'); a(f'v_lshlrev_b32 v{TM+12}, 7, v{TM+12}'); a(f'v_mov_b32 v{TM+13}, 0')
    a(f's_lshl_b32 s{T0}, s{sG0}, 10'); a(f's_add_u32 s{T0}, s{T0}, {FLAGB}'); a(f's_lshl_b32 s{T2}, s{sJ}, 7'); a(f's_add_u32 s{T2}, s{T2}, s{T0}')
    a.wait_tag('act')
    stamp(a, cfg, 'drain', 'G')
    if cfg.mAt == 26: post(kM)
    a('s_mov_b64 exec, 1'); a(f'ds_add_rtn_u32 v{TM+9}, v{vCN}, v{TM+8} offset:{cACT}'); a('s_mov_b64 exec, -1')
    a(f'v_readfirstlane_b32 s{T3}, v{TM+9}')
    lnp = a.lab('nopollB'); lpb = a.lab('pollB'); lgb = a.lab('goB')
    a(f's_cmp_eq_u32 s{T3}, 3'); a(f's_cselect_b32 s{T2}, s{T2}, {OOB}'); a(f's_mov_b32 s{sNU}, s{T3}')
    a('s_mov_b64 exec, 1'); a(f'buffer_store_dwordx2 {vr(TM+10,2)}, v{TM+13}, {sr(SA,4)}, s{T2} offen sc1'); a('s_mov_b64 exec, -1')
    a(f's_cmp_eq_u32 s{sNU}, 3'); a(f's_cselect_b32 s{sNU+11}, s{T0}, {OOB}')
    if not cfg.np1: wait_go()
    popP(cfg.pollB)
    if cfg.slpB: a(f's_sleep {cfg.slpB}')
    a(f'buffer_load_dwordx2 {vr(TM,2)}, v{TM+12}, {sr(SA,4)}, s{sNU+11} offen sc1', tag='pb')
    popP(99)
    stamp(a, cfg, 'piss', 'G')
    gate = lambda: gate_code(a, cfg, 136, 168, 176)
    a(f's_mov_b32 s{sU0}, 0')
    a(f's_cmp_lg_u32 s{sNU}, 3'); a(f's_cbranch_scc1 {lnp}')
    vq = list(a.vq)
    a.wait_tag('pb')
    a.label(lpb)
    a(f'v_xor_b32 v{TM}, s{sNON}, v{TM}'); a(f'v_xor_b32 v{TM+1}, s{sNON+1}, v{TM+1}'); a(f'v_or_b32 v{TM}, v{TM}, v{TM+1}')
    a(f'v_cmp_ne_u32 vcc, 0, v{TM}'); a(f's_cbranch_vccz {lgb}')
    a(f'buffer_load_dwordx2 {vr(TM,2)}, v{TM+12}, {sr(SA,4)}, s{T0} offen sc1')
    a('s_waitcnt vmcnt(0)')
    a(f's_add_u32 s{sU0}, s{sU0}, 1'); a(f's_cmp_lt_u32 s{sU0}, {cfg.spin}'); a(f's_cbranch_scc1 {lpb}')
    a.label(lgb)
    lds_arrive(a, vCN, cGOB, TM+8)
    a.label(lnp)
    a.vq = vq
    a(f's_lshl_b32 s{T0}, s{sW}, 11'); a(f's_lshl_b32 s{T2}, s{sRH}, 10'); a(f's_add_u32 s{T0}, s{T0}, s{T2}')
    a(f'v_add_u32 v{vQ0}, s{T0}, v{vL16}'); a(f'v_xor_b32 v{vQ1}, 1024, v{vQ0}')
    if cfg.gateAt == 'B': gate()
    lds_spin(a, vCN, cGOB, 1, TM + 2, sleep=True)
    stamp(a, cfg, 'goB', 'G')
    NS = 22
    def loadP(i, hb):
        if i < cfg.npre or i >= NS: return
        r = PR + 8*(i % cfg.NP)
        if hb == 0: a(f's_mov_b32 s{T1}, {i*8192}')
        a(f'buffer_load_dwordx4 {vr(r+4*hb,4)}, v{vPA}, {sr(SD,4)}, s{T1} offen offset:{1024*hb} {cfg.pfl}')
    def loadQ(i, hb):
        if i >= NS: return
        k = i % cfg.NQ; r = QR + 8*k
        if hb == 0: a(f's_mov_b32 s{sSL}, {i*8192}')
        a(f'buffer_load_dwordx4 {vr(r+4*hb,4)}, v{vQ0+hb}, {sr(SC,4)}, s{sSL} offen sc1')
    dq, dp = cfg.NQ - 1, cfg.dP
    assert dp < cfg.NP and cfg.npre <= cfg.NP
    for i in range(max(dq, dp)):
        if i < dq: loadQ(i, 0); loadQ(i, 1)
        if i < dp: loadP(i, 0); loadP(i, 1)
    if cfg.gateAt == 'Q': gate()
    for i in range(NS - 2):
        p = PR + 8*(i % cfg.NP); q = QR + 8*(i % cfg.NQ)
        stamp(a, cfg, f'g{i}', 'G')
        for mt in range(2):
            for nt in range(2):
                d = ACC2 + 32*mt + 16*nt
                a(f'{MF32} {vr(d,16)}, {vr(p+4*mt,4)}, {vr(q+4*nt,4)}, {vr(d,16) if i else 0}')
                if nt == 0: loadQ(i + dq, mt)
                else: loadP(i + dp, mt)
    def quad(k, mt, rr): return ACC2 + 32*mt + 16*(k & 1) + 4*(2*(k >> 1) + rr)
    for k in range(1, 4):
        a(f's_xor_b32 s{T0}, s{sW}, {k}'); a(f's_mul_i32 s{T0}, s{T0}, 12288'); a(f's_add_u32 s{T0}, s{T0}, {RED}'); a(f'v_add_u32 v{4+k}, s{T0}, v{vL16}')
    def redw(k, mt, rr): a(f'ds_write_b128 v{4+k}, {vr(quad(k,mt,rr),4)} offset:{(k-1)*4096 + (2*mt+rr)*1024}')
    def mf2(i, mt, nt):
        p = PR + 8*(i % cfg.NP); q = QR + 8*(i % cfg.NQ); d = ACC2 + 32*mt + 16*nt
        a(f'{MF32} {vr(d,16)}, {vr(p+4*mt,4)}, {vr(q+4*nt,4)}, {vr(d,16)}')
    for mt in range(2):
        for i in (NS - 2, NS - 1): mf2(i, mt, 1)
    mf2(NS - 2, 0, 0); mf2(NS - 1, 0, 0)
    for k in (1, 3):
        for rr in range(2): redw(k, 0, rr)
    mf2(NS - 2, 1, 0)
    redw(1, 1, 0); redw(1, 1, 1)
    mf2(NS - 1, 1, 0)
    redw(3, 1, 0); redw(3, 1, 1); redw(2, 0, 0); redw(2, 0, 1)
    stamp(a, cfg, 'g2end', 'G')
    vRA, vAA, vGA, vO = 2, 3, 8, 9
    a(f's_mul_i32 s{T0}, s{sW}, 12288'); a(f's_add_u32 s{T0}, s{T0}, {RED}'); a(f'v_add_u32 v{vRA}, s{T0}, v{vL16}')
    a(f'v_and_b32 v10, 31, v1'); a(f's_and_b32 s{T0}, s{sW}, 1'); a(f's_lshl_b32 s{T0}, s{T0}, 5'); a(f'v_add_u32 v10, s{T0}, v10')
    a(f'v_lshrrev_b32 v11, 5, v1'); a(f's_lshr_b32 s{T0}, s{sW}, 1'); a(f's_lshl_b32 s{T0}, s{T0}, 2'); a(f'v_add_u32 v11, s{T0}, v11')
    a(f'v_lshlrev_b32 v{vGA}, 2, v10'); a(f'v_add_u32 v{vGA}, {GL}, v{vGA}')
    a(f'v_bfe_u32 v13, v10, 1, 3'); a('v_xor_b32 v13, v13, v11'); a(f'v_lshlrev_b32 v{vAA}, 7, v10'); a(f'v_lshl_add_u32 v{vAA}, v13, 4, v{vAA}'); a(f'v_add_u32 v{vAA}, {FB}, v{vAA}')
    a(f'v_xor_b32 v13, 32, v{vAA}')
    a(f'v_lshlrev_b32 v{vO}, 15, v10'); a(f'v_lshl_add_u32 v{vO}, v11, 7, v{vO}')
    a(f's_lshl_b32 s{T1}, s{sG0}, 10'); a(f's_lshl_b32 s{T0}, s{sJ}, 4'); a(f's_add_u32 s{T1}, s{T1}, s{T0}')
    redw(2, 1, 0); redw(2, 1, 1)
    enc_spin(a, cfg, 'G')
    a.wait(lg=0); a('s_barrier')
    stamp(a, cfg, 'fbar', 'G')
    RD = PR
    for k in range(1, 4):
        for mq in range(4): a(f'ds_read_b128 {vr(RD+16*(k-1)+4*mq,4)}, v{vRA} offset:{(k-1)*4096 + mq*1024}')
    AA = PR + 48
    a(f'ds_read_b128 {vr(AA,4)}, v{vAA}'); a(f'ds_read_b128 {vr(AA+4,4)}, v13'); a(f'ds_read_b32 v14, v{vGA}')
    for k in range(1, 4):
        for mt in range(2):
            for rr in range(2):
                for pp in range(2):
                    d = quad(0, mt, rr) + 2*pp; s_ = RD + 16*(k-1) + 4*(2*mt+rr) + 2*pp
                    a(f'v_pk_add_f32 {vr(d,2)}, {vr(d,2)}, {vr(s_,2)}')
    U = PR + 56
    for rr in range(2):
        for k in range(4):
            lo, hi = U + 2*k, U + 2*k + 1
            b0, b1 = quad(0, 0, rr) + k, quad(0, 1, rr) + k
            a(f'v_lshlrev_b32 v{lo}, 16, v{AA+4*rr+k}'); a(f'v_and_b32 v{hi}, 0xffff0000, v{AA+4*rr+k}')
            a(f'v_sub_f32 v{lo}, v{lo}, v{b0}'); a(f'v_sub_f32 v{hi}, v{hi}, v{b1}')
            a(f'v_fmac_f32 v{b0}, v14, v{lo}'); a(f'v_fmac_f32 v{b1}, v14, v{hi}')
        for k in range(4): a(f'v_cvt_pk_bf16_f32 v{U+8+4*rr+k}, v{quad(0,0,rr)+k}, v{quad(0,1,rr)+k}')
        a(f'buffer_store_dwordx4 {vr(U+8+4*rr,4)}, v{vO}, {sr(SE,4)}, s{T1} offen offset:{256*rr}')
    stamp(a, cfg, 'end', 'G')
    if cfg.stamps and 'end2' in cfg.gst:
        a('s_waitcnt vmcnt(0)'); stamp(a, cfg, 'end2', 'G')
    if cfg.stamps:
        stamp(a, cfg, 'c_end', 'G'); stampv(a, cfg, 'retry', 'G', sU0); srd(a, SA, sWS, WSZ); stamps_out(a, cfg, 10, SA)
    a('s_endpgm')

def cs_pairs(a, base, step, mults, tmp, outs):
    for g in range(len(mults)//4):
        an, c, s = tmp, tmp + 4, tmp + 8
        for k in range(4):
            m = mults[4*g+k]
            if m: a(f'v_fmamk_f32 v{an+k}, v{step}, {f32(float(m))}, v{base}')
        src = lambda k: an + k if mults[4*g+k] else base
        for k in range(4): a(f'v_cos_f32 v{c+k}, v{src(k)}')
        for k in range(4): a(f'v_sin_f32 v{s+k}, v{src(k)}')
        L = [(kind, dst, p) for p in range(2) for kind, dst in outs(2*g+p)]
        L.sort(key=lambda x: x[0] != 'c')
        for kind, dst, p in L:
            if kind == 'c': a(f'v_cvt_pk_bf16_f32 v{dst}, v{c+2*p}, v{c+2*p+1}')
            elif kind == 's': a(f'v_cvt_pk_bf16_f32 v{dst}, v{s+2*p}, v{s+2*p+1}')
            else: a(f'v_cvt_pk_bf16_f32 v{dst}, -v{s+2*p}, -v{s+2*p+1}')

def gen_F(a, cfg):
    a0 = a
    vN, vQ, vL16, vCN, vONE = 2, 3, 12, 4, 5
    vE2, vMA, vMB, vNf, vQf, vN4 = 6, 7, 8, 9, 10, 15
    M1, M2, M4, M5, N8, N64, WF, IN, WK, PK = 16, 48, 72, 96, 128, 152, 184, 200, 232, 248
    sB, sK1, sROT, sPAIR = 58, 59, 60, 61
    mK0, mK5, mK04 = 62, 64, 66
    sWD = 68; sW2D = 48
    sE2, sE1, sIH, sKH = 70, 72, 74, 75
    a0.label('L_F')
    a('s_barrier')
    t = WK
    a(f'v_and_b32 v{vN}, 15, v1'); a(f'v_lshrrev_b32 v{vQ}, 4, v1')
    a(f's_load_dwordx2 {sr(sNON,2)}, {sr(sWS,2)}, {NONCE}')
    srd(a, SA, sWS, WSZ)
    a(f'v_mov_b32 v{vONE}, 1')
    if 'G' in cfg.abl:
        lds_arrive(a, vCN, cGO, vONE); a(f'v_add_u32 v14, s{sW}, v{vCN}'); a(f'ds_write_b8 v14, v{vONE} offset:{4*kS}'); a.wait(lg=0); nonce(a); a('s_branch L_FQ')
    LW, LM, P0, P1 = M4, 188, 168, 176
    vSG, vAL, vAU, vMA_, vMB_, vT2 = M5, M5 + 3, M5 + 4, M5 + 5, M5 + 6, M5 + 7
    vWD, vMD, vD2 = 192, 193, 194
    mZ, mP = 76, 78
    def perm_addr(a):
        vK, vC = t, t + 1
        a(f's_cmp_eq_u32 s{sG0}, 0'); a(f's_cselect_b64 {sr(mZ,2)}, -1, 0')
        a(f'v_lshrrev_b32 v{vK}, 3, v1'); a(f'v_and_b32 v{t+2}, 7, v1'); a(f'v_lshl_add_u32 v{vC}, v{t+2}, 3, v{vK}')
        a(f's_lshl_b32 s{T2}, s{sW}, 6'); a(f'v_add_u32 v{vC}, s{T2}, v{vC}')
        a(f'v_mul_u32_u24 v{vWD}, {cfg.SW}, v{vK}'); a(f'v_lshl_add_u32 v{vWD}, v{t+2}, 4, v{vWD}'); a(f's_lshl_b32 s{T1}, s{sW}, 7'); a(f'v_add_u32 v{vWD}, s{T1}, v{vWD}')
        a(f'v_cmp_eq_u32 vcc, 0, v{vC}'); a(f'v_mov_b32 v{t+7}, {OOB}'); a(f'v_cndmask_b32 v{vWD}, v{vWD}, v{t+7}, vcc')
        a(f's_lshl_b32 s{T0}, s{sG0}, 1'); a(f's_and_b32 s{T0}, s{T0}, 15'); a(f's_sub_u32 s{T1}, 16, s{T0}'); a(f's_and_b32 s{T1}, s{T1}, 15')
        a(f's_add_u32 s{T0}, s{T0}, {FA}'); a(f's_add_u32 s{T1}, s{T1}, {FA + 8*WP + 512}')
        a(f'v_cmp_lt_u32 vcc, 4, v{vK}'); a(f's_and_b64 vcc, vcc, {sr(mZ,2)}'); a(f'v_mov_b32 v{t+3}, {16*WP}'); a(f'v_cndmask_b32 v{t+4}, 0, v{t+3}, vcc')
        a(f'v_lshlrev_b32 v{vC}, 1, v{vC}'); a(f'v_add3_u32 v{vAL}, v{vC}, s{T0}, v{t+4}')
        a(f'v_sub_u32 v{vAU}, s{T1}, v{vC}'); a(f'v_add_u32 v{vAU}, v{vAU}, v{t+4}')
        a(f'v_and_b32 v{t+5}, 3, v{vK}'); a(f'v_cmp_eq_u32 vcc, 0, v{t+5}'); a(f's_and_b64 {sr(mP,2)}, vcc, {sr(mZ,2)}')
        a(f'v_add_u32 v{t+5}, v{vAL}, v{t+3}'); a(f'v_cndmask_b32 v{vAU}, v{vAU}, v{t+5}, {sr(mP,2)}')
        a(f'v_mov_b32 v{vSG}, 0x80000000'); a(f'v_cndmask_b32 v{vSG}, v{vSG}, 0, {sr(mP,2)}')
        a(f'v_bfe_u32 v{t}, v1, 2, 1'); a(f'v_bfe_u32 v{t+1}, v1, 3, 1'); a(f'v_and_b32 v{t+2}, 3, v1')
        a(f'v_mul_u32_u24 v{t+4}, {16*WP}, v{t}'); a(f'v_cndmask_b32 v{t+4}, 0, v{t+4}, {sr(mZ,2)}')
        a(f'v_cndmask_b32 v{t+5}, v{t}, v{t+1}, {sr(mZ,2)}'); a(f'v_lshlrev_b32 v{t+5}, 9, v{t+5}')
        a(f'v_mul_u32_u24 v{t+6}, {WP}, v{t+2}'); a(f'v_add3_u32 v{t+4}, v{t+4}, v{t+5}, v{t+6}')
        a(f'v_add_u32 v{vMA_}, s{T0}, v{t+4}'); a(f's_sub_u32 s{T1}, s{T1}, 512'); a(f'v_add_u32 v{vMB_}, s{T1}, v{t+4}')
        a(f's_mul_i32 s{T0}, s{sG0}, {8*cfg.SW}'); a(f's_lshl_b32 s{T1}, s{sJ}, 10'); a(f's_add_u32 s{sWD}, s{T0}, s{T1}'); a(f's_add_u32 s{sWD}, s{sWD}, {WB}')
        a(f'v_lshlrev_b32 v{t+4}, 9, v{t}'); a(f'v_add_u32 v{t+4}, s{sWD}, v{t+4}')
        a(f's_lshl_b32 s{T1}, s{sJ}, 4'); a(f's_add_u32 s{T1}, s{T1}, {WBX}'); a(f'v_lshlrev_b32 v{t+5}, 7, v{t}'); a(f'v_add_u32 v{t+5}, s{T1}, v{t+5}')
        a(f'v_cmp_eq_u32 vcc, 0, v{t+1}'); a(f'v_cndmask_b32 v{vMD}, v{t+5}, v{t+4}, vcc'); a(f'v_lshl_add_u32 v{vMD}, v{t+2}, 2, v{vMD}')
        a(f's_cmp_eq_u32 s{sG0}, 0'); a(f's_cselect_b32 s{T1}, 16, 8'); a(f'v_cmp_gt_u32 vcc, s{T1}, v1'); a(f'v_cndmask_b32 v{vMD}, v{t+7}, v{vMD}, vcc')
        a(f'v_bfe_u32 v{t}, v1, 2, 2'); a(f'v_lshlrev_b32 v{vT2}, 10, v{t}'); a(f'v_bfe_u32 v{t}, v1, 1, 1'); a(f'v_lshl_add_u32 v{vT2}, v{t}, 7, v{vT2}')
        a(f'v_and_b32 v{t}, 1, v1'); a(f'v_lshl_add_u32 v{vT2}, v{t}, 3, v{vT2}'); a(f'v_lshl_add_u32 v{vT2}, v{vQ}, 4, v{vT2}')
        a(f's_lshl_b32 s{T0}, s{sW}, 8'); a(f'v_add_u32 v{vT2}, s{T0}, v{vT2}')
        a(f's_mov_b32 s{T1}, {REG}'); a(f'v_mul_lo_u32 v{vD2}, v{vQ}, s{T1}'); a(f'v_and_b32 v{t}, 1, v1'); a(f'v_lshl_add_u32 v{vD2}, v{t}, 10, v{vD2}')
        a(f'v_bfe_u32 v{t}, v1, 1, 3'); a(f'v_lshl_add_u32 v{vD2}, v{t}, 4, v{vD2}'); a(f's_lshl_b32 s{T0}, s{sW}, 7'); a(f'v_add_u32 v{vD2}, s{T0}, v{vD2}')
        a(f's_lshr_b32 s{T2}, s{sTK}, 1'); a(f's_lshl_b32 s{T2}, s{T2}, 11'); a(f's_and_b32 s{T1}, s{sTK}, 1'); a(f's_lshl_b32 s{T1}, s{T1}, 9'); a(f's_add_u32 s{T2}, s{T2}, s{T1}')
        a(f's_add_u32 s{sW2D}, s{T2}, {W2P}'); a(f's_add_u32 s{sW2D+1}, s{sW2D}, {4*REG}')
    def job_r(a):
        kf_spin(a, vCN, kW, IN, sleep=True)
        for up in range(2):
            for ar in range(2):
                for r in range(4): a(f'ds_read_u16 v{LW+8*up+4*ar+r}, v{vAU if up else vAL} offset:{(4*ar+r)*WP}')
            if up == 0:
                for u in range(2):
                    for hf in range(2): a(f'ds_read_b64_tr_b16 {vr(P0+4*u+2*hf,2)}, v{vT2} offset:{FB + 4096*hf + 64*u}')
        for r in range(4): a(f'v_lshl_or_b32 v{P1+r}, v{LW+4+r}, 16, v{LW+r}')
        a(f'ds_read_u16 v{LM}, v{vMA_}'); a(f'ds_read_u16 v{LM+1}, v{vMA_} offset:{4*WP}'); a(f'ds_read_u16 v{LM+2}, v{vMB_}'); a(f'ds_read_u16 v{LM+3}, v{vMB_} offset:{4*WP}')
        for r in range(4):
            a(f'v_lshl_or_b32 v{P1+4+r}, v{LW+12+r}, 16, v{LW+8+r}'); a(f'v_xor_b32 v{P1+4+r}, v{P1+4+r}, v{vSG}')
        for k in range(4): a(f'v_lshlrev_b32 v{LM+k}, 16, v{LM+k}')
        a(f'v_add_f32 v{LM}, v{LM}, v{LM+2}'); a(f'v_sub_f32 v{LM+1}, v{LM+1}, v{LM+3}')
        a(f'v_mul_f32 v{LM}, 0.5, v{LM}'); a(f'v_mul_f32 v{LM+1}, 0.5, v{LM+1}'); a(f'v_cvt_pk_bf16_f32 v{LM}, v{LM}, v{LM+1}')
    mark = {}
    def job_w(a):
        a(f's_cmp_ge_u32 s{sTK}, 172'); h = a.skip_begin('s_cbranch_scc1')
        for u in range(2): a(f'buffer_store_dwordx4 {vr(P0+4*u,4)}, v{vD2}, {sr(SA,4)}, s{sW2D+u} offen sc1')
        a.skip_end(h, drop=True)
        mark['w'] = len(a.vq)
    def job_b(a):
        a(f'buffer_store_dwordx4 {vr(P1,4)}, v{vWD}, {sr(SA,4)}, s{sWD} offen sc1')
        a(f'buffer_store_dwordx4 {vr(P1+4,4)}, v{vWD}, {sr(SA,4)}, s{sWD} offen offset:512 sc1')
        a(f's_cmp_lg_u32 s{sW}, 3'); h = a.skip_begin('s_cbranch_scc1')
        a(f'buffer_store_dword v{LM}, v{vMD}, {sr(SA,4)}, 0 offen sc1')
        a.skip_end(h, drop=True)
    def job_c(a):
        if not cfg.clrF: return
        for k in range(4): a(f'v_mov_b32 v{P1+8+k}, -1')
        for tt in range(2): a(f'buffer_store_dwordx4 {vr(P1+8,4)}, v{vE2}, {sr(SA,4)}, s{sE2+tt} offen sc1')
    def job_h(a):
        if cfg.hold: a(f'v_add_u32 v14, s{sW}, v{vCN}'); a(f'ds_write_b8 v14, v{vONE} offset:{4*kS}')
        stamp(a, cfg, 'wiss', 'F')
    def signal(a, base, stride, cnt, younger):
        f0 = WK
        a(f'v_mov_b32 v{f0}, s{sNON}'); a(f'v_mov_b32 v{f0+1}, s{sNON+1}'); a(f'v_mov_b32 v{f0+2}, 0')
        a(f's_mul_i32 s{T0}, s2, {stride}'); a(f's_add_u32 s{T0}, s{T0}, {base}')
        a(f's_waitcnt vmcnt({younger})')
        a('s_mov_b64 exec, 1'); a(f'ds_add_rtn_u32 v{f0+3}, v{vCN}, v{vONE} offset:{cnt}')
        a(f'v_readfirstlane_b32 s{T1}, v{f0+3}')
        a(f's_cmp_lg_u32 s{T1}, 3'); h = a.skip_begin('s_cbranch_scc1')
        a(f'buffer_store_dwordx2 {vr(f0,2)}, v{f0+2}, {sr(SA,4)}, s{T0} offen sc1')
        a.skip_end(h, drop=True)
        a('s_mov_b64 exec, -1')
    def poll(a, base, stride, cnt, name, pr):
        lgo = a.lab('go'); lp = a.lab('poll')
        a(f's_mul_i32 s{T0}, s{sW}, {64*stride}'); a(f's_add_u32 s{T0}, s{T0}, {base}'); a(f's_mov_b32 s{T1}, 0'); a(f'v_mul_u32_u24 v{pr+2}, {stride}, v1')
        a.label(lp)
        a(f'buffer_load_dwordx2 {vr(pr,2)}, v{pr+2}, {sr(SA,4)}, s{T0} offen sc1')
        a('s_waitcnt vmcnt(0)')
        a(f'v_xor_b32 v{pr}, s{sNON}, v{pr}'); a(f'v_xor_b32 v{pr+1}, s{sNON+1}, v{pr+1}'); a(f'v_or_b32 v{pr}, v{pr}, v{pr+1}')
        a(f'v_cmp_ne_u32 vcc, 0, v{pr}')
        a(f's_cbranch_vccz {lgo}')
        a(f's_sleep {cfg.slpA}'); a(f's_add_u32 s{T1}, s{T1}, 1'); a(f's_cmp_lt_u32 s{T1}, {cfg.spin}'); a(f's_cbranch_scc1 {lp}')
        a.label(lgo)
        lds_arrive(a, vCN, cnt, vONE)
        stampv(a, cfg, name, 'F', T1)
    F64, F8 = 128, 144
    a(f's_and_b32 s{sIH}, s{sW}, 1'); a(f's_lshr_b32 s{sKH}, s{sW}, 1')
    a(f'v_cvt_f32_u32 v{vNf}, v{vN}'); a(f'v_cvt_f32_u32 v{vQf}, v{vQ}')
    a(f's_lshl_b32 s{T0}, s{sKH}, 4'); a(f'v_add_u32 v{t}, s{T0}, v{vN}'); a(f'v_cmp_eq_u32 {sr(mK0,2)}, 0, v{t}')
    a(f'v_cvt_f32_u32 v{t}, v{t}'); a(f'v_mul_f32 v{t}, {f32(1/64)}, v{t}'); a(f'v_mul_f32 v{t+1}, {f32(8.0)}, v{vQf}'); a(f'v_mul_f32 v{t+1}, v{t+1}, v{t}')
    cs_pairs(a, t+1, t, [32*st + e for st in range(2) for e in range(8)], t+2,
             lambda pi: [('c', F64 + 8*(pi//4) + pi % 4), ('m', F64 + 8*(pi//4) + 4 + pi % 4)])
    a(f'v_mov_b32 v{t}, 0xbf803f80')
    for st in range(2):
        for k in range(4): a(f'v_cndmask_b32 v{F64+8*st+4+k}, v{F64+8*st+4+k}, v{t}, {sr(mK0,2)}')
    a(f'v_and_b32 v{t}, 1, v1'); a(f'v_lshlrev_b32 v{t}, 4, v{t}'); a(f'v_mov_b32 v{t+1}, 0xffff'); a(f'v_lshlrev_b32 v{t}, v{t}, v{t+1}')
    a(f'v_and_b32 v{t+1}, 2, v1'); a(f'v_cmp_eq_u32 vcc, 0, v{t+1}')
    a(f'v_lshrrev_b32 v{vN4}, 2, v{vN}'); a(f'v_cvt_f32_u32 v{vN4}, v{vN4}'); a(f'v_mul_f32 v{vN4}, {f32(0.125)}, v{vN4}')
    a(f'v_cndmask_b32 v{vMA}, 0, v{t}, vcc'); a(f'v_xor_b32 v{vMB}, v{vMA}, v{t}')
    def dft8(a, t, emit):
        a(f'v_add_f32 v{t}, 0.5, v{vN4}'); a(f'v_add_f32 v{t+1}, 4.0, v{vQf}')
        for i in range(2):
            for k in range(2): a(f'v_mul_f32 v{t+2+2*i+k}, v{t if i else vN4}, v{t+1 if k else vQf}')
        for u in range(4): a(f'v_cos_f32 v{t+6+u}, v{t+2+u}')
        for u in range(4): a(f'v_sin_f32 v{t+10+u}, v{t+2+u}')
        for u in range(4): a(f'v_cvt_pk_bf16_f32 v{t+6+u}, v{t+6+u}, v{t+6+u}')
        for u in range(4): a(f'v_cvt_pk_bf16_f32 v{t+2+u}, -v{t+10+u}, -v{t+10+u}')
        for u in range(4): a(f'v_cvt_pk_bf16_f32 v{t+10+u}, v{t+10+u}, v{t+10+u}')
        for u in range(4):
            for kind, src in (('c', t+6+u), ('m', t+2+u), ('s', t+10+u)):
                d = emit(u >> 1, u & 1, kind)
                a(f'v_and_b32 v{d}, v{src}, v{vMA}'); a(f'v_and_b32 v{d+1}, v{src}, v{vMB}')
    a(f's_mul_i32 s{T0}, s{sIH}, {f32(0.5)}'); a(f'v_add_f32 v{t}, s{T0}, v{vN4}'); a(f'v_add_f32 v{t+1}, 4.0, v{vQf}')
    a(f'v_mul_f32 v{t+2}, v{t}, v{vQf}'); a(f'v_mul_f32 v{t+3}, v{t}, v{t+1}')
    for u in range(2): a(f'v_cos_f32 v{t+4+u}, v{t+2+u}')
    for u in range(2): a(f'v_sin_f32 v{t+6+u}, v{t+2+u}')
    for u in range(2): a(f'v_cvt_pk_bf16_f32 v{t+4+u}, v{t+4+u}, v{t+4+u}')
    for u in range(2): a(f'v_cvt_pk_bf16_f32 v{t+2+u}, -v{t+6+u}, -v{t+6+u}')
    for u in range(2): a(f'v_cvt_pk_bf16_f32 v{t+6+u}, v{t+6+u}, v{t+6+u}')
    for u in range(2):
        for o_, src in ((0, t+4+u), (8, t+2+u), (4, t+6+u)):
            a(f'v_and_b32 v{F8+o_+2*u}, v{src}, v{vMA}'); a(f'v_and_b32 v{F8+o_+2*u+1}, v{src}, v{vMB}')
    stamp(a, cfg, 'con1', 'F')
    vTR, vE1 = 11, 13
    a(f'v_lshlrev_b32 v{t}, 3, v{vQ}'); a(f'v_bfe_u32 v{t+1}, v1, 2, 2'); a(f'v_add_u32 v{t}, v{t}, v{t+1}'); a(f'v_mul_u32_u24 v{t}, {XP}, v{t}')
    a(f'v_and_b32 v{t+1}, 3, v1'); a(f'v_lshl_add_u32 v{t}, v{t+1}, 7, v{t}')
    a(f's_lshl_b32 s{T0}, s{sJ}, 4'); a(f'v_add_u32 v{vTR}, s{T0}, v{t}')
    a(f'v_lshrrev_b32 v{t}, 2, v{vN}'); a(f'v_and_b32 v{t+1}, 2, v{vQ}'); a(f'v_lshl_add_u32 v{t}, v{t}, 3, v{t+1}')
    a(f's_lshl_b32 s{T0}, s{sKH}, 5'); a(f's_lshl_b32 s{T1}, s{sIH}, 2'); a(f's_add_u32 s{T0}, s{T0}, s{T1}'); a(f'v_add_u32 v{t}, s{T0}, v{t}')
    a(f'v_mul_u32_u24 v{t}, {cfg.S1}, v{t}'); a(f'v_and_b32 v{t+1}, 3, v{vN}'); a(f'v_lshl_add_u32 v{t}, v{t+1}, 5, v{t}')
    a(f'v_and_b32 v{t+1}, 1, v{vQ}'); a(f'v_lshl_add_u32 v{vE1}, v{t+1}, 4, v{t}')
    a(f's_lshl_b32 s{T0}, s{sG0}, 3'); a(f's_add_u32 s{sB}, s{T0}, s{sJ}')
    a(f's_lshl_b32 s{T0}, s{sB}, 7'); a(f's_add_u32 s{sE1}, s{T0}, {E1}'); a(f's_add_u32 s{sE1+1}, s{sE1}, {cfg.S1}')
    a(f'v_cmp_eq_u32 vcc, 0, v{vQ}'); a(f's_and_b64 {sr(mK04,2)}, vcc, {sr(mK0,2)}'); a(f's_andn2_b64 {sr(mK5,2)}, {sr(mK0,2)}, vcc')
    a(f's_cmp_eq_u32 s{sIH}, 0'); a(f's_cselect_b64 {sr(mK5,2)}, 0, {sr(mK5,2)}')
    perm_addr(a)
    a(f's_cmp_eq_u32 s{sG0}, 0'); a(f's_cselect_b32 s{T0}, 1, 0')
    a(f's_and_b32 s{T1}, s{sJ}, 3'); a(f's_cmp_eq_u32 s{T1}, 0'); a(f's_cselect_b32 s{sPAIR}, s{T0}, 0')
    a(f's_cmp_gt_u32 s{sJ}, 4'); a(f's_cselect_b32 s{T1}, s{T0}, 0')
    a(f's_mul_i32 s{sROT}, s{T1}, {f32(0.25)}')
    a(f's_lshr_b32 s{T2}, s{sW}, 1')
    a(f's_and_b32 s{T2}, s{T2}, s{sPAIR}'); a(f's_or_b32 s{T1}, s{T1}, s{T2}'); a(f's_lshl_b32 s{T1}, s{T1}, 5')
    a(f's_add_u32 s{sK1}, s{sG0}, s{T1}')
    nonce(a)
    t = IN
    def con_M1(a):
        if 'f' in cfg.abl: return
        a(f's_lshl_b32 s{T0}, s{sPAIR}, 1'); a(f's_andn2_b32 s{T0}, s{sW}, s{T0}'); a(f's_lshl_b32 s{T0}, s{T0}, 7'); a(f's_add_u32 s{T0}, s{T0}, s{sJ}')
        a(f'v_lshlrev_b32 v{t}, 3, v{vN}'); a(f'v_add_u32 v{t}, s{T0}, v{t}'); a(f'v_cvt_f32_u32 v{t}, v{t}'); a(f'v_mul_f32 v{t}, {f32(1/512)}, v{t}')
        a(f'v_mul_f32 v{t+1}, 4.0, v{vQf}'); a(f'v_mul_f32 v{t+1}, v{t+1}, v{t}')
        cs_pairs(a, t+1, t, [16*sg + e for sg in range(4) for e in range(4)], t+2,
                 lambda pi: [('c', M1 + 8*(pi//2) + pi % 2), ('s', M1 + 8*(pi//2) + 2 + pi % 2), ('m', M1 + 8*(pi//2) + 4 + pi % 2), ('c', M1 + 8*(pi//2) + 6 + pi % 2)])
    def con_M2(a):
        if 'f' in cfg.abl: return
        for t2 in range(2):
            a(f'v_lshlrev_b32 v{t}, 6, v{vN}'); a(f's_add_u32 s{T0}, s{sK1}, {1024*t2}'); a(f'v_add_u32 v{t}, s{T0}, v{t}'); a(f'v_cvt_f32_u32 v{t}, v{t}'); a(f'v_mul_f32 v{t}, {f32(1/2048)}, v{t}')
            a(f'v_mul_f32 v{t+1}, 4.0, v{vQf}'); a(f'v_mul_f32 v{t+1}, v{t+1}, v{t}')
            cs_pairs(a, t+1, t, [16*tt + r for tt in range(2) for r in range(4)], t+2,
                     lambda pi: [('c', M2 + 12*t2 + pi), ('s', M2 + 12*t2 + 4 + pi), ('m', M2 + 12*t2 + 8 + pi)])
    def con_M4(a):
        if 'f' in cfg.abl: return
        a(f'v_lshlrev_b32 v{t+14}, 8, v{vQ}'); a(f'v_add_u32 v{t+14}, s{sK1}, v{t+14}'); a(f'v_cvt_f32_u32 v{t+14}, v{t+14}'); a(f'v_mul_f32 v{t+14}, {f32(1/64)}, v{t+14}')
        for tt in range(2):
            a(f'v_add_f32 v{t}, {f32(16.0*tt)}, v{vNf}'); a(f'v_mul_f32 v{t}, {f32(1/32)}, v{t}')
            a(f'v_fma_f32 v{t+1}, v{t}, v{t+14}, s{sROT}')
            cs_pairs(a, t+1, t, [16*t2 + r for t2 in range(2) for r in range(4)], t+2,
                     lambda pi: [('c', M4 + 12*tt + pi), ('s', M4 + 12*tt + 4 + pi), ('m', M4 + 12*tt + 8 + pi)])
    def con_M5(a):
        if 'f' in cfg.abl: return
        a(f's_lshl_b32 s{T0}, s{sW}, 4'); a(f'v_add_u32 v{t}, s{T0}, v{vN}'); a(f'v_cvt_f32_u32 v{t}, v{t}'); a(f'v_mul_f32 v{t}, {f32(1/64)}, v{t}')
        a(f'v_lshlrev_b32 v{t+1}, 5, v{vQ}'); a(f'v_add_u32 v{t+1}, s{sJ}, v{t+1}'); a(f'v_cvt_f32_u32 v{t+1}, v{t+1}'); a(f'v_mul_f32 v{t+1}, {f32(0.125)}, v{t+1}'); a(f'v_mul_f32 v{t+1}, v{t+1}, v{t}')
        cs_pairs(a, t+1, t, [16*sg + e for sg in range(4) for e in range(4)], t+2,
                 lambda pi: [('c', M5 + 8*(pi//2) + pi % 2), ('m', M5 + 8*(pi//2) + 2 + pi % 2), ('s', M5 + 8*(pi//2) + 4 + pi % 2), ('c', M5 + 8*(pi//2) + 6 + pi % 2)])
    conj = {'1': con_M1, '2': con_M2, '4': con_M4, '5': con_M5}
    for c in cfg.pre: conj[c](a)
    if cfg.prioF: a(f's_setprio {cfg.prioF}')
    stamp(a, cfg, 'perm', 'F')
    stamp(a, cfg, 'preX', 'F')
    kf_spin(a, vCN, kX, IN, sleep=True)
    stamp(a, cfg, 'X', 'F')
    assert not cfg.pre
    DA, C1, PB, BM, C2, Z, O = IN, M1, M2, M2 + 16, WK, IN, IN + 16
    for ih in range(2):
        for st in range(2):
            for tt in range(2):
                for hf in range(2):
                    a(f'ds_read_b64_tr_b16 {vr(DA+16*ih+8*st+4*tt+2*hf,2)}, v{vTR} offset:{XT + (32*st+4*hf)*XP + 512*tt + 8*ih}')
    for ih in range(2):
        for st in range(2):
            for tt in range(2):
                for c in range(2):
                    d = C1 + 16*ih + 8*c + 4*tt
                    a(f'{MF16} {vr(d,4)}, {vr(DA+16*ih+8*st+4*tt,4)}, {vr(F64+8*st+4*c,4)}, {vr(d,4) if st else 0}')
    cc, ss, mm = F8, F8 + 4, F8 + 8
    for ih in range(2):
        for k in range(8): a(f'v_cvt_pk_bf16_f32 v{PB+8*ih+k}, v{C1+16*ih+2*k}, v{C1+16*ih+2*k+1}')
        for k in range(4): a(f'v_cndmask_b32 v{BM+4*ih+k}, v{PB+8*ih+4+k}, 0, {sr(mK0,2)}')
        a(f'{MF16} {vr(C2+8*ih,4)}, {vr(cc,4)}, {vr(PB+8*ih,4)}, 0')
        a(f'{MF16} {vr(C2+8*ih+4,4)}, {vr(mm,4)}, {vr(PB+8*ih,4)}, 0')
        a(f'{MF16} {vr(Z+8*ih,4)}, {vr(cc,4)}, {vr(PB+8*ih+4,4)}, 0')
        a(f'{MF16} {vr(Z+8*ih+4,4)}, {vr(mm,4)}, {vr(PB+8*ih+4,4)}, 0')
        a(f'{MF16} {vr(C2+8*ih,4)}, {vr(ss,4)}, {vr(BM+4*ih,4)}, {vr(C2+8*ih,4)}')
        a(f'{MF16} {vr(C2+8*ih+4,4)}, {vr(cc,4)}, {vr(BM+4*ih,4)}, {vr(C2+8*ih+4,4)}')
    for ih in range(2):
        for k in range(4): a(f'v_cvt_pk_bf16_f32 v{PK+4*ih+k}, v{Z+8*ih+2*k}, v{Z+8*ih+2*k+1}')
        for k in range(4): a(f'v_cvt_pk_bf16_f32 v{O+4*ih+k}, v{C2+8*ih+2*k}, v{C2+8*ih+2*k+1}')
        for k in range(2): a(f'v_cndmask_b32 v{O+4*ih+2+k}, v{O+4*ih+2+k}, v{PK+4*ih+k}, {sr(mK04,2)}')
        for k in range(4): a(f'v_cndmask_b32 v{O+4*ih+k}, v{O+4*ih+k}, v{PK+4*ih+k}, {sr(mK5,2)}')
        for k in range(4): a(f'v_or_b32 v{O+4*ih+k}, 1, v{O+4*ih+k}')
    for k in range(4): a(f'v_permlane16_swap_b32 v{O+k}, v{O+4+k}')
    def job_E(a):
        for t2 in range(2): a(f'buffer_store_dwordx4 {vr(O+4*t2,4)}, v{vE1}, {sr(SA,4)}, s{sE1+t2} offen sc1', tag='e1')
    def job_d(a):
        stamp(a, cfg, 'pred', 'F'); kf_spin(a, vCN, kD, IN, sleep=True); stamp(a, cfg, 'd', 'F')
    stamp(a, cfg, 'fft1', 'F')
    HB, XS = N64, N64 + 16
    def fixups(a):
        t = IN + 4
        a(f's_cmp_eq_u32 s{sPAIR}, 0'); h = a.skip_begin('s_cbranch_scc1')
        a(f's_cmp_lg_u32 s{sJ}, 0'); h2 = a.skip_begin('s_cbranch_scc1')
        a(f's_and_b32 s{T0}, s{sW}, 1'); a(f'v_or_b32 v{t}, s{T0}, v{vN}'); a(f'v_cmp_eq_u32 vcc, 0, v{t}'); a(f'v_mov_b32 v{t}, 0xbf803f80')
        for sg in range(4):
            for k in range(2): a(f'v_cndmask_b32 v{M1+8*sg+4+k}, v{M1+8*sg+4+k}, v{t}, vcc')
        a(f'v_cmp_eq_u32 vcc, 0, v{vQ}'); a(f'v_mov_b32 v{t+2}, 0xffff')
        a(f'v_mov_b32 v{t}, 0x3f00'); a(f'v_bfi_b32 v{t}, v{t+2}, v{t}, v{M5}'); a(f'v_cndmask_b32 v{M5}, v{M5}, v{t}, vcc')
        a(f'v_and_b32 v{t}, 1, v{vN}'); a(f'v_lshlrev_b32 v{t}, 15, v{t}'); a(f'v_or_b32 v{t}, 0x3f00, v{t}'); a(f'v_bfi_b32 v{t}, v{t+2}, v{t}, v{M5+2}'); a(f'v_cndmask_b32 v{M5+2}, v{M5+2}, v{t}, vcc')
        a.skip_end(h2)
        for sg in range(2):
            for k in range(4):
                a(f'v_mov_b32 v{M5+8*(sg+2)+4+k}, v{M5+8*sg+k}'); a(f'v_mov_b32 v{M5+8*(sg+2)+k}, 0'); a(f'v_mov_b32 v{M5+8*sg+4+k}, 0')
        a(f's_cmp_ge_u32 s{sW}, 2'); a(f's_cselect_b64 vcc, -1, 0')
        for sg in range(4):
            for k in range(2):
                for o in (0, 4):
                    a(f'v_cndmask_b32 v{M1+8*sg+o+2+k}, 0, v{M1+8*sg+o+k}, vcc'); a(f'v_cndmask_b32 v{M1+8*sg+o+k}, v{M1+8*sg+o+k}, 0, vcc')
        a.skip_end(h)
    vIN, vWB, sI, sWb, WR = 13, 11, 72, 74, N8
    def job_k(a):
        a(f'v_lshrrev_b32 v{vE2}, 1, v{vQ}'); a(f'v_lshlrev_b32 v{vE2}, 7, v{vE2}'); a(f'v_lshl_add_u32 v{vE2}, v{vN}, 10, v{vE2}'); a(f'v_and_b32 v{vIN}, 1, v{vQ}'); a(f'v_lshl_add_u32 v{vE2}, v{vIN}, 4, v{vE2}')
        a(f's_lshr_b32 s{T0}, s{sG0}, 2'); a(f's_lshl_b32 s{T0}, s{T0}, 3'); a(f's_add_u32 s{T0}, s{T0}, s{sJ}'); a(f's_mul_i32 s{T0}, s{T0}, {cfg.S1}')
        a(f's_and_b32 s{T1}, s{sG0}, 3'); a(f's_lshl_b32 s{T1}, s{T1}, 5'); a(f's_add_u32 s{T0}, s{T0}, s{T1}'); a(f's_lshl_b32 s{T1}, s{sW}, 8'); a(f's_add_u32 s{T0}, s{T0}, s{T1}')
        a(f's_add_u32 s{sE2}, s{T0}, {E1}'); a(f's_add_u32 s{sE2+1}, s{sE2}, 16384')
        a(f'v_lshlrev_b32 v{vWB}, 10, v{vQ}'); a(f'v_lshl_add_u32 v{vWB}, v{vN}, 4, v{vWB}')
        a(f's_mul_i32 s{T0}, s{sB}, {cfg.SW}'); a(f's_add_u32 s{T0}, s{T0}, s{T1}'); a(f's_add_u32 s{sWb}, s{T0}, {WB}'); a(f's_add_u32 s{sWb+1}, s{sWb}, 4096')
        stamp(a, cfg, 'prepoll', 'F')
        if cfg.pollAt is not None: kf_spin(a, vCN, cfg.pollAt, IN + 4, sleep=True)
        stamp(a, cfg, 'poll', 'F')
    def job_a(a):
        poll(a, FLAGA, cfg.FS, cGO, 'pollsA', IN)
        lds_spin(a, vCN, cGO, 4, IN + 3, sleep=True)
        stamp(a, cfg, 'go', 'F')
    def job_i(a):
        for tt in range(2):
            a(f's_lshl_b32 s{T0}, s{sW}, 11'); a(f's_add_u32 m0, s{T0}, {FA + 1024*tt}')
            a(f'buffer_load_dwordx4 v{vE2}, {sr(SA,4)}, s{sE2+tt} offen sc1 lds', tag='in')
    def job_X(a):
        if 'B' in cfg.ford:
            if 'in' not in mark:
                a.wait_tag('in'); lds_arrive(a, vCN, cF1, vONE); mark['in'] = True
            kf_spin(a, vCN, kM, IN + 4, sleep=True); stamp(a, cfg, 'poll2', 'F')
            poll(a, FLAGA2, cfg.FS2, cGO2, 'pollsA2', IN)
            lds_spin(a, vCN, cGO2, 4, IN + 3, sleep=True)
            stamp(a, cfg, 'go2', 'F')
    def job_Y(a):
        for t2 in range(2): a(f'buffer_load_dwordx4 {vr(WR+4*t2,4)}, v{vWB}, {sr(SA,4)}, s{sWb+t2} offen sc1')
        a(f's_cmp_lg_u32 s{sB}, 0'); h = a.skip_begin('s_cbranch_scc1')
        a(f'v_lshlrev_b32 v{vWB}, 4, v{vQ}'); a(f's_lshr_b32 s{T0}, s{sW}, 1'); a(f's_lshl_b32 s{T0}, s{T0}, 7'); a(f's_add_u32 s{T0}, s{T0}, {WBX}')
        for t2 in range(2): a(f'buffer_load_dwordx4 {vr(XS+4*t2,4)}, v{vWB}, {sr(SA,4)}, s{T0} offen offset:{64*t2} sc1')
        a.skip_end(h, drop=True)
    def job_I(a):
        if 'in' not in mark:
            a.wait_tag('in'); lds_arrive(a, vCN, cF1, vONE)
    def job_A(a):
        signal(a, FLAGA, cfg.FS, cFA, 0); stamp(a, cfg, 'flag', 'F')
    def job_B(a):
        signal(a, FLAGA2, cfg.FS2, cFA2, 0); stamp(a, cfg, 'flag2', 'F')
    def unpackW(a, dst, src):
        a(f's_mov_b32 s{T0}, {f32(2.0**-19)}')
        for k in range(8):
            a(f'v_lshlrev_b32 v{dst+2*k}, 16, v{src+k}'); a(f'v_and_b32 v{dst+2*k+1}, 0xffff0000, v{src+k}')
        for k in range(16): a(f'v_mul_f32 v{dst+k}, s{T0}, v{dst+k}')
    jobs = dict(E=job_E, d=job_d, r=job_r, w=job_w, b=job_b, c=job_c, h=job_h, A=job_A, B=job_B, k=job_k, a=job_a, i=job_i, X=job_X, Y=job_Y, I=job_I, g=lambda a: gate_code(a, cfg, 128, WK + 8, WK + 4))
    jobs.update(conj)
    o = cfg.ford
    assert set(cfg.pre) <= set('12') and sorted(set('1245') - set(cfg.pre)) == sorted(c for c in o if c in '1245')
    before = lambda x, y: o.index(x) < o.index(y)
    assert all(before(*p) for p in ('rw', 'rb', 'r4', 'r5', 'bY', 'wY', 'cY', 'ka', 'ai', 'iX', 'XY', 'iI', 'ra', 'Aa', 'EA', 'Ek'))
    assert ('B' in o and before('b', 'B') and before('c', 'B') and before('w', 'B') and before('B', 'X')) or (before('b', 'A') and before('c', 'A') and before('w', 'A'))
    assert ('g' in o) == (cfg.gateAt == 'F') and ('g' not in o or all(before(*p) for p in ('wg', 'bg', 'cg', 'gY')))
    for c in o: jobs[c](a)
    fixups(a)
    if not cfg.unpLate: unpackW(a, WF, WR)
    lds_spin(a, vCN, cF1, 4, IN)
    stamp(a, cfg, 'in', 'F')
    for u in range(8): a(f'ds_read_b128 {vr(IN+4*u,4)}, v{vL16} offset:{FA + 1024*u}')
    C1 = WK
    for sg in range(4):
        for tt in range(2):
            for c in range(2):
                d = C1 + 8*c + 4*tt
                a(f'{MF16} {vr(d,4)}, {vr(IN+8*sg+4*tt,4)}, {vr(M1+8*sg+4*c,4)}, {vr(d,4) if sg else 0}')
    for c in range(2):
        for k in range(4): a(f'v_cvt_pk_bf16_f32 v{PK+4*c+k}, v{C1+8*c+2*k}, v{C1+8*c+2*k+1}')
    if cfg.unpLate: unpackW(a, WF, WR)
    lsp = a.lab('special'); ljn = a.lab('join')
    a(f's_cmp_eq_u32 s{sB}, 0'); a(f's_cbranch_scc1 {lsp}')
    snap = (list(a.hist), list(a.vq), list(a.lq))
    Cre, Cim, Yre, Yim = IN, IN + 8, IN + 16, IN + 24
    for t2 in range(2):
        a(f'{MF16} {vr(Cre+4*t2,4)}, {vr(M2+12*t2,4)}, {vr(PK,4)}, 0')
        a(f'{MF16} {vr(Cim+4*t2,4)}, {vr(M2+12*t2+8,4)}, {vr(PK,4)}, 0')
    for t2 in range(2):
        a(f'{MF16} {vr(Cre+4*t2,4)}, {vr(M2+12*t2+4,4)}, {vr(PK+4,4)}, {vr(Cre+4*t2,4)}')
        a(f'{MF16} {vr(Cim+4*t2,4)}, {vr(M2+12*t2,4)}, {vr(PK+4,4)}, {vr(Cim+4*t2,4)}')
    for k in range(8):
        a(f'v_mul_f32 v{Yre+k}, v{Cre+k}, v{WF+2*k}'); a(f'v_mul_f32 v{Yim+k}, v{Cre+k}, v{WF+2*k+1}')
    for k in range(8):
        a(f'v_fma_f32 v{Yre+k}, -v{Cim+k}, v{WF+2*k+1}, v{Yre+k}'); a(f'v_fmac_f32 v{Yim+k}, v{Cim+k}, v{WF+2*k}')
    for k in range(4): a(f'v_cvt_pk_bf16_f32 v{PK+k}, v{Yre+2*k}, v{Yre+2*k+1}')
    for k in range(4): a(f'v_cvt_pk_bf16_f32 v{PK+4+k}, v{Yim+2*k}, v{Yim+2*k+1}')
    a.label(ljn)
    C3 = WK
    for tt in range(2):
        a(f'{MF16} {vr(C3+8*tt,4)}, {vr(PK,4)}, {vr(M4+12*tt,4)}, 0')
        a(f'{MF16} {vr(C3+8*tt+4,4)}, {vr(PK,4)}, {vr(M4+12*tt+4,4)}, 0')
    for tt in range(2):
        a(f'{MF16} {vr(C3+8*tt,4)}, {vr(PK+4,4)}, {vr(M4+12*tt+8,4)}, {vr(C3+8*tt,4)}')
        a(f'{MF16} {vr(C3+8*tt+4,4)}, {vr(PK+4,4)}, {vr(M4+12*tt,4)}, {vr(C3+8*tt+4,4)}')
    a(f's_lshl_b32 s{T0}, s{sW}, 11'); a(f'v_add_u32 v{vIN}, s{T0}, v{vL16}')
    for k in range(8): a(f'v_cvt_pk_bf16_f32 v{PK+k}, v{C3+2*k}, v{C3+2*k+1}')
    for tt in range(2): a(f'ds_write_b128 v{vIN}, {vr(PK+4*tt,4)} offset:{FB + 1024*tt}')
    a.wait(lg=0)
    lds_arrive(a, vCN, cF2, vONE)
    lds_spin(a, vCN, cF2, 4, IN)
    for u in range(8): a(f'ds_read_b128 {vr(IN+4*u,4)}, v{vL16} offset:{FB + 1024*u}')
    C4 = WK
    for sg in range(4):
        for tt in range(2):
            for c in range(2):
                d = C4 + 8*tt + 4*c
                a(f'{MF16} {vr(d,4)}, {vr(M5+8*sg+4*c,4)}, {vr(IN+8*sg+4*tt,4)}, {vr(d,4) if sg else 0}')
    for k in range(8): a(f'v_cvt_pk_bf16_f32 v{PK+k}, v{C4+2*k}, v{C4+2*k+1}')
    for k in range(8): a(f'v_and_b32 v{PK+k}, -2, v{PK+k}')
    for tt in range(2): a(f'buffer_store_dwordx4 {vr(PK+4*tt,4)}, v{vE2}, {sr(SA,4)}, s{sE2+tt} offen sc1', tag='e2')
    stamp(a, cfg, 'e2st', 'F')
    t = IN
    dft8(a, t, lambda dh, st, kind: N8 + 12*dh + 6*st + {'s': 0, 'c': 2, 'm': 4}[kind])
    vL3, vX3 = 11, 13
    a(f'v_cmp_eq_u32 vcc, 0, v{vQ}')
    a(f'v_and_b32 v{t}, 7, v1'); a(f's_lshl_b32 s{T0}, s{sW}, 3'); a(f'v_add_u32 v{t}, s{T0}, v{t}')
    a(f'v_cmp_eq_u32 {sr(mK0,2)}, 0, v{t}'); a(f's_andn2_b64 {sr(mK5,2)}, {sr(mK0,2)}, vcc'); a(f's_mov_b64 {sr(mK04,2)}, vcc')
    a(f'v_lshrrev_b32 v{t}, 2, v{t}'); a(f'v_lshl_add_u32 v{t}, v{t}, 3, v{vQ}'); a(f'v_mul_u32_u24 v{t}, {cfg.S1}, v{t}'); a(f'v_and_b32 v{t+1}, 3, v1'); a(f'v_lshl_add_u32 v{t}, v{t+1}, 5, v{t}')
    a(f'v_bfe_u32 v{t+1}, v1, 3, 1'); a(f'v_lshl_add_u32 v{vL3}, v{t+1}, 4, v{t}')
    a(f's_lshl_b32 s{T0}, s{sB}, 7'); a(f's_add_u32 s{sI}, s{T0}, {E1}'); a(f's_add_u32 s{sI+1}, s{sI}, {4*cfg.S1}')
    a(f'v_lshrrev_b32 v{t}, 1, v{vQ}'); a(f'v_lshlrev_b32 v{t}, 12, v{t}'); a(f'v_and_b32 v{t+1}, 1, v{vQ}'); a(f'v_lshl_add_u32 v{t}, v{t+1}, 8, v{t}')
    a(f'v_lshl_add_u32 v{t}, v{vN}, 4, v{t}'); a(f's_lshl_b32 s{T1}, s{sW}, 9'); a(f'v_add_u32 v{vX3}, s{T1}, v{t}')
    def n64(nt):
        a(f'v_add_f32 v{t}, {f32(16.0*nt)}, v{vNf}'); a(f'v_mul_f32 v{t}, {f32(1/64)}, v{t}')
        a(f'v_mul_f32 v{t+1}, 4.0, v{vQf}'); a(f'v_mul_f32 v{t+1}, v{t+1}, v{t}')
        cs_pairs(a, t+1, t, [16*st + r for st in range(2) for r in range(4)], t+2,
                 lambda pi: [('c', N64 + 8*nt + 4*(pi//2) + pi % 2), ('m', N64 + 8*nt + 4*(pi//2) + 2 + pi % 2)])
    for nt in range(cfg.n64pre): n64(nt)
    a.wait_tag('e2')
    stamp(a, cfg, 'e2dr', 'F')
    D3 = WF
    def ld3():
        for st in range(2): a(f'buffer_load_dwordx4 {vr(D3+4*st,4)}, v{vL3}, {sr(SA,4)}, s{sI+st} offen sc1')
    if cfg.slp3: a(f's_sleep {cfg.slp3}')
    ld3()
    for nt in range(cfg.n64pre, 4): n64(nt)
    a(f'v_mov_b32 v{t+2}, 0xffff')
    a(f'v_and_b32 v{t}, 1, v{vN}'); a(f'v_lshlrev_b32 v{t}, 15, v{t}'); a(f'v_or_b32 v{t}, 0x3f80, v{t}')
    for nt in range(4):
        a(f'v_bfi_b32 v{t+1}, v{t+2}, v{t}, v{N64+8*nt+2}'); a(f'v_cndmask_b32 v{N64+8*nt+2}, v{N64+8*nt+2}, v{t+1}, {sr(mK04,2)}')
    l3 = a.lab('e2poll'); l3ok = a.lab('e2ok')
    a(f's_mov_b32 s{T1}, 0')
    a.wait(vm=0)
    a.label(l3)
    a(f'v_or3_b32 v{IN+8}, v{D3}, v{D3+1}, v{D3+2}'); a(f'v_or3_b32 v{IN+9}, v{D3+3}, v{D3+4}, v{D3+5}')
    a(f'v_or3_b32 v{IN+8}, v{IN+8}, v{D3+6}, v{D3+7}'); a(f'v_or_b32 v{IN+8}, v{IN+8}, v{IN+9}'); a(f'v_and_b32 v{IN+8}, 1, v{IN+8}')
    a(f'v_cmp_ne_u32 vcc, 0, v{IN+8}')
    a(f's_cbranch_vccz {l3ok}')
    if cfg.slpC: a(f's_sleep {cfg.slpC}')
    ld3()
    a('s_waitcnt vmcnt(0)')
    a(f's_add_u32 s{T1}, s{T1}, 1'); a(f's_cmp_lt_u32 s{T1}, {cfg.spin}'); a(f's_cbranch_scc1 {l3}')
    a.label(l3ok)
    stamp(a, cfg, 'e2ok', 'F'); stampv(a, cfg, 'polls', 'F', T1)
    VI, VR = IN + 8, IN + 12
    for k in range(4):
        a(f'v_cndmask_b32 v{VI+k}, v{D3+k}, 0, {sr(mK5,2)}'); a(f'v_cndmask_b32 v{VR+k}, v{D3+4+k}, 0, {sr(mK5,2)}')
    C5 = WK
    for dh in range(2):
        a(f'{MF16} {vr(C5+8*dh,4)}, {vr(D3,4)}, {vr(N8+12*dh+2,4)}, 0')
        a(f'{MF16} {vr(C5+8*dh+4,4)}, {vr(D3+4,4)}, {vr(N8+12*dh+6,4)}, 0')
    for dh in range(2):
        a(f'{MF16} {vr(C5+8*dh,4)}, {vr(VR,4)}, {vr(N8+12*dh+8,4)}, {vr(C5+8*dh,4)}')
        a(f'{MF16} {vr(C5+8*dh+4,4)}, {vr(VI,4)}, {vr(N8+12*dh,4)}, {vr(C5+8*dh+4,4)}')
    for k in range(8): a(f'v_cvt_pk_bf16_f32 v{PK+k}, v{C5+2*k}, v{C5+2*k+1}')
    for dh in range(2): a(f'ds_write_b128 v{vX3}, {vr(PK+4*dh,4)} offset:{FA + 2048*dh}')
    a.wait(lg=0)
    lds_arrive(a, vCN, cF3, vONE)
    a(f's_and_b32 s{T0}, s{sW}, 1'); a(f's_lshl_b32 s{T0}, s{T0}, 12'); a(f's_lshr_b32 s{T1}, s{sW}, 1'); a(f's_lshl_b32 s{T2}, s{T1}, 11'); a(f's_add_u32 s{T0}, s{T0}, s{T2}')
    a(f'v_add_u32 v{vX3}, s{T0}, v{vL16}')
    a(f's_lshl_b32 s{T1}, s{T1}, 2'); a(f'v_add_u32 v{IN+9}, s{T1}, v{vQ}'); a(f'v_lshrrev_b32 v{IN+10}, 1, v{vN}'); a(f'v_xor_b32 v{IN+9}, v{IN+9}, v{IN+10}')
    a(f'v_lshlrev_b32 v{IN+9}, 4, v{IN+9}'); a(f'v_lshl_add_u32 v{IN+9}, v{vN}, 7, v{IN+9}')
    a(f's_and_b32 s{T0}, s{sW}, 1'); a(f's_lshl_b32 s{T0}, s{T0}, 3'); a(f'v_add_u32 v{vL3}, s{T0}, v{IN+9}')
    lds_spin(a, vCN, cF3, 4, IN+8)
    for st in range(2): a(f'ds_read_b128 {vr(IN+4*st,4)}, v{vX3} offset:{FA + 1024*st}')
    for st in range(2):
        for nt in range(4):
            a(f'{MF16} {vr(C5+4*nt,4)}, {vr(IN+4*st,4)}, {vr(N64+8*nt+4*st,4)}, {vr(C5+4*nt,4) if st else 0}')
    for k in range(8): a(f'v_cvt_pk_bf16_f32 v{PK+k}, v{C5+2*k}, v{C5+2*k+1}')
    for nt in range(4): a(f'ds_write_b64 v{vL3}, {vr(PK+2*nt,2)} offset:{FB + 2048*nt}')
    a.wait(lg=0)
    a.label('L_FQ')
    if cfg.diagt:
        a.label('L_DT'); a('s_memrealtime s[10:11]'); a('s_waitcnt lgkmcnt(0)'); a('s_sub_u32 s10, s10, s98'); a(f's_cmp_lt_u32 s10, {cfg.diagt}'); a('s_cbranch_scc1 L_DT')
    if cfg.diagx:
        a(f'v_mov_b32 v{IN+1}, 0'); a(f'buffer_load_dword v{IN}, v{IN+1}, {sr(SE,4)}, 0 offen sc1'); a(f'v_readfirstlane_b32 s6, v{IN}'); a('s_bcnt1_i32_b32 s6, s6')
        a('s_cmp_le_u32 s6, 1'); a('s_cbranch_scc1 L_DX'); a('s_memrealtime s[8:9]'); a('s_waitcnt lgkmcnt(0)')
        a.label('L_DY'); a('s_memrealtime s[10:11]'); a('s_waitcnt lgkmcnt(0)'); a('s_sub_u32 s10, s10, s8'); a('s_cmp_lt_u32 s10, 3000'); a('s_cbranch_scc1 L_DY')
        a.label('L_DX')
    stamp(a, cfg, 'Fend', 'F')
    a(f's_or_b32 s{T0}, s2, s{sW}'); a(f's_cmp_eq_u32 s{T0}, 0'); a(f's_cselect_b32 s{T0}, {NONCE}, {OOB}')
    a(f'v_mov_b32 v{IN}, s{sNON}'); a(f'v_mov_b32 v{IN+1}, s{sNON+1}'); a(f'v_mov_b32 v{IN+2}, 0'); a('s_mov_b64 exec, 1')
    a(f'buffer_store_dwordx2 {vr(IN,2)}, v{IN+2}, {sr(SA,4)}, s{T0} offen')
    a('s_mov_b64 exec, -1')
    enc_spin(a, cfg, 'F')
    a('s_barrier')
    if cfg.stamps: stamps_out(a, cfg, 10, SA)
    a('s_endpgm')
    a.label(lsp)
    a.hist, a.vq, a.lq = snap
    P1_, M3_, P2_, P4_ = IN, IN + 8, IN + 16, IN + 24
    for t2 in range(2):
        a(f'{MF16} {vr(P1_+4*t2,4)}, {vr(M2+12*t2,4)}, {vr(PK,4)}, 0')
        a(f'{MF16} {vr(M3_+4*t2,4)}, {vr(M2+12*t2+8,4)}, {vr(PK,4)}, 0')
        a(f'{MF16} {vr(P2_+4*t2,4)}, {vr(M2+12*t2+4,4)}, {vr(PK+4,4)}, 0')
        a(f'{MF16} {vr(P4_+4*t2,4)}, {vr(M2+12*t2,4)}, {vr(PK+4,4)}, 0')
    a('s_waitcnt vmcnt(0)')
    unpackW(a, HB, XS)
    a(f's_and_b32 s{T0}, s{sW}, 1'); a(f'v_or_b32 v{WK}, s{T0}, v{vN}'); a(f'v_cmp_eq_u32 vcc, 0, v{WK}')
    for k in range(16): a(f'v_cndmask_b32 v{HB+k}, v{WF+k}, v{HB+k}, vcc')
    for k in range(8):
        x, y = WK + 2*(k & 1), WK + 1 + 2*(k & 1)
        a(f'v_mul_f32 v{x}, v{P1_+k}, v{WF+2*k}'); a(f'v_mul_f32 v{y}, v{P1_+k}, v{WF+2*k+1}')
        a(f'v_fma_f32 v{x}, -v{M3_+k}, v{WF+2*k+1}, v{x}'); a(f'v_fmac_f32 v{y}, v{M3_+k}, v{WF+2*k}')
        a(f'v_fma_f32 v{x}, -v{P4_+k}, v{HB+2*k+1}, v{x}'); a(f'v_fmac_f32 v{y}, v{P4_+k}, v{HB+2*k}')
        a(f'v_fma_f32 v{P1_+k}, v{P2_+k}, v{HB+2*k}, v{x}'); a(f'v_fma_f32 v{M3_+k}, v{P2_+k}, v{HB+2*k+1}, v{y}')
    for k in range(4): a(f'v_cvt_pk_bf16_f32 v{PK+k}, v{P1_+2*k}, v{P1_+2*k+1}')
    for k in range(4): a(f'v_cvt_pk_bf16_f32 v{PK+4+k}, v{M3_+2*k}, v{M3_+2*k+1}')
    a('s_nop 1')
    a(f's_branch {ljn}')

HEADER = open('gated_mix__spectral_gfnet__dense_activation_mish__prompt.s.ref').read().split('; Override')[0] if True else ''
def build(cfg):
    import align
    t = build0(cfg)
    return align.run(t)[0] if getattr(cfg, 'align', True) else t
def build0(cfg):
    Stream.gid = 0
    a = Stream(); prologue(a, cfg)
    g = Stream(); g.hist, g.vq, g.lq = list(a.hist), list(a.vq), list(a.lq); gen_G(g, cfg)
    f = Stream(); f.hist, f.vq, f.lq = list(a.hist), list(a.vq), list(a.lq); gen_F(f, cfg)
    assert g.text().count('s_barrier') == f.text().count('s_barrier'), 'barrier mismatch'
    return f"""{HEADER}; One persistent launch: 256 workgroups x 8 waves (waves 0-3: MLP, waves 4-7: spectral branch). Generated by my own script.
; @launch grid=(256,1,1) block=(512,1,1) lds={LDSZ}
.amdgcn_target "amdgcn-amd-amdhsa--gfx950"
.text
.globl {KN}
.p2align 8
.type {KN},@function
{KN}:
{a.text()}{g.text()}{f.text()}L_END:
    s_endpgm
.section .rodata,"a"
.p2align 6
.amdhsa_kernel {KN}
  .amdhsa_next_free_vgpr 256
  .amdhsa_next_free_sgpr 102
  .amdhsa_accum_offset 256
  .amdhsa_group_segment_fixed_size 0
  .amdhsa_kernarg_size 88
  .amdhsa_user_sgpr_count 2
  .amdhsa_user_sgpr_kernarg_segment_ptr 1
  .amdhsa_system_sgpr_workgroup_id_x 1
  .amdhsa_float_denorm_mode_32 3
.end_amdhsa_kernel
"""
if __name__ == '__main__':
    cfg = Cfg()
    out = sys.argv[1]
    for kv in sys.argv[2:]:
        k, v = kv.split('='); setattr(cfg, k, eval(v))
    open(out, 'w').write(build(cfg))
```

```python
import sys, struct
from sa import Stream
KN = 'gated_mix__spectral_gfnet__dense_activation_mish__prompt_kernel'
MB = 1 << 20
FLAGB = 65536; FLAGC = 196608; FLAGA2 = 262144
NONCE, FLAGA, E1, E2, WB, WBX, W2P, ACT, STAMP, WSZ = 0, 131072, 1*MB, 4*MB, 7*MB, 10*MB, 11*MB, 13*MB, 19*MB, 20*MB
OOB = 0x40000000
XP = 1040
NSLOT, SLAB = 6, 12288
WP = 528
FA = 0; FB = FA + 8704; GW = FB + 8192; GL = GW + 1024; CNT = GL + 256
XT = CNT + 128; RING = XT + 64*XP; LDSZ = RING + NSLOT*SLAB
REG = 86*2048
PST = XT; RED = RING
NPL = 7; assert PST + 4*NPL*2048 <= RING
assert RED + 49152 <= LDSZ <= 163840
cGO, cF1, cF2, cF3, cACT, cGOB, cFA, cFC, cGOC, cFA2, cGO2 = 72, 76, 80, 84, 88, 92, 96, 100, 104, 108, 112
ALL4 = 0x01010101
kQ, kP = 9, 10
k3 = 8
kD = 7
kM = 5
kS = 6
kW = 4
kX, kL, kK, kE = 0, 1, 2, 3
def f32(x): return '0x%08x' % struct.unpack('<I', struct.pack('<f', x))[0]
def vr(a, n): return f'v[{a}:{a+n-1}]' if n > 1 else f'v{a}'
def sr(a, n): return f's[{a}:{a+n-1}]'
sX, sWR, sWI, sW1, sB1, sW2, sGWp, sOUT, sWS = 4, 6, 8, 12, 14, 16, 18, 20, 22
sG0, sJ, sWV, sW = 24, 25, 26, 27
SX, SA, SB, SC, SD, SE = 28, 32, 36, 40, 44, 48
T0, T1, T2, T3 = 52, 53, 54, 55
sNON = 56
sTK = 3
sST = 80
MF16 = 'v_mfma_f32_16x16x32_bf16'; MF32 = 'v_mfma_f32_32x32x16_bf16'

class Cfg:
    stamps = False; dbgst = False
    gst = ['start', 'X', 'Kend', 'mish', 'go', 'drain', 'goB', 'g2end', 'fbar', 'end']
    fst = ['start', 'X', 'fft1', 'flag', 'prepoll', 'go', 'in', 'e2st', 'e2ok', 'Fend']
    NP, NQ = 15, 7
    prioG = 1; prioF = 2; prioM = 3; prioG2 = 1
    spin = 200000
    S1 = 32768; S2 = 16384; SW = 8192; FS = 64; FS2 = 8
    map84 = True; x0 = 8; stgFirst = True; p0 = 1; p1 = 4; lateSet = True; hold = False; holdAt = 2
    pre = ''; ford = 'Erwbch1Ag245kaiXYI'
    pollAt = 1; slpA = 8; n64pre = 2
    pAt = 16; mAt = 22; dAt = 11; slpB = 0; goAt = 9; pgap = 14; gateAt = 'F'; stg = False; ipf = 16; own = False; prioS = 2; stgAt = 99; plAt = 8; unpLate = False; npre = 15; dP = 6; np1 = 4; pollB = 18; pfl = 'sc1'
    diagx = False; diagt = 0; enc = None; abl = ''; clrF = False; slp3 = 0; t3 = 5; slpC = 0

def srd(a, d, base, nbytes, off=None):
    if off is None:
        a(f's_mov_b32 s{d}, s{base}'); a(f's_mov_b32 s{d+1}, s{base+1}')
    else:
        a(f's_add_u32 s{d}, s{base}, {off}'); a(f's_addc_u32 s{d+1}, s{base+1}, 0')
    a(f's_mov_b32 s{d+2}, {nbytes}'); a(f's_mov_b32 s{d+3}, 0x20000')

def enc_spin(a, cfg, role):
    if cfg.enc and cfg.enc[0] == role:
        l = a.lab('enc')
        a('s_waitcnt lgkmcnt(0)'); a('s_sub_u32 s96, s96, s98'); a('s_lshl_b32 s96, s96, 2'); a('s_add_u32 s96, s96, 3000')
        a.label(l); a('s_sleep 2'); a('s_memrealtime s[94:95]'); a('s_waitcnt lgkmcnt(0)'); a('s_sub_u32 s94, s94, s98'); a('s_cmp_lt_u32 s94, s96'); a(f's_cbranch_scc1 {l}')
def stamp(a, cfg, name, role=None):
    if cfg.enc == (role, name): a('s_memrealtime s[96:97]')
    if not cfg.stamps: return
    L = cfg.gst if role == 'G' else cfg.fst
    if name in L:
        i = L.index(name)
        a(f's_memtime {sr(sST+2*i, 2)}' if name.startswith('c') and name[1:2] == '_' else f's_memrealtime {sr(sST+2*i, 2)}')
    if 'C' + name in L: a(f's_memtime {sr(sST+2*L.index("C" + name), 2)}')
def stampv(a, cfg, name, role, sreg):
    if not cfg.stamps: return
    L = cfg.gst if role == 'G' else cfg.fst
    if name in L: a(f's_mov_b32 s{sST+2*L.index(name)}, s{sreg}')

def stamps_out(a, cfg, n, srdws):
    if not cfg.stamps: return
    a('s_waitcnt lgkmcnt(0)')
    if cfg.dbgst:
        l = a.lab('nodbg')
        a(f's_cmp_lg_u32 s{sWV}, 0'); a(f's_cbranch_scc1 {l}')
        a('s_load_dwordx2 s[4:5], s[0:1], 72'); a('s_waitcnt lgkmcnt(0)')
        srd(a, SB, 4, 256)
        a('s_mov_b64 exec, 1'); a('v_mov_b32 v2, 0')
        a(f's_not_b32 s{T0}, s{sST}'); a(f'v_mov_b32 v3, s{T0}')
        a(f'buffer_atomic_umax v3, v2, {sr(SB,4)}, 0 offen')
        for i in range(n):
            a(f'v_mov_b32 v{4+i}, s{sST+2*i}')
            a(f'buffer_atomic_umax v{4+i}, v2, {sr(SB,4)}, 0 offen offset:{4+4*i}')
        a.label(l)
        return
    a(f's_lshl_b32 s{T0}, s2, 3'); a(f's_add_u32 s{T0}, s{T0}, s{sWV}'); a(f's_lshl_b32 s{T0}, s{T0}, 6'); a(f's_add_u32 s{T0}, s{T0}, {STAMP}')
    a('s_mov_b64 exec, 1'); a('v_mov_b32 v2, 0')
    for i in range(n):
        a(f'v_mov_b32 v3, s{sST+2*i}')
        a(f'buffer_store_dword v3, v2, {sr(srdws,4)}, s{T0} offen offset:{4*i}')
        a('s_nop 1')
    a('s_mov_b64 exec, -1')

def lds_spin(a, vaddr, off, target, vt, sleep=False):
    l = a.lab('spin')
    a.wait(lg=0)
    if sleep:
        l2 = a.lab('spin'); a(f's_branch {l2}'); a.label(l); a('s_sleep 1'); a.label(l2)
    else: a.label(l)
    a(f'ds_read_b32 v{vt}, v{vaddr} offset:{off}')
    a('s_waitcnt lgkmcnt(0)')
    a(f'v_readfirstlane_b32 s{T3}, v{vt}')
    a(f's_cmp_lt_u32 s{T3}, {target}')
    a(f's_cbranch_scc1 {l}')

def kf_spin(a, vaddr, idx, vt, sleep=False):
    l = a.lab('spin4')
    a.wait(lg=0)
    if sleep:
        l2 = a.lab('spin'); a(f's_branch {l2}'); a.label(l); a('s_sleep 1'); a.label(l2)
    else: a.label(l)
    a(f'ds_read_b32 v{vt}, v{vaddr} offset:{4*idx}')
    a('s_waitcnt lgkmcnt(0)')
    a(f'v_cmp_ne_u32 vcc, {ALL4}, v{vt}')
    a(f's_cbranch_vccnz {l}')

def lds_arrive(a, vaddr, off, vone):
    a('s_mov_b64 exec, 1')
    a(f'ds_add_u32 v{vaddr}, v{vone} offset:{off}')
    a('s_mov_b64 exec, -1')

def prologue(a, cfg):
    a('s_cmp_ge_u32 s2, 256'); a('s_cbranch_scc1 L_END')
    stamp(a, cfg, 'start', 'G'); stamp(a, cfg, 'c_start', 'G')
    if cfg.diagt or cfg.enc: a('s_memrealtime s[98:99]')
    a('s_load_dwordx16 s[4:19], s[0:1], 0')
    a('s_load_dwordx2 s[20:21], s[0:1], 64')
    a('s_load_dwordx2 s[22:23], s[0:1], 80')
    a('v_lshrrev_b32 v2, 6, v0'); a('v_and_b32 v1, 63, v0')
    if cfg.ipf:
        a('s_getpc_b64 s[52:53]'); a.label('L_PC')
        a('s_lshr_b32 s3, s2, 3'); a(f's_and_b32 s3, s3, {cfg.ipf - 1}'); a(f's_mul_i32 s3, s3, (L_END - L_PC + 63)/64/{cfg.ipf} + 1')
        a('v_add_u32 v6, s3, v0'); a('v_lshlrev_b32 v6, 6, v6'); a('v_min_u32 v6, L_END - L_PC, v6')
        a('v_mov_b32 v9, s53'); a('v_add_co_u32 v8, vcc, s52, v6'); a('v_addc_co_u32 v9, vcc, 0, v9, vcc')
        a(f'v_cmp_gt_u32 vcc, (L_END - L_PC + 63)/64/{cfg.ipf} + 1, v0'); a('s_and_saveexec_b64 s[54:55], vcc'); h = a.skip_begin('s_cbranch_execz')
        a('global_load_dword v255, v[8:9], off')
        a.skip_end(h, drop=True)
        a('s_mov_b64 exec, s[54:55]')
    a(f'v_readfirstlane_b32 s{sWV}, v2')
    if cfg.map84:
        a(f's_and_b32 s3, s2, 6'); a(f's_lshl_b32 s{sG0}, s3, 2'); a('s_lshr_b32 s3, s2, 5'); a(f's_add_u32 s{sG0}, s{sG0}, s3')
        a(f's_bfe_u32 s{sJ}, s2, 0x20003'); a('s_and_b32 s3, s2, 1'); a('s_lshl_b32 s3, s3, 2'); a(f's_add_u32 s{sJ}, s{sJ}, s3')
    else:
        a(f's_and_b32 s3, s2, 7'); a(f's_lshl_b32 s{sG0}, s3, 2'); a('s_lshr_b32 s3, s2, 6'); a(f's_add_u32 s{sG0}, s{sG0}, s3')
        a(f's_lshr_b32 s{sJ}, s2, 3'); a(f's_and_b32 s{sJ}, s{sJ}, 7')
    a(f's_mul_i32 s{T0}, s{sG0}, 5'); a(f's_add_u32 s{T0}, s{T0}, s{sJ}'); a(f's_sub_u32 s{T0}, s{T0}, 8')
    a(f's_add_u32 s{T1}, s{sG0}, 154'); a(f's_cmp_eq_u32 s{sJ}, 2'); a(f's_cselect_b32 s{T1}, s{T1}, 200'); a(f's_cmp_ge_u32 s{sJ}, 3'); a(f's_cselect_b32 s{sTK}, s{T0}, s{T1}')
    a(f's_cmp_eq_u32 s{sG0}, 0'); a(f's_cselect_b32 s{sTK}, 200, s{sTK}')
    a('v_lshlrev_b32 v12, 4, v1')
    a(f's_and_b32 s{sW}, s{sWV}, 3')
    a(f'v_mov_b32 v4, {CNT}'); a('v_mov_b32 v5, 0'); a('v_and_b32 v3, 31, v1'); a('v_lshl_add_u32 v3, v3, 2, v4')
    a('ds_write_b32 v3, v5')
    a('s_waitcnt lgkmcnt(0)')
    a(f's_cmp_ge_u32 s{sWV}, 4'); a('s_cbranch_scc1 L_F')

def nonce(a):
    a(f's_mul_i32 s{sNON}, s{sNON}, 0x9e3779b1'); a(f's_add_u32 s{sNON}, s{sNON}, 0x7f4a7c15')
    a(f's_mul_i32 s{sNON+1}, s{sNON+1}, 0x85ebca6b'); a(f's_add_u32 s{sNON+1}, s{sNON+1}, 0xc2b2ae35')

def gate_code(a, cfg, GB, GA, t):
    vGX, vGG, vGL = (t + 1, t + 2, t + 3) if t != 10 else (11, 2, 13)
    a(f'v_and_b32 v{t}, 15, v1'); a(f's_lshl_b32 s{T2}, s{sW}, 4'); a(f'v_add_u32 v{t}, s{T2}, v{t}'); a(f'v_lshlrev_b32 v{vGL}, 2, v{t}'); a(f'v_mul_u32_u24 v{t}, {XP}, v{t}')
    a(f'v_and_b32 v{vGG}, 48, v1'); a(f'v_add_u32 v{vGX}, v{vGG}, v{t}')
    def rd(ks): a(f'ds_read_b128 {vr(GB+8*(ks%7),4)}, v{vGX} offset:{XT + 64*ks}'); a(f'ds_read_b128 {vr(GB+8*(ks%7)+4,4)}, v{vGG} offset:{GW + 64*ks}')
    for ks in range(6): rd(ks)
    for ks in range(16):
        a(f'{MF16} {vr(GA+4*(ks&1),4)}, {vr(GB+8*(ks%7)+4,4)}, {vr(GB+8*(ks%7),4)}, {vr(GA+4*(ks&1),4) if ks > 1 else 0}')
        if ks + 6 < 16: rd(ks + 6)
    a(f'v_add_f32 v{GA}, v{GA}, v{GA+4}')
    a(f'v_mul_f32 v{GA}, {f32(-1.4426950408889634)}, v{GA}'); a(f'v_exp_f32 v{GA}, v{GA}'); a(f'v_add_f32 v{GA}, 1.0, v{GA}'); a(f'v_rcp_f32 v{GA}, v{GA}')
    a(f'ds_write_b32 v{vGL}, v{GA} offset:{GL}')

def gen_G(a, cfg):
    vCN, vD, vL16 = 4, 5, 12
    vP, vQ0, vQ1, vPW, vSV = 13, 14, 15, 8, 9
    vT, vX0, vX1, vPA = 10, 11, 2, 3
    PR, ACC2, QR = 16, 136, 200
    ACC1, ACCX, FR, TM = 136, 184, 16, 232
    BI = 56
    RW = NSLOT*3072
    sU0, sNU, sRH, sFH, sSL = 58, 59, 60, 61, 62
    sAO = 63
    sK = 66
    sROT, sOWN, sTMP = 78, 79, 71
    def step_off(i, dst):
        L = [f's_add_u32 s{dst}, s{sROT}, {i*8192}', f's_sub_u32 s{sTMP}, s{dst}, {REG}', f's_cselect_b32 s{dst}, s{dst}, s{sTMP}']
        if i == 21: L += [f's_cmp_lt_u32 s{sW}, 2', f's_cselect_b32 s{dst}, s{dst}, {OOB}']
        return L
    if cfg.prioG: a(f's_setprio {cfg.prioG}')
    a(f's_lshl_b32 s{T0}, s{sW}, 9'); a(f's_add_u32 s{T0}, s{T0}, s{sG0}'); a(f's_lshl_b32 s{T0}, s{T0}, 10')
    a(f's_mul_i32 s{T1}, s{sW}, {16*XP}')
    srd(a, SX, sX, 2*MB)
    a(f's_load_dwordx2 {sr(sNON,2)}, {sr(sWS,2)}, {NONCE}')
    a(f'v_add_u32 v{vPW}, s{sW}, v{vCN}'); a(f'v_mov_b32 v{vSV}, 1')
    def post(i): a(f'ds_write_b8 v{vPW}, v{vSV} offset:{4*i}')
    sXO, sXM = 70, 71
    a(f's_mov_b32 s{sXO}, s{T0}'); a(f's_mov_b32 s{sXM}, s{T1}')
    def xdma(i0, i1):
        for i in range(i0, i1):
            a(f's_add_u32 m0, s{sXM}, {XT + i*XP}')
            if i: a(f's_add_u32 s{sXO}, s{sXO}, 32768')
            a(f'buffer_load_dwordx4 v12, {sr(SX,4)}, s{sXO} offen lds', tag='x')
    xdma(0, cfg.x0)
    a('s_barrier')
    t = TM
    vWA = FR
    a(f's_and_b32 s{T0}, s{sW}, 1'); a(f's_cmp_eq_u32 s{T0}, 0')
    a(f's_cselect_b32 s{SE}, s{sWR}, s{sWI}'); a(f's_cselect_b32 s{SE+1}, s{sWR+1}, s{sWI+1}')
    a(f's_sub_u32 s{SE}, s{SE}, 2048'); a(f's_subb_u32 s{SE+1}, s{SE+1}, 0'); a(f's_mov_b32 s{SE+2}, {2048*514 + 2048}'); a(f's_mov_b32 s{SE+3}, 0x20000')
    a(f's_cmp_ge_u32 s{sW}, 2'); a('s_cselect_b64 vcc, -1, 0')
    a(f's_lshl_b32 s{T0}, s{sJ}, 8'); a(f's_add_u32 s{T0}, s{T0}, s{sG0}')
    def waddr(k1off):
        for u in range(3):
            r_ = FR + 8 + 3*u; d_ = vWA + 3*k1off + u
            if not k1off:
                a(f'v_add_u32 v{r_}, {64*u}, v1'); a(f'v_mul_u32_u24 v{r_+1}, 1986, v{r_}'); a(f'v_lshrrev_b32 v{r_+1}, 16, v{r_+1}')
                a(f'v_mul_u32_u24 v{r_+2}, 33, v{r_+1}'); a(f'v_sub_u32 v{r_}, v{r_}, v{r_+2}'); a(f'v_lshlrev_b32 v{r_}, 4, v{r_}')
                a(f'v_add_u32 v{r_}, {2048 - 1024*u}, v{r_}')
                a(f'v_lshlrev_b32 v{r_+1}, 6, v{r_+1}'); a(f'v_add_u32 v{r_+1}, s{T0}, v{r_+1}')
            else: a(f'v_add_u32 v{r_+1}, 32, v{r_+1}')
            a(f'v_sub_u32 v{r_+2}, 2048, v{r_+1}'); a(f'v_and_b32 v{r_+2}, 2047, v{r_+2}'); a(f'v_cndmask_b32 v{r_+2}, v{r_+1}, v{r_+2}, vcc')
            a(f'v_mul_u32_u24 v{r_+2}, 514, v{r_+2}'); a(f'v_and_b32 v{r_+2}, -16, v{r_+2}'); a(f'v_add_u32 v{d_}, v{r_+2}, v{r_}')
    def wrows(k1off):
        a(f's_mul_i32 s{T1}, s{sW}, {4*WP}'); a(f's_add_u32 m0, s{T1}, {FA + (16*WP if k1off else 0)}')
        for u in range(3):
            if u == 2: a('s_mov_b64 exec, 15')
            a(f'buffer_load_dwordx4 v{vWA+3*k1off+u}, {sr(SE,4)}, 0 offen offset:{1024*u} lds', tag='ws')
            if u == 2: a('s_mov_b64 exec, -1')
    waddr(0)
    sW2O = 72
    a(f's_lshr_b32 s{T0}, s{sTK}, 1'); a(f's_lshl_b32 s{T0}, s{T0}, 14'); a(f's_and_b32 s{T1}, s{sTK}, 1'); a(f's_lshl_b32 s{T1}, s{T1}, 12'); a(f's_add_u32 s{T0}, s{T0}, s{T1}')
    a(f's_lshr_b32 s{T1}, s{sW}, 1'); a(f's_lshl_b32 s{T1}, s{T1}, 13'); a(f's_add_u32 s{T0}, s{T0}, s{T1}'); a(f's_and_b32 s{T1}, s{sW}, 1'); a(f's_lshl_b32 s{T1}, s{T1}, 11'); a(f's_add_u32 s{sW2O}, s{T0}, s{T1}')
    vG4, vBO = FR + 6, FR + 7
    a(f'v_lshlrev_b32 v{vG4}, 2, v1')
    srd(a, SA, sW1, 512*2752)
    a(f's_min_u32 s{sU0}, s{sJ}, 3'); a(f's_mul_i32 s{T0}, s{sJ}, 5'); a(f's_add_u32 s{sU0}, s{sU0}, s{T0}')
    a(f's_cmp_lt_u32 s{sJ}, 3'); a(f's_cselect_b32 s{sNU}, 6, 5')
    a(f's_and_b32 s{sRH}, s{sW}, 1'); a(f's_lshr_b32 s{sFH}, s{sW}, 1')
    a(f's_mul_i32 s{T2}, s{sFH}, 3')
    a(f's_add_u32 s{T0}, s{sU0}, s{T2}'); a(f's_lshl_b32 s{T0}, s{T0}, 6'); a(f's_sub_u32 s{T3}, s{sNU}, s{T2}')
    for u in range(3):
        a(f'v_add_u32 v{t}, {64*u}, v1')
        a(f'v_mul_u32_u24 v{t+1}, 5462, v{t}'); a(f'v_lshrrev_b32 v{t+1}, 16, v{t+1}')
        a(f'v_mul_u32_u24 v{t+2}, 12, v{t+1}'); a(f'v_sub_u32 v{t}, v{t}, v{t+2}')
        a(f'v_lshrrev_b32 v{t+2}, 2, v{t}'); a(f'v_cmp_gt_u32 vcc, s{T3}, v{t+2}')
        a(f'v_mul_u32_u24 v{t+1}, 2752, v{t+1}'); a(f'v_lshl_add_u32 v{t}, v{t}, 4, v{t+1}'); a(f'v_add_u32 v{t}, s{T0}, v{t}')
        a(f'v_mov_b32 v{t+1}, {OOB}')
        if u: a(f'v_subrev_u32 v{t}, {1024*u}, v{t}')
        a(f'v_cndmask_b32 v{vD+u}, v{t+1}, v{t}, vcc')
    a(f's_mul_i32 s{sSL}, s{sRH}, {256*2752}')
    sRM = 73
    a(f's_mul_i32 s{sRM}, s{sW}, {RW}')
    def dma_m0(s):
        if s <= 15: a(f's_add_u32 m0, s{sRM}, {RING + (s % NSLOT)*3072}')
    def dma_so(s):
        if 0 < s <= 15: a(f's_add_u32 s{sSL}, s{sSL}, {16*2752}')
    def dma1(s, u):
        if s <= 15: a(f'buffer_load_dwordx4 v{vD+u}, {sr(SA,4)}, s{sSL} offen offset:{1024*u} lds', tag=f'w{s}')
    def dma(s):
        dma_m0(s); dma_so(s)
        for u in range(3): dma1(s, u)
    sBO = 74
    a(f'v_and_b32 v{t}, 31, v1'); a(f'v_lshlrev_b32 v{t}, 1, v{t}'); a(f'v_cmp_gt_u32 vcc, 32, v1')
    a(f'v_mov_b32 v{t+1}, {OOB}'); a(f'v_cndmask_b32 v{vBO}, v{t+1}, v{t}, vcc')
    for T in range(3):
        a(f's_add_u32 s{T3}, s{T2}, {T}'); a(f's_cmp_lt_u32 s{T3}, s{sNU}')
        a(f's_cselect_b32 s{T0}, 0, {OOB}')
        a(f's_add_u32 s{T3}, s{T3}, s{sU0}')
        a(f's_lshl_b32 s{sAO+T}, s{T3}, 12'); a(f's_add_u32 s{sAO+T}, s{sAO+T}, s{T0}')
        a(f's_lshl_b32 s{T3}, s{T3}, 6'); a(f's_add_u32 s{sBO+T}, s{T3}, s{T0}')
    def late_setup():
        a(f's_mul_i32 s{T0}, s{sG0}, {REG}'); a(f's_add_u32 s{T0}, s{T0}, {ACT}')
        srd(a, SC, sWS, REG, f's{T0}')
        a(f's_mul_i32 s{T0}, s{sJ}, {REG}'); a(f's_add_u32 s{T0}, s{T0}, {W2P}')
        srd(a, SD, sWS, REG, f's{T0}')
        a(f's_lshl_b32 s{T0}, s{sRH}, 10'); a(f'v_add_u32 v{vQ0}, s{T0}, v{vL16}')
        a(f'v_and_b32 v{t+1}, 31, v1'); a(f's_lshl_b32 s{T0}, s{sFH}, 4'); a(f'v_xor_b32 v{t+1}, s{T0}, v{t+1}')
        a(f'v_lshrrev_b32 v{t+2}, 5, v1'); a(f'v_lshlrev_b32 v{t+2}, 9, v{t+2}'); a(f'v_lshl_add_u32 v{vPA}, v{t+1}, 4, v{t+2}')
        a(f's_lshl_b32 s{sROT}, s{sU0}, 1'); a(f's_add_u32 s{sROT}, s{sROT}, s{sW}'); a(f's_lshl_b32 s{sROT}, s{sROT}, 11')
        if not cfg.own: a(f's_lshl_b32 s{sROT}, s{sW}, 11')
        a(f's_lshl_b32 s{T0}, s{sNU}, 1'); a(f's_sub_u32 s{T0}, s{T0}, s{sW}'); a(f's_cmp_gt_u32 s{T0}, 8'); a(f's_cselect_b32 s{sOWN}, 1, 0')
        a(f'v_lshrrev_b32 v{t}, 5, v1'); a(f'v_lshlrev_b32 v{t}, 3, v{t}'); a(f'v_bfe_u32 v{t+1}, v1, 2, 2'); a(f'v_add_u32 v{t}, v{t}, v{t+1}')
        a(f'v_mul_u32_u24 v{t}, 192, v{t}')
        a(f'v_bfe_u32 v{t+2}, v1, 4, 1'); a(f'v_lshl_add_u32 v{t}, v{t+2}, 5, v{t}')
        a(f'v_and_b32 v{t+2}, 3, v1'); a(f'v_lshl_add_u32 v{t}, v{t+2}, 3, v{t}')
        a(f's_add_u32 s{T0}, s{sRM}, {RING}'); a(f'v_add_u32 v{vT}, s{T0}, v{t}')
        a(f'v_add_u32 v{vP}, s{T0}, v{vL16}')
        a(f's_xor_b32 s{T0}, s{sW}, 1'); a(f's_mul_i32 s{T0}, s{T0}, {RW}'); a(f's_add_u32 s{T0}, s{T0}, {RING}'); a(f'v_add_u32 v{vQ1}, s{T0}, v{vL16}')
        a(f'v_and_b32 v{t}, 31, v1'); a(f'v_mul_u32_u24 v{t}, {XP}, v{t}'); a(f'v_lshrrev_b32 v{t+1}, 5, v1'); a(f'v_lshl_add_u32 v{t}, v{t+1}, 4, v{t}')
        a(f's_mul_i32 s{T0}, s{sRH}, {32*XP + 512}'); a(f'v_add_u32 v{vX0}, s{T0}, v{t}')
        a(f's_mul_i32 s{T0}, s{sRH}, {512 - 32*XP}'); a(f's_add_u32 s{T0}, s{T0}, {32*XP}'); a(f'v_add_u32 v{vX1}, s{T0}, v{t}')
        for T in range(3):
            for k in range(1, 4): a(f'v_mov_b32 v{BI+4*T+k}, 0')
        a(f'v_cmp_gt_u32 vcc, 32, v1'); a(f'v_mov_b32 v{t}, 0x3f80'); a(f'v_mov_b32 v{BI+13}, 0'); a(f'v_mov_b32 v{BI+14}, 0'); a(f'v_mov_b32 v{BI+15}, 0')
        a(f'v_cndmask_b32 v{BI+12}, 0, v{t}, vcc')
        a(f's_mov_b32 s{sK}, {f32(-1.4426950408889634)}'); a(f's_mov_b32 s{sK+1}, {f32(-1.4426950408889634)}')
        a(f's_mov_b32 s{sK+2}, 0.5'); a(f's_mov_b32 s{sK+3}, 0.5')
        nonce(a)
    if not cfg.lateSet: late_setup()
    stamp(a, cfg, 'set', 'G')
    xdma(cfg.x0, 16)
    srd(a, SB, sB1, 2752)
    for T in range(3): a(f'buffer_load_ushort v{BI+4*T}, v{vBO}, {sr(SB,4)}, s{sBO+T} offen')
    def staging():
        wrows(0)
        a(f's_cmp_lg_u32 s{sG0}, 0'); h = a.skip_begin('s_cbranch_scc1')
        a(f's_cmp_ge_u32 s{sW}, 2'); a('s_cselect_b64 vcc, -1, 0'); waddr(1); wrows(1); a.skip_end(h, drop=True)
        srd(a, SB, sW2, 1376*1024)
        a(f's_lshl_b32 s{T1}, s{sW}, 11'); a(f's_add_u32 m0, s{T1}, {FB}')
        a(f's_cmp_ge_u32 s{sTK}, 172'); h = a.skip_begin('s_cbranch_scc1')
        for u in range(2): a(f'buffer_load_dwordx4 v12, {sr(SB,4)}, s{sW2O} offen offset:{1024*u} lds', tag='ws')
        a.skip_end(h, drop=True)
        srd(a, SB, sGWp, 1024)
        a(f's_lshl_b32 s{T0}, s{sW}, 8'); a(f's_add_u32 m0, s{T0}, {GW}')
        a(f'buffer_load_dword v{vG4}, {sr(SB,4)}, s{T0} offen lds', tag='ws')
        srd(a, SE, sOUT, 2*MB)
    if cfg.stgFirst: staging()
    for s in range(cfg.p0): dma(s)
    stamp(a, cfg, 'iss', 'G')
    a.wait_tag('x'); post(kX); stamp(a, cfg, 'X', 'G')
    if not cfg.stgFirst: staging()
    for s in range(cfg.p0, cfg.p1): dma(s)
    if cfg.lateSet: late_setup()
    for T in range(3): a(f'{MF32} {vr(ACC1+16*T,16)}, {vr(BI+4*T,4)}, {vr(BI+12,4)}, 0')
    def reads(s):
        if s > 15: return [None]*8
        f = FR + 20*(s & 1)
        L = [f'ds_read_b128 {vr(f,4)}, v{vX0} offset:{XT + s*32}', f'ds_read_b128 {vr(f+4,4)}, v{vX1} offset:{XT + s*32}']
        for T in range(3):
            for hf in range(2):
                L.append(f'ds_read_b64_tr_b16 {vr(f+8+4*T+2*hf,2)}, v{vT} offset:{(s % NSLOT)*3072 + 768*hf + 64*T}')
        return L
    def rd(s, i, j):
        for x in reads(s)[i:j]:
            if x: a(x, tag=f'r{s}')
    def mf(s, T, rt):
        f = FR + 20*(s & 1); d = (ACCX if rt else ACC1) + 16*T
        a(f'{MF32} {vr(d,16)}, {vr(f+8+4*T,4)}, {vr(f+4*rt,4)}, {vr(d,16) if (s or not rt) else 0}')
    a.wait_tag('w0')
    if cfg.stgFirst: post(kW)
    kf_spin(a, vCN, kX, TM)
    pend = []
    for i in range(cfg.npre):
        r = PR + 8*i
        pend.append(step_off(i, 77) + [f'buffer_load_dwordx4 {vr(r,4)}, v{vPA}, {sr(SD,4)}, s77 offen {cfg.pfl}'])
        pend.append([f'buffer_load_dwordx4 {vr(r+4,4)}, v{vPA}, {sr(SD,4)}, s77 offen offset:1024 {cfg.pfl}'])
    early = [2*(cfg.npre - 7)]
    def popP(n):
        for _ in range(n):
            if pend:
                for l in pend.pop(0): a(l, tag='p')
    def popE(s):
        if s >= cfg.pAt and early[0]: popP(1); early[0] -= 1
    rd(0, 0, 8)
    n = NSLOT - 1
    if not cfg.hold:
        for s in range(cfg.p1, n): dma(s)
    nxt = max(cfg.p1, n) if not cfg.hold else cfg.p1
    for s in range(14):
        stamp(a, cfg, f'k{s}', 'G')
        if cfg.hold and s == cfg.holdAt:
            kf_spin(a, vCN, kS, TM, sleep=True)
            stamp(a, cfg, 'kS', 'G')
            while nxt < s + n: dma(nxt); nxt += 1
        ld = nxt if (nxt == s + n and (not cfg.hold or s >= cfg.holdAt)) else 99
        if s == cfg.pAt:
            lds_spin(a, vCN, cGO, 4, TM, sleep=True); stamp(a, cfg, 'go', 'G')
        if s == cfg.mAt: post(kM)
        if s == cfg.dAt: post(kD)
        a.wait_ltag(f'r{s}')
        mf(s, 0, 0)
        a.wait_tag(f'w{s+1}')
        if s == cfg.p0 - 1 and not cfg.stgFirst: post(kW)
        rd(s+1, 0, 2)
        mf(s, 0, 1); rd(s+1, 2, 4); dma_m0(ld)
        mf(s, 1, 0); rd(s+1, 4, 6); dma_so(ld)
        mf(s, 1, 1); rd(s+1, 6, 8); dma1(ld, 0); popE(s)
        mf(s, 2, 0); dma1(ld, 1); popE(s)
        mf(s, 2, 1); dma1(ld, 2); popE(s); popE(s)
        if ld != 99: nxt += 1
    assert nxt >= 16 and cfg.pAt > 15
    a.wait_ltag('r14')
    mf(14, 0, 1); a.wait_tag('w15'); post(kL); rd(15, 0, 4)
    mf(14, 1, 1); rd(15, 4, 8)
    mf(14, 2, 1); mf(14, 0, 0)
    a.wait_ltag('r15')
    for T in range(3): mf(15, T, 1)
    def exw(q): a(f'ds_write_b128 v{vP}, {vr(ACCX+4*q,4)} offset:{1024*q}')
    mf(14, 1, 0); mf(14, 2, 0)
    for q in range(0, 4): exw(q)
    mf(15, 0, 0)
    for q in range(4, 7): exw(q)
    mf(15, 1, 0)
    for q in range(7, 10): exw(q)
    mf(15, 2, 0)
    stamp(a, cfg, 'Kl', 'G')
    if cfg.prioM != cfg.prioG: a(f's_setprio {cfg.prioM}')
    for q in range(10, 12): exw(q)
    a.wait(lg=0); post(kK)
    kf_spin(a, vCN, kK, TM)
    if cfg.mAt == 16: post(kM)
    for q in range(12): a(f'ds_read_b128 {vr(ACCX+4*q,4)}, v{vQ1} offset:{1024*q}')
    stamp(a, cfg, 'Kend', 'G')
    def wait_go():
        lds_spin(a, vCN, cGO2 if 'B' in cfg.ford else cGO, 4, TM + 2, sleep=True); stamp(a, cfg, 'go', 'G')
    cnt = [0, False]
    def m(x):
        a(x); cnt[0] += 1
        if cnt[1] and cnt[0] % cfg.pgap == 0: popP(1)
    for T in range(3):
        for hb in range(2):
            h = ACC1 + 16*T + 8*hb
            if cfg.goAt == 2*T + hb: wait_go(); cnt[1] = True
            e, u, o = TM, TM + 8, TM + 16 + 4*((2*T+hb) % 2)
            for k in range(4): m(f'v_pk_add_f32 {vr(h+2*k,2)}, {vr(h+2*k,2)}, {vr(h+48+2*k,2)}')
            for k in range(4): m(f'v_pk_mul_f32 {vr(e+2*k,2)}, {vr(h+2*k,2)}, {sr(sK,2)}')
            for k in range(8): m(f'v_exp_f32 v{e+k}, v{e+k}')
            for k in range(4): m(f'v_pk_add_f32 {vr(u+2*k,2)}, {vr(e+2*k,2)}, {sr(sK+2,2)}')
            for k in range(4): m(f'v_pk_fma_f32 {vr(e+2*k,2)}, {vr(e+2*k,2)}, {vr(e+2*k,2)}, {vr(u+2*k,2)}')
            for k in range(8): m(f'v_rcp_f32 v{e+k}, v{e+k}')
            for k in range(4): m(f'v_pk_mul_f32 {vr(e+2*k,2)}, {vr(e+2*k,2)}, {vr(u+2*k,2)} clamp')
            for k in range(4): m(f'v_pk_mul_f32 {vr(e+2*k,2)}, {vr(e+2*k,2)}, {vr(h+2*k,2)}')
            for k in range(4): m(f'v_cvt_pk_bf16_f32 v{o+k}, v{e+2*k}, v{e+2*k+1}')
            a(f'buffer_store_dwordx4 {vr(o,4)}, v{vQ0}, {sr(SC,4)}, s{sAO+T} offen offset:{2048*hb} sc1', tag='act')
            if cfg.mAt == 20 + 2*T + hb: post(kM)
    stamp(a, cfg, 'mish', 'G')
    if cfg.prioM != cfg.prioG2: a(f's_setprio {cfg.prioG2}')
    assert cfg.np1 == 0 or cfg.mAt != 26
    if cfg.np1 and cfg.goAt > 5: wait_go()
    popP(cfg.np1)
    gate = lambda: gate_code(a, cfg, 136, 192, 10)
    if cfg.gateAt == 'D': gate()
    srd(a, SA, sWS, WSZ)
    a(f'v_mov_b32 v{TM+8}, 1'); a(f'v_mov_b32 v{TM+10}, s{sNON}'); a(f'v_mov_b32 v{TM+11}, s{sNON+1}')
    a(f'v_and_b32 v{TM+12}, 7, v1'); a(f'v_lshlrev_b32 v{TM+12}, 7, v{TM+12}'); a(f'v_mov_b32 v{TM+13}, 0')
    a(f's_lshl_b32 s{T0}, s{sG0}, 10'); a(f's_add_u32 s{T0}, s{T0}, {FLAGB}'); a(f's_lshl_b32 s{T2}, s{sJ}, 7'); a(f's_add_u32 s{T2}, s{T2}, s{T0}')
    a.wait_tag('act')
    stamp(a, cfg, 'drain', 'G')
    if cfg.mAt == 26: post(kM)
    a('s_mov_b64 exec, 1'); a(f'ds_add_rtn_u32 v{TM+9}, v{vCN}, v{TM+8} offset:{cACT}'); a('s_mov_b64 exec, -1')
    a(f'v_readfirstlane_b32 s{T3}, v{TM+9}')
    lnp = a.lab('nopollB'); lpb = a.lab('pollB'); lgb = a.lab('goB')
    a(f's_cmp_eq_u32 s{T3}, 3'); a(f's_cselect_b32 s{T2}, s{T2}, {OOB}'); a(f's_mov_b32 s{sNU}, s{T3}')
    a('s_mov_b64 exec, 1'); a(f'buffer_store_dwordx2 {vr(TM+10,2)}, v{TM+13}, {sr(SA,4)}, s{T2} offen sc1'); a('s_mov_b64 exec, -1')
    a(f's_cmp_eq_u32 s{sNU}, 3'); a(f's_cselect_b32 s{sNU+11}, s{T0}, {OOB}')
    NS = 22
    def loadP(i, hb):
        if i < cfg.npre or i >= NS or cfg.stg: return
        r = PR + 8*(i % cfg.NP)
        if hb == 0:
            for l in step_off(i, T1): a(l)
        a(f'buffer_load_dwordx4 {vr(r+4*hb,4)}, v{vPA}, {sr(SD,4)}, s{T1} offen offset:{1024*hb} {cfg.pfl}')
    def loadQ(i, hb):
        if i >= NS: return
        k = i % cfg.NQ; r = QR + 8*k
        if hb == 0:
            for l in step_off(i, sSL): a(l)
        a(f'buffer_load_dwordx4 {vr(r+4*hb,4)}, v{vQ0+hb}, {sr(SC,4)}, s{sSL} offen sc1')
    a(f's_lshl_b32 s{T2}, s{sRH}, 10'); a(f'v_add_u32 v{vQ0}, s{T2}, v{vL16}'); a(f'v_xor_b32 v{vQ1}, 1024, v{vQ0}')
    def mf2(i, mt, nt):
        p = PR + 8*(i % cfg.NP); q = QR + 8*(i % cfg.NQ); d = ACC2 + 32*mt + 16*nt
        a(f'{MF32} {vr(d,16)}, {vr(p+4*mt,4)}, {vr(q+4*nt,4)}, {vr(d,16) if i else 0}')
    i00 = 0
    if cfg.own:
        lds_spin(a, vCN, cACT, 4, TM + 2)
        for i in range(2): loadQ(i, 0); loadQ(i, 1)
        a(f's_cmp_eq_u32 s{sOWN}, 0'); h = a.skip_begin('s_cbranch_scc1'); loadQ(2, 0); loadQ(2, 1); a.skip_end(h, drop=True)
        i00 = 2
    if not cfg.np1 and cfg.goAt > 5: wait_go()
    popP(cfg.pollB)
    if cfg.slpB: a(f's_sleep {cfg.slpB}')
    a(f'buffer_load_dwordx2 {vr(TM,2)}, v{TM+12}, {sr(SA,4)}, s{sNU+11} offen sc1', tag='pb')
    if cfg.stg:
        popP(max(0, cfg.stgAt - cfg.np1 - cfg.pollB)); post(kQ)
    popP(99)
    stamp(a, cfg, 'piss', 'G')
    a(f's_mov_b32 s{sU0}, 0')
    a(f's_cmp_lg_u32 s{sNU}, 3'); a(f's_cbranch_scc1 {lnp}')
    vq = list(a.vq)
    a.wait_tag('pb')
    a.label(lpb)
    a(f'v_xor_b32 v{TM}, s{sNON}, v{TM}'); a(f'v_xor_b32 v{TM+1}, s{sNON+1}, v{TM+1}'); a(f'v_or_b32 v{TM}, v{TM}, v{TM+1}')
    a(f'v_cmp_ne_u32 vcc, 0, v{TM}'); a(f's_cbranch_vccz {lgb}')
    a(f'buffer_load_dwordx2 {vr(TM,2)}, v{TM+12}, {sr(SA,4)}, s{T0} offen sc1')
    a('s_waitcnt vmcnt(0)')
    a(f's_add_u32 s{sU0}, s{sU0}, 1'); a(f's_cmp_lt_u32 s{sU0}, {cfg.spin}'); a(f's_cbranch_scc1 {lpb}')
    a.label(lgb)
    lds_arrive(a, vCN, cGOB, TM+8)
    a.label(lnp)
    a.vq = vq
    for i in range(i00):
        for mt in range(2):
            for nt in range(2): mf2(i, mt, nt)
    if cfg.gateAt == 'B': gate()
    if cfg.stg: a(f's_mul_i32 s{T0}, s{sW}, {NPL*2048}'); a(f'v_add_u32 v{vPA}, s{T0}, v{vL16}')
    lds_spin(a, vCN, cGOB, 1, TM + 2, sleep=True)
    stamp(a, cfg, 'goB', 'G')
    if cfg.t3 == -1: post(k3)
    dq, dp = cfg.NQ - 1, cfg.dP
    assert dp < cfg.NP and cfg.npre <= cfg.NP
    for i in range(i00, i00 + max(dq, dp)):
        if i < i00 + dq: loadQ(i, 0); loadQ(i, 1)
        if i < i00 + dp: loadP(i, 0); loadP(i, 1)
    if cfg.gateAt == 'Q': gate()
    for i in range(i00, NS - 2):
        p = PR + 8*(i % cfg.NP); q = QR + 8*(i % cfg.NQ)
        stamp(a, cfg, f'g{i}', 'G')
        if i == cfg.t3: post(k3)
        for mt in range(2):
            for nt in range(2):
                d = ACC2 + 32*mt + 16*nt
                a(f'{MF32} {vr(d,16)}, {vr(p+4*mt,4)}, {vr(q+4*nt,4)}, {vr(d,16) if i else 0}')
                if nt == 0: loadQ(i + dq, mt)
                else: loadP(i + dp, mt)
        if cfg.stg:
            if i == cfg.plAt: kf_spin(a, vCN, kP, 2)
            if cfg.plAt <= i < cfg.plAt + NPL:
                for hb in range(2): a(f'ds_read_b128 {vr(PR+8*(i-cfg.plAt)+4*hb,4)}, v{vPA} offset:{PST + (i-cfg.plAt)*2048 + 1024*hb}')
    def quad(k, mt, rr): return ACC2 + 32*mt + 16*(k & 1) + 4*(2*(k >> 1) + rr)
    for k in range(1, 4):
        a(f's_xor_b32 s{T0}, s{sW}, {k}'); a(f's_mul_i32 s{T0}, s{T0}, 12288'); a(f's_add_u32 s{T0}, s{T0}, {RED}'); a(f'v_add_u32 v{4+k}, s{T0}, v{vL16}')
    def redw(k, mt, rr): a(f'ds_write_b128 v{4+k}, {vr(quad(k,mt,rr),4)} offset:{(k-1)*4096 + (2*mt+rr)*1024}')
    for mt in range(2):
        for i in (NS - 2, NS - 1): mf2(i, mt, 1)
    mf2(NS - 2, 0, 0); mf2(NS - 1, 0, 0)
    for k in (1, 3):
        for rr in range(2): redw(k, 0, rr)
    mf2(NS - 2, 1, 0)
    redw(1, 1, 0); redw(1, 1, 1)
    mf2(NS - 1, 1, 0)
    redw(3, 1, 0); redw(3, 1, 1); redw(2, 0, 0); redw(2, 0, 1)
    stamp(a, cfg, 'g2end', 'G')
    vRA, vAA, vGA, vO = 2, 3, 8, 9
    a(f's_mul_i32 s{T0}, s{sW}, 12288'); a(f's_add_u32 s{T0}, s{T0}, {RED}'); a(f'v_add_u32 v{vRA}, s{T0}, v{vL16}')
    a(f'v_and_b32 v10, 31, v1'); a(f's_and_b32 s{T0}, s{sW}, 1'); a(f's_lshl_b32 s{T0}, s{T0}, 5'); a(f'v_add_u32 v10, s{T0}, v10')
    a(f'v_lshrrev_b32 v11, 5, v1'); a(f's_lshr_b32 s{T0}, s{sW}, 1'); a(f's_lshl_b32 s{T0}, s{T0}, 2'); a(f'v_add_u32 v11, s{T0}, v11')
    a(f'v_lshlrev_b32 v{vGA}, 2, v10'); a(f'v_add_u32 v{vGA}, {GL}, v{vGA}')
    a(f'v_bfe_u32 v13, v10, 1, 3'); a('v_xor_b32 v13, v13, v11'); a(f'v_lshlrev_b32 v{vAA}, 7, v10'); a(f'v_lshl_add_u32 v{vAA}, v13, 4, v{vAA}'); a(f'v_add_u32 v{vAA}, {FB}, v{vAA}')
    a(f'v_xor_b32 v13, 32, v{vAA}')
    a(f'v_lshlrev_b32 v{vO}, 15, v10'); a(f'v_lshl_add_u32 v{vO}, v11, 7, v{vO}')
    a(f's_lshl_b32 s{T1}, s{sG0}, 10'); a(f's_lshl_b32 s{T0}, s{sJ}, 4'); a(f's_add_u32 s{T1}, s{T1}, s{T0}')
    redw(2, 1, 0); redw(2, 1, 1)
    enc_spin(a, cfg, 'G')
    a.wait(lg=0); a('s_barrier')
    stamp(a, cfg, 'fbar', 'G')
    RD = PR
    for k in range(1, 4):
        for mq in range(4): a(f'ds_read_b128 {vr(RD+16*(k-1)+4*mq,4)}, v{vRA} offset:{(k-1)*4096 + mq*1024}')
    AA = PR + 48
    a(f'ds_read_b128 {vr(AA,4)}, v{vAA}'); a(f'ds_read_b128 {vr(AA+4,4)}, v13'); a(f'ds_read_b32 v14, v{vGA}')
    for k in range(1, 4):
        for mt in range(2):
            for rr in range(2):
                for pp in range(2):
                    d = quad(0, mt, rr) + 2*pp; s_ = RD + 16*(k-1) + 4*(2*mt+rr) + 2*pp
                    a(f'v_pk_add_f32 {vr(d,2)}, {vr(d,2)}, {vr(s_,2)}')
    U = PR + 56
    for rr in range(2):
        for k in range(4):
            lo, hi = U + 2*k, U + 2*k + 1
            b0, b1 = quad(0, 0, rr) + k, quad(0, 1, rr) + k
            a(f'v_lshlrev_b32 v{lo}, 16, v{AA+4*rr+k}'); a(f'v_and_b32 v{hi}, 0xffff0000, v{AA+4*rr+k}')
            a(f'v_sub_f32 v{lo}, v{lo}, v{b0}'); a(f'v_sub_f32 v{hi}, v{hi}, v{b1}')
            a(f'v_fmac_f32 v{b0}, v14, v{lo}'); a(f'v_fmac_f32 v{b1}, v14, v{hi}')
        for k in range(4): a(f'v_cvt_pk_bf16_f32 v{U+8+4*rr+k}, v{quad(0,0,rr)+k}, v{quad(0,1,rr)+k}')
        a(f'buffer_store_dwordx4 {vr(U+8+4*rr,4)}, v{vO}, {sr(SE,4)}, s{T1} offen offset:{256*rr}')
    stamp(a, cfg, 'end', 'G')
    if cfg.stamps and 'end2' in cfg.gst:
        a('s_waitcnt vmcnt(0)'); stamp(a, cfg, 'end2', 'G')
    if cfg.stamps:
        stamp(a, cfg, 'c_end', 'G'); stampv(a, cfg, 'retry', 'G', sU0); srd(a, SA, sWS, WSZ); stamps_out(a, cfg, 10, SA)
    a('s_endpgm')

def cs_pairs(a, base, step, mults, tmp, outs):
    for g in range(len(mults)//4):
        an, c, s = tmp, tmp + 4, tmp + 8
        for k in range(4):
            m = mults[4*g+k]
            if m: a(f'v_fmamk_f32 v{an+k}, v{step}, {f32(float(m))}, v{base}')
        src = lambda k: an + k if mults[4*g+k] else base
        for k in range(4): a(f'v_cos_f32 v{c+k}, v{src(k)}')
        for k in range(4): a(f'v_sin_f32 v{s+k}, v{src(k)}')
        L = [(kind, dst, p) for p in range(2) for kind, dst in outs(2*g+p)]
        L.sort(key=lambda x: x[0] != 'c')
        for kind, dst, p in L:
            if kind == 'c': a(f'v_cvt_pk_bf16_f32 v{dst}, v{c+2*p}, v{c+2*p+1}')
            elif kind == 's': a(f'v_cvt_pk_bf16_f32 v{dst}, v{s+2*p}, v{s+2*p+1}')
            else: a(f'v_cvt_pk_bf16_f32 v{dst}, -v{s+2*p}, -v{s+2*p+1}')

def gen_F(a, cfg):
    a0 = a
    vN, vQ, vL16, vCN, vONE = 2, 3, 12, 4, 5
    vE2, vMA, vMB, vNf, vQf, vN4 = 6, 7, 8, 9, 10, 15
    M1, M2, M4, M5, N8, N64, WF, IN, WK, PK = 16, 48, 72, 96, 128, 152, 184, 200, 232, 248
    sB, sK1, sROT, sPAIR = 58, 59, 60, 61
    mK0, mK5, mK04 = 62, 64, 66
    sWD = 68; sW2D = 48
    sE2, sE1, sIH, sKH = 70, 72, 74, 75
    a0.label('L_F')
    a('s_barrier')
    t = WK
    a(f'v_and_b32 v{vN}, 15, v1'); a(f'v_lshrrev_b32 v{vQ}, 4, v1')
    a(f's_load_dwordx2 {sr(sNON,2)}, {sr(sWS,2)}, {NONCE}')
    srd(a, SA, sWS, WSZ)
    a(f'v_mov_b32 v{vONE}, 1')
    if 'G' in cfg.abl:
        lds_arrive(a, vCN, cGO, vONE); a(f'v_add_u32 v14, s{sW}, v{vCN}'); a(f'ds_write_b8 v14, v{vONE} offset:{4*kS}'); a.wait(lg=0); nonce(a); a('s_branch L_FQ')
    LW, LM, P0, P1 = M4, 188, 168, 176
    vSG, vAL, vAU, vMA_, vMB_, vT2 = M5, M5 + 3, M5 + 4, M5 + 5, M5 + 6, M5 + 7
    vWD, vMD, vD2 = 192, 193, 194
    mZ, mP = 76, 78
    def perm_addr(a):
        vK, vC = t, t + 1
        a(f's_cmp_eq_u32 s{sG0}, 0'); a(f's_cselect_b64 {sr(mZ,2)}, -1, 0')
        a(f'v_lshrrev_b32 v{vK}, 3, v1'); a(f'v_and_b32 v{t+2}, 7, v1'); a(f'v_lshl_add_u32 v{vC}, v{t+2}, 3, v{vK}')
        a(f's_lshl_b32 s{T2}, s{sW}, 6'); a(f'v_add_u32 v{vC}, s{T2}, v{vC}')
        a(f'v_mul_u32_u24 v{vWD}, {cfg.SW}, v{vK}'); a(f'v_lshl_add_u32 v{vWD}, v{t+2}, 4, v{vWD}'); a(f's_lshl_b32 s{T1}, s{sW}, 7'); a(f'v_add_u32 v{vWD}, s{T1}, v{vWD}')
        a(f'v_cmp_eq_u32 vcc, 0, v{vC}'); a(f'v_mov_b32 v{t+7}, {OOB}'); a(f'v_cndmask_b32 v{vWD}, v{vWD}, v{t+7}, vcc')
        a(f's_lshl_b32 s{T0}, s{sG0}, 1'); a(f's_and_b32 s{T0}, s{T0}, 15'); a(f's_sub_u32 s{T1}, 16, s{T0}'); a(f's_and_b32 s{T1}, s{T1}, 15')
        a(f's_add_u32 s{T0}, s{T0}, {FA}'); a(f's_add_u32 s{T1}, s{T1}, {FA + 8*WP + 512}')
        a(f'v_cmp_lt_u32 vcc, 4, v{vK}'); a(f's_and_b64 vcc, vcc, {sr(mZ,2)}'); a(f'v_mov_b32 v{t+3}, {16*WP}'); a(f'v_cndmask_b32 v{t+4}, 0, v{t+3}, vcc')
        a(f'v_lshlrev_b32 v{vC}, 1, v{vC}'); a(f'v_add3_u32 v{vAL}, v{vC}, s{T0}, v{t+4}')
        a(f'v_sub_u32 v{vAU}, s{T1}, v{vC}'); a(f'v_add_u32 v{vAU}, v{vAU}, v{t+4}')
        a(f'v_and_b32 v{t+5}, 3, v{vK}'); a(f'v_cmp_eq_u32 vcc, 0, v{t+5}'); a(f's_and_b64 {sr(mP,2)}, vcc, {sr(mZ,2)}')
        a(f'v_add_u32 v{t+5}, v{vAL}, v{t+3}'); a(f'v_cndmask_b32 v{vAU}, v{vAU}, v{t+5}, {sr(mP,2)}')
        a(f'v_mov_b32 v{vSG}, 0x80000000'); a(f'v_cndmask_b32 v{vSG}, v{vSG}, 0, {sr(mP,2)}')
        a(f'v_bfe_u32 v{t}, v1, 2, 1'); a(f'v_bfe_u32 v{t+1}, v1, 3, 1'); a(f'v_and_b32 v{t+2}, 3, v1')
        a(f'v_mul_u32_u24 v{t+4}, {16*WP}, v{t}'); a(f'v_cndmask_b32 v{t+4}, 0, v{t+4}, {sr(mZ,2)}')
        a(f'v_cndmask_b32 v{t+5}, v{t}, v{t+1}, {sr(mZ,2)}'); a(f'v_lshlrev_b32 v{t+5}, 9, v{t+5}')
        a(f'v_mul_u32_u24 v{t+6}, {WP}, v{t+2}'); a(f'v_add3_u32 v{t+4}, v{t+4}, v{t+5}, v{t+6}')
        a(f'v_add_u32 v{vMA_}, s{T0}, v{t+4}'); a(f's_sub_u32 s{T1}, s{T1}, 512'); a(f'v_add_u32 v{vMB_}, s{T1}, v{t+4}')
        a(f's_mul_i32 s{T0}, s{sG0}, {8*cfg.SW}'); a(f's_lshl_b32 s{T1}, s{sJ}, 10'); a(f's_add_u32 s{sWD}, s{T0}, s{T1}'); a(f's_add_u32 s{sWD}, s{sWD}, {WB}')
        a(f'v_lshlrev_b32 v{t+4}, 9, v{t}'); a(f'v_add_u32 v{t+4}, s{sWD}, v{t+4}')
        a(f's_lshl_b32 s{T1}, s{sJ}, 4'); a(f's_add_u32 s{T1}, s{T1}, {WBX}'); a(f'v_lshlrev_b32 v{t+5}, 7, v{t}'); a(f'v_add_u32 v{t+5}, s{T1}, v{t+5}')
        a(f'v_cmp_eq_u32 vcc, 0, v{t+1}'); a(f'v_cndmask_b32 v{vMD}, v{t+5}, v{t+4}, vcc'); a(f'v_lshl_add_u32 v{vMD}, v{t+2}, 2, v{vMD}')
        a(f's_cmp_eq_u32 s{sG0}, 0'); a(f's_cselect_b32 s{T1}, 16, 8'); a(f'v_cmp_gt_u32 vcc, s{T1}, v1'); a(f'v_cndmask_b32 v{vMD}, v{t+7}, v{vMD}, vcc')
        a(f'v_bfe_u32 v{t}, v1, 2, 2'); a(f'v_lshlrev_b32 v{vT2}, 10, v{t}'); a(f'v_bfe_u32 v{t}, v1, 1, 1'); a(f'v_lshl_add_u32 v{vT2}, v{t}, 7, v{vT2}')
        a(f'v_and_b32 v{t}, 1, v1'); a(f'v_lshl_add_u32 v{vT2}, v{t}, 3, v{vT2}'); a(f'v_lshl_add_u32 v{vT2}, v{vQ}, 4, v{vT2}')
        a(f's_lshl_b32 s{T0}, s{sW}, 8'); a(f'v_add_u32 v{vT2}, s{T0}, v{vT2}')
        a(f's_mov_b32 s{T1}, {REG}'); a(f'v_mul_lo_u32 v{vD2}, v{vQ}, s{T1}'); a(f'v_and_b32 v{t}, 1, v1'); a(f'v_lshl_add_u32 v{vD2}, v{t}, 10, v{vD2}')
        a(f'v_bfe_u32 v{t}, v1, 1, 3'); a(f'v_lshl_add_u32 v{vD2}, v{t}, 4, v{vD2}'); a(f's_lshl_b32 s{T0}, s{sW}, 7'); a(f'v_add_u32 v{vD2}, s{T0}, v{vD2}')
        a(f's_lshr_b32 s{T2}, s{sTK}, 1'); a(f's_lshl_b32 s{T2}, s{T2}, 11'); a(f's_and_b32 s{T1}, s{sTK}, 1'); a(f's_lshl_b32 s{T1}, s{T1}, 9'); a(f's_add_u32 s{T2}, s{T2}, s{T1}')
        a(f's_add_u32 s{sW2D}, s{T2}, {W2P}'); a(f's_add_u32 s{sW2D+1}, s{sW2D}, {4*REG}')
    def job_r(a):
        kf_spin(a, vCN, kW, IN, sleep=True)
        for up in range(2):
            for ar in range(2):
                for r in range(4): a(f'ds_read_u16 v{LW+8*up+4*ar+r}, v{vAU if up else vAL} offset:{(4*ar+r)*WP}')
            if up == 0:
                for u in range(2):
                    for hf in range(2): a(f'ds_read_b64_tr_b16 {vr(P0+4*u+2*hf,2)}, v{vT2} offset:{FB + 4096*hf + 64*u}')
        for r in range(4): a(f'v_lshl_or_b32 v{P1+r}, v{LW+4+r}, 16, v{LW+r}')
        a(f'ds_read_u16 v{LM}, v{vMA_}'); a(f'ds_read_u16 v{LM+1}, v{vMA_} offset:{4*WP}'); a(f'ds_read_u16 v{LM+2}, v{vMB_}'); a(f'ds_read_u16 v{LM+3}, v{vMB_} offset:{4*WP}')
        for r in range(4):
            a(f'v_lshl_or_b32 v{P1+4+r}, v{LW+12+r}, 16, v{LW+8+r}'); a(f'v_xor_b32 v{P1+4+r}, v{P1+4+r}, v{vSG}')
        for k in range(4): a(f'v_lshlrev_b32 v{LM+k}, 16, v{LM+k}')
        a(f'v_add_f32 v{LM}, v{LM}, v{LM+2}'); a(f'v_sub_f32 v{LM+1}, v{LM+1}, v{LM+3}')
        a(f'v_mul_f32 v{LM}, 0.5, v{LM}'); a(f'v_mul_f32 v{LM+1}, 0.5, v{LM+1}'); a(f'v_cvt_pk_bf16_f32 v{LM}, v{LM}, v{LM+1}')
    mark = {}
    def job_w(a):
        a(f's_cmp_ge_u32 s{sTK}, 172'); h = a.skip_begin('s_cbranch_scc1')
        for u in range(2): a(f'buffer_store_dwordx4 {vr(P0+4*u,4)}, v{vD2}, {sr(SA,4)}, s{sW2D+u} offen sc1')
        a.skip_end(h, drop=True)
        mark['w'] = len(a.vq)
    def job_b(a):
        a(f'buffer_store_dwordx4 {vr(P1,4)}, v{vWD}, {sr(SA,4)}, s{sWD} offen sc1')
        a(f'buffer_store_dwordx4 {vr(P1+4,4)}, v{vWD}, {sr(SA,4)}, s{sWD} offen offset:512 sc1')
        a(f's_cmp_lg_u32 s{sW}, 3'); h = a.skip_begin('s_cbranch_scc1')
        a(f'buffer_store_dword v{LM}, v{vMD}, {sr(SA,4)}, 0 offen sc1')
        a.skip_end(h, drop=True)
    def job_c(a):
        if not cfg.clrF: return
        for k in range(4): a(f'v_mov_b32 v{P1+8+k}, -1')
        for tt in range(2): a(f'buffer_store_dwordx4 {vr(P1+8,4)}, v{vE2}, {sr(SA,4)}, s{sE2+tt} offen sc1')
    def job_h(a):
        if cfg.hold: a(f'v_add_u32 v14, s{sW}, v{vCN}'); a(f'ds_write_b8 v14, v{vONE} offset:{4*kS}')
        stamp(a, cfg, 'wiss', 'F')
    def signal(a, base, stride, cnt, younger):
        f0 = WK
        a(f'v_mov_b32 v{f0}, s{sNON}'); a(f'v_mov_b32 v{f0+1}, s{sNON+1}'); a(f'v_mov_b32 v{f0+2}, 0')
        a(f's_mul_i32 s{T0}, s2, {stride}'); a(f's_add_u32 s{T0}, s{T0}, {base}')
        a(f's_waitcnt vmcnt({younger})')
        a('s_mov_b64 exec, 1'); a(f'ds_add_rtn_u32 v{f0+3}, v{vCN}, v{vONE} offset:{cnt}')
        a(f'v_readfirstlane_b32 s{T1}, v{f0+3}')
        a(f's_cmp_lg_u32 s{T1}, 3'); h = a.skip_begin('s_cbranch_scc1')
        a(f'buffer_store_dwordx2 {vr(f0,2)}, v{f0+2}, {sr(SA,4)}, s{T0} offen sc1')
        a.skip_end(h, drop=True)
        a('s_mov_b64 exec, -1')
    def poll(a, base, stride, cnt, name, pr):
        lgo = a.lab('go'); lp = a.lab('poll')
        a(f's_mul_i32 s{T0}, s{sW}, {64*stride}'); a(f's_add_u32 s{T0}, s{T0}, {base}'); a(f's_mov_b32 s{T1}, 0'); a(f'v_mul_u32_u24 v{pr+2}, {stride}, v1')
        a.label(lp)
        a(f'buffer_load_dwordx2 {vr(pr,2)}, v{pr+2}, {sr(SA,4)}, s{T0} offen sc1')
        a('s_waitcnt vmcnt(0)')
        a(f'v_xor_b32 v{pr}, s{sNON}, v{pr}'); a(f'v_xor_b32 v{pr+1}, s{sNON+1}, v{pr+1}'); a(f'v_or_b32 v{pr}, v{pr}, v{pr+1}')
        a(f'v_cmp_ne_u32 vcc, 0, v{pr}')
        a(f's_cbranch_vccz {lgo}')
        a(f's_sleep {cfg.slpA}'); a(f's_add_u32 s{T1}, s{T1}, 1'); a(f's_cmp_lt_u32 s{T1}, {cfg.spin}'); a(f's_cbranch_scc1 {lp}')
        a.label(lgo)
        lds_arrive(a, vCN, cnt, vONE)
        stampv(a, cfg, name, 'F', T1)
    F64, F8 = 128, 144
    a(f's_and_b32 s{sIH}, s{sW}, 1'); a(f's_lshr_b32 s{sKH}, s{sW}, 1')
    a(f'v_cvt_f32_u32 v{vNf}, v{vN}'); a(f'v_cvt_f32_u32 v{vQf}, v{vQ}')
    a(f's_lshl_b32 s{T0}, s{sKH}, 4'); a(f'v_add_u32 v{t}, s{T0}, v{vN}'); a(f'v_cmp_eq_u32 {sr(mK0,2)}, 0, v{t}')
    a(f'v_cvt_f32_u32 v{t}, v{t}'); a(f'v_mul_f32 v{t}, {f32(1/64)}, v{t}'); a(f'v_mul_f32 v{t+1}, {f32(8.0)}, v{vQf}'); a(f'v_mul_f32 v{t+1}, v{t+1}, v{t}')
    cs_pairs(a, t+1, t, [32*st + e for st in range(2) for e in range(8)], t+2,
             lambda pi: [('c', F64 + 8*(pi//4) + pi % 4), ('m', F64 + 8*(pi//4) + 4 + pi % 4)])
    a(f'v_mov_b32 v{t}, 0xbf803f80')
    for st in range(2):
        for k in range(4): a(f'v_cndmask_b32 v{F64+8*st+4+k}, v{F64+8*st+4+k}, v{t}, {sr(mK0,2)}')
    a(f'v_and_b32 v{t}, 1, v1'); a(f'v_lshlrev_b32 v{t}, 4, v{t}'); a(f'v_mov_b32 v{t+1}, 0xffff'); a(f'v_lshlrev_b32 v{t}, v{t}, v{t+1}')
    a(f'v_and_b32 v{t+1}, 2, v1'); a(f'v_cmp_eq_u32 vcc, 0, v{t+1}')
    a(f'v_lshrrev_b32 v{vN4}, 2, v{vN}'); a(f'v_cvt_f32_u32 v{vN4}, v{vN4}'); a(f'v_mul_f32 v{vN4}, {f32(0.125)}, v{vN4}')
    a(f'v_cndmask_b32 v{vMA}, 0, v{t}, vcc'); a(f'v_xor_b32 v{vMB}, v{vMA}, v{t}')
    def dft8(a, t, emit):
        a(f'v_add_f32 v{t}, 0.5, v{vN4}'); a(f'v_add_f32 v{t+1}, 4.0, v{vQf}')
        for i in range(2):
            for k in range(2): a(f'v_mul_f32 v{t+2+2*i+k}, v{t if i else vN4}, v{t+1 if k else vQf}')
        for u in range(4): a(f'v_cos_f32 v{t+6+u}, v{t+2+u}')
        for u in range(4): a(f'v_sin_f32 v{t+10+u}, v{t+2+u}')
        for u in range(4): a(f'v_cvt_pk_bf16_f32 v{t+6+u}, v{t+6+u}, v{t+6+u}')
        for u in range(4): a(f'v_cvt_pk_bf16_f32 v{t+2+u}, -v{t+10+u}, -v{t+10+u}')
        for u in range(4): a(f'v_cvt_pk_bf16_f32 v{t+10+u}, v{t+10+u}, v{t+10+u}')
        for u in range(4):
            for kind, src in (('c', t+6+u), ('m', t+2+u), ('s', t+10+u)):
                d = emit(u >> 1, u & 1, kind)
                a(f'v_and_b32 v{d}, v{src}, v{vMA}'); a(f'v_and_b32 v{d+1}, v{src}, v{vMB}')
    a(f's_mul_i32 s{T0}, s{sIH}, {f32(0.5)}'); a(f'v_add_f32 v{t}, s{T0}, v{vN4}'); a(f'v_add_f32 v{t+1}, 4.0, v{vQf}')
    a(f'v_mul_f32 v{t+2}, v{t}, v{vQf}'); a(f'v_mul_f32 v{t+3}, v{t}, v{t+1}')
    for u in range(2): a(f'v_cos_f32 v{t+4+u}, v{t+2+u}')
    for u in range(2): a(f'v_sin_f32 v{t+6+u}, v{t+2+u}')
    for u in range(2): a(f'v_cvt_pk_bf16_f32 v{t+4+u}, v{t+4+u}, v{t+4+u}')
    for u in range(2): a(f'v_cvt_pk_bf16_f32 v{t+2+u}, -v{t+6+u}, -v{t+6+u}')
    for u in range(2): a(f'v_cvt_pk_bf16_f32 v{t+6+u}, v{t+6+u}, v{t+6+u}')
    for u in range(2):
        for o_, src in ((0, t+4+u), (8, t+2+u), (4, t+6+u)):
            a(f'v_and_b32 v{F8+o_+2*u}, v{src}, v{vMA}'); a(f'v_and_b32 v{F8+o_+2*u+1}, v{src}, v{vMB}')
    stamp(a, cfg, 'con1', 'F')
    vTR, vE1 = 11, 13
    a(f'v_lshlrev_b32 v{t}, 3, v{vQ}'); a(f'v_bfe_u32 v{t+1}, v1, 2, 2'); a(f'v_add_u32 v{t}, v{t}, v{t+1}'); a(f'v_mul_u32_u24 v{t}, {XP}, v{t}')
    a(f'v_and_b32 v{t+1}, 3, v1'); a(f'v_lshl_add_u32 v{t}, v{t+1}, 7, v{t}')
    a(f's_lshl_b32 s{T0}, s{sJ}, 4'); a(f'v_add_u32 v{vTR}, s{T0}, v{t}')
    a(f'v_lshrrev_b32 v{t}, 2, v{vN}'); a(f'v_and_b32 v{t+1}, 2, v{vQ}'); a(f'v_lshl_add_u32 v{t}, v{t}, 3, v{t+1}')
    a(f's_lshl_b32 s{T0}, s{sKH}, 5'); a(f's_lshl_b32 s{T1}, s{sIH}, 2'); a(f's_add_u32 s{T0}, s{T0}, s{T1}'); a(f'v_add_u32 v{t}, s{T0}, v{t}')
    a(f'v_mul_u32_u24 v{t}, {cfg.S1}, v{t}'); a(f'v_and_b32 v{t+1}, 3, v{vN}'); a(f'v_lshl_add_u32 v{t}, v{t+1}, 5, v{t}')
    a(f'v_and_b32 v{t+1}, 1, v{vQ}'); a(f'v_lshl_add_u32 v{vE1}, v{t+1}, 4, v{t}')
    a(f's_lshl_b32 s{T0}, s{sG0}, 3'); a(f's_add_u32 s{sB}, s{T0}, s{sJ}')
    a(f's_lshl_b32 s{T0}, s{sB}, 7'); a(f's_add_u32 s{sE1}, s{T0}, {E1}'); a(f's_add_u32 s{sE1+1}, s{sE1}, {cfg.S1}')
    a(f'v_cmp_eq_u32 vcc, 0, v{vQ}'); a(f's_and_b64 {sr(mK04,2)}, vcc, {sr(mK0,2)}'); a(f's_andn2_b64 {sr(mK5,2)}, {sr(mK0,2)}, vcc')
    a(f's_cmp_eq_u32 s{sIH}, 0'); a(f's_cselect_b64 {sr(mK5,2)}, 0, {sr(mK5,2)}')
    perm_addr(a)
    a(f's_cmp_eq_u32 s{sG0}, 0'); a(f's_cselect_b32 s{T0}, 1, 0')
    a(f's_and_b32 s{T1}, s{sJ}, 3'); a(f's_cmp_eq_u32 s{T1}, 0'); a(f's_cselect_b32 s{sPAIR}, s{T0}, 0')
    a(f's_cmp_gt_u32 s{sJ}, 4'); a(f's_cselect_b32 s{T1}, s{T0}, 0')
    a(f's_mul_i32 s{sROT}, s{T1}, {f32(0.25)}')
    a(f's_lshr_b32 s{T2}, s{sW}, 1')
    a(f's_and_b32 s{T2}, s{T2}, s{sPAIR}'); a(f's_or_b32 s{T1}, s{T1}, s{T2}'); a(f's_lshl_b32 s{T1}, s{T1}, 5')
    a(f's_add_u32 s{sK1}, s{sG0}, s{T1}')
    nonce(a)
    t = IN
    def con_M1(a):
        if 'f' in cfg.abl: return
        a(f's_lshl_b32 s{T0}, s{sPAIR}, 1'); a(f's_andn2_b32 s{T0}, s{sW}, s{T0}'); a(f's_lshl_b32 s{T0}, s{T0}, 7'); a(f's_add_u32 s{T0}, s{T0}, s{sJ}')
        a(f'v_lshlrev_b32 v{t}, 3, v{vN}'); a(f'v_add_u32 v{t}, s{T0}, v{t}'); a(f'v_cvt_f32_u32 v{t}, v{t}'); a(f'v_mul_f32 v{t}, {f32(1/512)}, v{t}')
        a(f'v_mul_f32 v{t+1}, 4.0, v{vQf}'); a(f'v_mul_f32 v{t+1}, v{t+1}, v{t}')
        cs_pairs(a, t+1, t, [16*sg + e for sg in range(4) for e in range(4)], t+2,
                 lambda pi: [('c', M1 + 8*(pi//2) + pi % 2), ('s', M1 + 8*(pi//2) + 2 + pi % 2), ('m', M1 + 8*(pi//2) + 4 + pi % 2), ('c', M1 + 8*(pi//2) + 6 + pi % 2)])
    def con_M2(a):
        if 'f' in cfg.abl: return
        for t2 in range(2):
            a(f'v_lshlrev_b32 v{t}, 6, v{vN}'); a(f's_add_u32 s{T0}, s{sK1}, {1024*t2}'); a(f'v_add_u32 v{t}, s{T0}, v{t}'); a(f'v_cvt_f32_u32 v{t}, v{t}'); a(f'v_mul_f32 v{t}, {f32(1/2048)}, v{t}')
            a(f'v_mul_f32 v{t+1}, 4.0, v{vQf}'); a(f'v_mul_f32 v{t+1}, v{t+1}, v{t}')
            cs_pairs(a, t+1, t, [16*tt + r for tt in range(2) for r in range(4)], t+2,
                     lambda pi: [('c', M2 + 12*t2 + pi), ('s', M2 + 12*t2 + 4 + pi), ('m', M2 + 12*t2 + 8 + pi)])
    def con_M4(a):
        if 'f' in cfg.abl: return
        a(f'v_lshlrev_b32 v{t+14}, 8, v{vQ}'); a(f'v_add_u32 v{t+14}, s{sK1}, v{t+14}'); a(f'v_cvt_f32_u32 v{t+14}, v{t+14}'); a(f'v_mul_f32 v{t+14}, {f32(1/64)}, v{t+14}')
        for tt in range(2):
            a(f'v_add_f32 v{t}, {f32(16.0*tt)}, v{vNf}'); a(f'v_mul_f32 v{t}, {f32(1/32)}, v{t}')
            a(f'v_fma_f32 v{t+1}, v{t}, v{t+14}, s{sROT}')
            cs_pairs(a, t+1, t, [16*t2 + r for t2 in range(2) for r in range(4)], t+2,
                     lambda pi: [('c', M4 + 12*tt + pi), ('s', M4 + 12*tt + 4 + pi), ('m', M4 + 12*tt + 8 + pi)])
    def con_M5(a):
        if 'f' in cfg.abl: return
        a(f's_lshl_b32 s{T0}, s{sW}, 4'); a(f'v_add_u32 v{t}, s{T0}, v{vN}'); a(f'v_cvt_f32_u32 v{t}, v{t}'); a(f'v_mul_f32 v{t}, {f32(1/64)}, v{t}')
        a(f'v_lshlrev_b32 v{t+1}, 5, v{vQ}'); a(f'v_add_u32 v{t+1}, s{sJ}, v{t+1}'); a(f'v_cvt_f32_u32 v{t+1}, v{t+1}'); a(f'v_mul_f32 v{t+1}, {f32(0.125)}, v{t+1}'); a(f'v_mul_f32 v{t+1}, v{t+1}, v{t}')
        cs_pairs(a, t+1, t, [16*sg + e for sg in range(4) for e in range(4)], t+2,
                 lambda pi: [('c', M5 + 8*(pi//2) + pi % 2), ('m', M5 + 8*(pi//2) + 2 + pi % 2), ('s', M5 + 8*(pi//2) + 4 + pi % 2), ('c', M5 + 8*(pi//2) + 6 + pi % 2)])
    conj = {'1': con_M1, '2': con_M2, '4': con_M4, '5': con_M5}
    for c in cfg.pre: conj[c](a)
    if cfg.prioF: a(f's_setprio {cfg.prioF}')
    stamp(a, cfg, 'perm', 'F')
    stamp(a, cfg, 'preX', 'F')
    kf_spin(a, vCN, kX, IN, sleep=True)
    stamp(a, cfg, 'X', 'F')
    assert not cfg.pre
    DA, C1, PB, BM, C2, Z, O = IN, M1, M2, M2 + 16, WK, IN, IN + 16
    for ih in range(2):
        for st in range(2):
            for tt in range(2):
                for hf in range(2):
                    a(f'ds_read_b64_tr_b16 {vr(DA+16*ih+8*st+4*tt+2*hf,2)}, v{vTR} offset:{XT + (32*st+4*hf)*XP + 512*tt + 8*ih}')
    for ih in range(2):
        for st in range(2):
            for tt in range(2):
                for c in range(2):
                    d = C1 + 16*ih + 8*c + 4*tt
                    a(f'{MF16} {vr(d,4)}, {vr(DA+16*ih+8*st+4*tt,4)}, {vr(F64+8*st+4*c,4)}, {vr(d,4) if st else 0}')
    cc, ss, mm = F8, F8 + 4, F8 + 8
    for ih in range(2):
        for k in range(8): a(f'v_cvt_pk_bf16_f32 v{PB+8*ih+k}, v{C1+16*ih+2*k}, v{C1+16*ih+2*k+1}')
        for k in range(4): a(f'v_cndmask_b32 v{BM+4*ih+k}, v{PB+8*ih+4+k}, 0, {sr(mK0,2)}')
        a(f'{MF16} {vr(C2+8*ih,4)}, {vr(cc,4)}, {vr(PB+8*ih,4)}, 0')
        a(f'{MF16} {vr(C2+8*ih+4,4)}, {vr(mm,4)}, {vr(PB+8*ih,4)}, 0')
        a(f'{MF16} {vr(Z+8*ih,4)}, {vr(cc,4)}, {vr(PB+8*ih+4,4)}, 0')
        a(f'{MF16} {vr(Z+8*ih+4,4)}, {vr(mm,4)}, {vr(PB+8*ih+4,4)}, 0')
        a(f'{MF16} {vr(C2+8*ih,4)}, {vr(ss,4)}, {vr(BM+4*ih,4)}, {vr(C2+8*ih,4)}')
        a(f'{MF16} {vr(C2+8*ih+4,4)}, {vr(cc,4)}, {vr(BM+4*ih,4)}, {vr(C2+8*ih+4,4)}')
    for ih in range(2):
        for k in range(4): a(f'v_cvt_pk_bf16_f32 v{PK+4*ih+k}, v{Z+8*ih+2*k}, v{Z+8*ih+2*k+1}')
        for k in range(4): a(f'v_cvt_pk_bf16_f32 v{O+4*ih+k}, v{C2+8*ih+2*k}, v{C2+8*ih+2*k+1}')
        for k in range(2): a(f'v_cndmask_b32 v{O+4*ih+2+k}, v{O+4*ih+2+k}, v{PK+4*ih+k}, {sr(mK04,2)}')
        for k in range(4): a(f'v_cndmask_b32 v{O+4*ih+k}, v{O+4*ih+k}, v{PK+4*ih+k}, {sr(mK5,2)}')
        for k in range(4): a(f'v_or_b32 v{O+4*ih+k}, 1, v{O+4*ih+k}')
    for k in range(4): a(f'v_permlane16_swap_b32 v{O+k}, v{O+4+k}')
    def job_E(a):
        for t2 in range(2): a(f'buffer_store_dwordx4 {vr(O+4*t2,4)}, v{vE1}, {sr(SA,4)}, s{sE1+t2} offen sc1', tag='e1')
    def job_d(a):
        stamp(a, cfg, 'pred', 'F'); kf_spin(a, vCN, kD, IN, sleep=True); stamp(a, cfg, 'd', 'F')
    stamp(a, cfg, 'fft1', 'F')
    HB, XS = N64, N64 + 16
    def fixups(a):
        t = IN + 4
        a(f's_cmp_eq_u32 s{sPAIR}, 0'); h = a.skip_begin('s_cbranch_scc1')
        a(f's_cmp_lg_u32 s{sJ}, 0'); h2 = a.skip_begin('s_cbranch_scc1')
        a(f's_and_b32 s{T0}, s{sW}, 1'); a(f'v_or_b32 v{t}, s{T0}, v{vN}'); a(f'v_cmp_eq_u32 vcc, 0, v{t}'); a(f'v_mov_b32 v{t}, 0xbf803f80')
        for sg in range(4):
            for k in range(2): a(f'v_cndmask_b32 v{M1+8*sg+4+k}, v{M1+8*sg+4+k}, v{t}, vcc')
        a(f'v_cmp_eq_u32 vcc, 0, v{vQ}'); a(f'v_mov_b32 v{t+2}, 0xffff')
        a(f'v_mov_b32 v{t}, 0x3f00'); a(f'v_bfi_b32 v{t}, v{t+2}, v{t}, v{M5}'); a(f'v_cndmask_b32 v{M5}, v{M5}, v{t}, vcc')
        a(f'v_and_b32 v{t}, 1, v{vN}'); a(f'v_lshlrev_b32 v{t}, 15, v{t}'); a(f'v_or_b32 v{t}, 0x3f00, v{t}'); a(f'v_bfi_b32 v{t}, v{t+2}, v{t}, v{M5+2}'); a(f'v_cndmask_b32 v{M5+2}, v{M5+2}, v{t}, vcc')
        a.skip_end(h2)
        for sg in range(2):
            for k in range(4):
                a(f'v_mov_b32 v{M5+8*(sg+2)+4+k}, v{M5+8*sg+k}'); a(f'v_mov_b32 v{M5+8*(sg+2)+k}, 0'); a(f'v_mov_b32 v{M5+8*sg+4+k}, 0')
        a(f's_cmp_ge_u32 s{sW}, 2'); a(f's_cselect_b64 vcc, -1, 0')
        for sg in range(4):
            for k in range(2):
                for o in (0, 4):
                    a(f'v_cndmask_b32 v{M1+8*sg+o+2+k}, 0, v{M1+8*sg+o+k}, vcc'); a(f'v_cndmask_b32 v{M1+8*sg+o+k}, v{M1+8*sg+o+k}, 0, vcc')
        a.skip_end(h)
    vIN, vWB, sI, sWb, WR = 13, 11, 72, 74, N8
    def job_k(a):
        a(f'v_lshrrev_b32 v{vE2}, 1, v{vQ}'); a(f'v_lshlrev_b32 v{vE2}, 7, v{vE2}'); a(f'v_lshl_add_u32 v{vE2}, v{vN}, 10, v{vE2}'); a(f'v_and_b32 v{vIN}, 1, v{vQ}'); a(f'v_lshl_add_u32 v{vE2}, v{vIN}, 4, v{vE2}')
        a(f's_lshr_b32 s{T0}, s{sG0}, 2'); a(f's_lshl_b32 s{T0}, s{T0}, 3'); a(f's_add_u32 s{T0}, s{T0}, s{sJ}'); a(f's_mul_i32 s{T0}, s{T0}, {cfg.S1}')
        a(f's_and_b32 s{T1}, s{sG0}, 3'); a(f's_lshl_b32 s{T1}, s{T1}, 5'); a(f's_add_u32 s{T0}, s{T0}, s{T1}'); a(f's_lshl_b32 s{T1}, s{sW}, 8'); a(f's_add_u32 s{T0}, s{T0}, s{T1}')
        a(f's_add_u32 s{sE2}, s{T0}, {E1}'); a(f's_add_u32 s{sE2+1}, s{sE2}, 16384')
        a(f'v_lshlrev_b32 v{vWB}, 10, v{vQ}'); a(f'v_lshl_add_u32 v{vWB}, v{vN}, 4, v{vWB}')
        a(f's_mul_i32 s{T0}, s{sB}, {cfg.SW}'); a(f's_add_u32 s{T0}, s{T0}, s{T1}'); a(f's_add_u32 s{sWb}, s{T0}, {WB}'); a(f's_add_u32 s{sWb+1}, s{sWb}, 4096')
        stamp(a, cfg, 'prepoll', 'F')
        if cfg.pollAt is not None: kf_spin(a, vCN, cfg.pollAt, IN + 4, sleep=True)
        stamp(a, cfg, 'poll', 'F')
    def job_a(a):
        poll(a, FLAGA, cfg.FS, cGO, 'pollsA', IN)
        lds_spin(a, vCN, cGO, 4, IN + 3, sleep=True)
        stamp(a, cfg, 'go', 'F')
    def job_i(a):
        for tt in range(2):
            a(f's_lshl_b32 s{T0}, s{sW}, 11'); a(f's_add_u32 m0, s{T0}, {FA + 1024*tt}')
            a(f'buffer_load_dwordx4 v{vE2}, {sr(SA,4)}, s{sE2+tt} offen sc1 lds', tag='in')
    def job_X(a):
        if 'B' in cfg.ford:
            if 'in' not in mark:
                a.wait_tag('in'); lds_arrive(a, vCN, cF1, vONE); mark['in'] = True
            kf_spin(a, vCN, kM, IN + 4, sleep=True); stamp(a, cfg, 'poll2', 'F')
            poll(a, FLAGA2, cfg.FS2, cGO2, 'pollsA2', IN)
            lds_spin(a, vCN, cGO2, 4, IN + 3, sleep=True)
            stamp(a, cfg, 'go2', 'F')
    def job_Y(a):
        for t2 in range(2): a(f'buffer_load_dwordx4 {vr(WR+4*t2,4)}, v{vWB}, {sr(SA,4)}, s{sWb+t2} offen sc1')
        a(f's_cmp_lg_u32 s{sB}, 0'); h = a.skip_begin('s_cbranch_scc1')
        a(f'v_lshlrev_b32 v{vWB}, 4, v{vQ}'); a(f's_lshr_b32 s{T0}, s{sW}, 1'); a(f's_lshl_b32 s{T0}, s{T0}, 7'); a(f's_add_u32 s{T0}, s{T0}, {WBX}')
        for t2 in range(2): a(f'buffer_load_dwordx4 {vr(XS+4*t2,4)}, v{vWB}, {sr(SA,4)}, s{T0} offen offset:{64*t2} sc1')
        a.skip_end(h, drop=True)
    def job_I(a):
        if 'in' not in mark:
            a.wait_tag('in'); lds_arrive(a, vCN, cF1, vONE)
    def job_A(a):
        signal(a, FLAGA, cfg.FS, cFA, 0); stamp(a, cfg, 'flag', 'F')
    def job_B(a):
        signal(a, FLAGA2, cfg.FS2, cFA2, 0); stamp(a, cfg, 'flag2', 'F')
    def unpackW(a, dst, src):
        a(f's_mov_b32 s{T0}, {f32(2.0**-19)}')
        for k in range(8):
            a(f'v_lshlrev_b32 v{dst+2*k}, 16, v{src+k}'); a(f'v_and_b32 v{dst+2*k+1}, 0xffff0000, v{src+k}')
        for k in range(16): a(f'v_mul_f32 v{dst+k}, s{T0}, v{dst+k}')
    jobs = dict(E=job_E, d=job_d, r=job_r, w=job_w, b=job_b, c=job_c, h=job_h, A=job_A, B=job_B, k=job_k, a=job_a, i=job_i, X=job_X, Y=job_Y, I=job_I, g=lambda a: gate_code(a, cfg, 128, WK + 8, WK + 4))
    jobs.update(conj)
    o = cfg.ford
    assert set(cfg.pre) <= set('12') and sorted(set('1245') - set(cfg.pre)) == sorted(c for c in o if c in '1245')
    before = lambda x, y: o.index(x) < o.index(y)
    assert all(before(*p) for p in ('rw', 'rb', 'r4', 'r5', 'bY', 'wY', 'cY', 'ka', 'ai', 'iX', 'XY', 'iI', 'ra', 'Aa', 'EA', 'Ek'))
    assert ('B' in o and before('b', 'B') and before('c', 'B') and before('w', 'B') and before('B', 'X')) or (before('b', 'A') and before('c', 'A') and before('w', 'A'))
    assert ('g' in o) == (cfg.gateAt == 'F') and ('g' not in o or all(before(*p) for p in ('wg', 'bg', 'cg', 'gY')))
    for c in o: jobs[c](a)
    fixups(a)
    if not cfg.unpLate: unpackW(a, WF, WR)
    lds_spin(a, vCN, cF1, 4, IN)
    stamp(a, cfg, 'in', 'F')
    for u in range(8): a(f'ds_read_b128 {vr(IN+4*u,4)}, v{vL16} offset:{FA + 1024*u}')
    C1 = WK
    for sg in range(4):
        for tt in range(2):
            for c in range(2):
                d = C1 + 8*c + 4*tt
                a(f'{MF16} {vr(d,4)}, {vr(IN+8*sg+4*tt,4)}, {vr(M1+8*sg+4*c,4)}, {vr(d,4) if sg else 0}')
    for c in range(2):
        for k in range(4): a(f'v_cvt_pk_bf16_f32 v{PK+4*c+k}, v{C1+8*c+2*k}, v{C1+8*c+2*k+1}')
    if cfg.unpLate: unpackW(a, WF, WR)
    lsp = a.lab('special'); ljn = a.lab('join')
    a(f's_cmp_eq_u32 s{sB}, 0'); a(f's_cbranch_scc1 {lsp}')
    snap = (list(a.hist), list(a.vq), list(a.lq))
    Cre, Cim, Yre, Yim = IN, IN + 8, IN + 16, IN + 24
    for t2 in range(2):
        a(f'{MF16} {vr(Cre+4*t2,4)}, {vr(M2+12*t2,4)}, {vr(PK,4)}, 0')
        a(f'{MF16} {vr(Cim+4*t2,4)}, {vr(M2+12*t2+8,4)}, {vr(PK,4)}, 0')
    for t2 in range(2):
        a(f'{MF16} {vr(Cre+4*t2,4)}, {vr(M2+12*t2+4,4)}, {vr(PK+4,4)}, {vr(Cre+4*t2,4)}')
        a(f'{MF16} {vr(Cim+4*t2,4)}, {vr(M2+12*t2,4)}, {vr(PK+4,4)}, {vr(Cim+4*t2,4)}')
    for k in range(8):
        a(f'v_mul_f32 v{Yre+k}, v{Cre+k}, v{WF+2*k}'); a(f'v_mul_f32 v{Yim+k}, v{Cre+k}, v{WF+2*k+1}')
    for k in range(8):
        a(f'v_fma_f32 v{Yre+k}, -v{Cim+k}, v{WF+2*k+1}, v{Yre+k}'); a(f'v_fmac_f32 v{Yim+k}, v{Cim+k}, v{WF+2*k}')
    for k in range(4): a(f'v_cvt_pk_bf16_f32 v{PK+k}, v{Yre+2*k}, v{Yre+2*k+1}')
    for k in range(4): a(f'v_cvt_pk_bf16_f32 v{PK+4+k}, v{Yim+2*k}, v{Yim+2*k+1}')
    a.label(ljn)
    C3 = WK
    for tt in range(2):
        a(f'{MF16} {vr(C3+8*tt,4)}, {vr(PK,4)}, {vr(M4+12*tt,4)}, 0')
        a(f'{MF16} {vr(C3+8*tt+4,4)}, {vr(PK,4)}, {vr(M4+12*tt+4,4)}, 0')
    for tt in range(2):
        a(f'{MF16} {vr(C3+8*tt,4)}, {vr(PK+4,4)}, {vr(M4+12*tt+8,4)}, {vr(C3+8*tt,4)}')
        a(f'{MF16} {vr(C3+8*tt+4,4)}, {vr(PK+4,4)}, {vr(M4+12*tt,4)}, {vr(C3+8*tt+4,4)}')
    a(f's_lshl_b32 s{T0}, s{sW}, 11'); a(f'v_add_u32 v{vIN}, s{T0}, v{vL16}')
    for k in range(8): a(f'v_cvt_pk_bf16_f32 v{PK+k}, v{C3+2*k}, v{C3+2*k+1}')
    for tt in range(2): a(f'ds_write_b128 v{vIN}, {vr(PK+4*tt,4)} offset:{FB + 1024*tt}')
    a.wait(lg=0)
    lds_arrive(a, vCN, cF2, vONE)
    lds_spin(a, vCN, cF2, 4, IN)
    for u in range(8): a(f'ds_read_b128 {vr(IN+4*u,4)}, v{vL16} offset:{FB + 1024*u}')
    C4 = WK
    for sg in range(4):
        for tt in range(2):
            for c in range(2):
                d = C4 + 8*tt + 4*c
                a(f'{MF16} {vr(d,4)}, {vr(M5+8*sg+4*c,4)}, {vr(IN+8*sg+4*tt,4)}, {vr(d,4) if sg else 0}')
    for k in range(8): a(f'v_cvt_pk_bf16_f32 v{PK+k}, v{C4+2*k}, v{C4+2*k+1}')
    for k in range(8): a(f'v_and_b32 v{PK+k}, -2, v{PK+k}')
    for tt in range(2): a(f'buffer_store_dwordx4 {vr(PK+4*tt,4)}, v{vE2}, {sr(SA,4)}, s{sE2+tt} offen sc1', tag='e2')
    stamp(a, cfg, 'e2st', 'F')
    t = IN
    dft8(a, t, lambda dh, st, kind: N8 + 12*dh + 6*st + {'s': 0, 'c': 2, 'm': 4}[kind])
    vL3, vX3 = 11, 13
    a(f'v_cmp_eq_u32 vcc, 0, v{vQ}')
    a(f'v_and_b32 v{t}, 7, v1'); a(f's_lshl_b32 s{T0}, s{sW}, 3'); a(f'v_add_u32 v{t}, s{T0}, v{t}')
    a(f'v_cmp_eq_u32 {sr(mK0,2)}, 0, v{t}'); a(f's_andn2_b64 {sr(mK5,2)}, {sr(mK0,2)}, vcc'); a(f's_mov_b64 {sr(mK04,2)}, vcc')
    a(f'v_lshrrev_b32 v{t}, 2, v{t}'); a(f'v_lshl_add_u32 v{t}, v{t}, 3, v{vQ}'); a(f'v_mul_u32_u24 v{t}, {cfg.S1}, v{t}'); a(f'v_and_b32 v{t+1}, 3, v1'); a(f'v_lshl_add_u32 v{t}, v{t+1}, 5, v{t}')
    a(f'v_bfe_u32 v{t+1}, v1, 3, 1'); a(f'v_lshl_add_u32 v{vL3}, v{t+1}, 4, v{t}')
    a(f's_lshl_b32 s{T0}, s{sB}, 7'); a(f's_add_u32 s{sI}, s{T0}, {E1}'); a(f's_add_u32 s{sI+1}, s{sI}, {4*cfg.S1}')
    a(f'v_lshrrev_b32 v{t}, 1, v{vQ}'); a(f'v_lshlrev_b32 v{t}, 12, v{t}'); a(f'v_and_b32 v{t+1}, 1, v{vQ}'); a(f'v_lshl_add_u32 v{t}, v{t+1}, 8, v{t}')
    a(f'v_lshl_add_u32 v{t}, v{vN}, 4, v{t}'); a(f's_lshl_b32 s{T1}, s{sW}, 9'); a(f'v_add_u32 v{vX3}, s{T1}, v{t}')
    def n64(nt):
        a(f'v_add_f32 v{t}, {f32(16.0*nt)}, v{vNf}'); a(f'v_mul_f32 v{t}, {f32(1/64)}, v{t}')
        a(f'v_mul_f32 v{t+1}, 4.0, v{vQf}'); a(f'v_mul_f32 v{t+1}, v{t+1}, v{t}')
        cs_pairs(a, t+1, t, [16*st + r for st in range(2) for r in range(4)], t+2,
                 lambda pi: [('c', N64 + 8*nt + 4*(pi//2) + pi % 2), ('m', N64 + 8*nt + 4*(pi//2) + 2 + pi % 2)])
    for nt in range(cfg.n64pre): n64(nt)
    a.wait_tag('e2')
    stamp(a, cfg, 'e2dr', 'F')
    D3 = WF
    def ld3():
        for st in range(2): a(f'buffer_load_dwordx4 {vr(D3+4*st,4)}, v{vL3}, {sr(SA,4)}, s{sI+st} offen sc1')
    if cfg.t3 is None:
        if cfg.slp3: a(f's_sleep {cfg.slp3}')
        ld3()
    for nt in range(cfg.n64pre, 4): n64(nt)
    a(f'v_mov_b32 v{t+2}, 0xffff')
    a(f'v_and_b32 v{t}, 1, v{vN}'); a(f'v_lshlrev_b32 v{t}, 15, v{t}'); a(f'v_or_b32 v{t}, 0x3f80, v{t}')
    for nt in range(4):
        a(f'v_bfi_b32 v{t+1}, v{t+2}, v{t}, v{N64+8*nt+2}'); a(f'v_cndmask_b32 v{N64+8*nt+2}, v{N64+8*nt+2}, v{t+1}, {sr(mK04,2)}')
    if cfg.stg:
        assert cfg.gateAt == 'F' and cfg.npre == 22 - NPL
        a(f's_mul_i32 s{T0}, s{sJ}, {REG}'); a(f's_add_u32 s{T0}, s{T0}, {W2P}')
        srd(a, SB, sWS, REG, f's{T0}')
        a(f'v_and_b32 v{IN}, 31, v1'); a(f's_lshr_b32 s{T0}, s{sW}, 1'); a(f's_lshl_b32 s{T0}, s{T0}, 4'); a(f'v_xor_b32 v{IN}, s{T0}, v{IN}')
        a(f'v_lshrrev_b32 v{IN+1}, 5, v1'); a(f'v_lshlrev_b32 v{IN+1}, 9, v{IN+1}'); a(f'v_lshl_add_u32 v{IN}, v{IN}, 4, v{IN+1}')
        a(f's_lshl_b32 s{T0}, s{sW}, 11'); a(f'v_add_u32 v14, s{T0}, v{IN}'); a(f's_mul_i32 s{T1}, s{sW}, {NPL*2048}')
        kf_spin(a, vCN, kQ, IN, sleep=True)
        a(f's_setprio {cfg.prioS}')
        for i in range(NPL):
            a(f's_add_u32 m0, s{T1}, {PST + i*2048}'); a(f's_mov_b32 s{T0}, {(22 - NPL + i)*8192}')
            for hb in range(2): a(f'buffer_load_dwordx4 v14, {sr(SB,4)}, s{T0} offen offset:{1024*hb} {cfg.pfl} lds', tag='pl')
        a(f's_setprio {cfg.prioF}')
        stamp(a, cfg, 'pst', 'F')
        a.wait_tag('pl'); a(f'v_add_u32 v14, s{sW}, v{vCN}'); a(f'ds_write_b8 v14, v{vONE} offset:{4*kP}')
    if cfg.t3 is not None:
        kf_spin(a, vCN, k3, IN, sleep=True); stamp(a, cfg, 'try3', 'F')
        ld3()
    l3 = a.lab('e2poll'); l3ok = a.lab('e2ok')
    a(f's_mov_b32 s{T1}, 0')
    a.wait(vm=0)
    a.label(l3)
    a(f'v_or3_b32 v{IN+8}, v{D3}, v{D3+1}, v{D3+2}'); a(f'v_or3_b32 v{IN+9}, v{D3+3}, v{D3+4}, v{D3+5}')
    a(f'v_or3_b32 v{IN+8}, v{IN+8}, v{D3+6}, v{D3+7}'); a(f'v_or_b32 v{IN+8}, v{IN+8}, v{IN+9}'); a(f'v_and_b32 v{IN+8}, 1, v{IN+8}')
    a(f'v_cmp_ne_u32 vcc, 0, v{IN+8}')
    a(f's_cbranch_vccz {l3ok}')
    if cfg.slpC: a(f's_sleep {cfg.slpC}')
    ld3()
    a('s_waitcnt vmcnt(0)')
    a(f's_add_u32 s{T1}, s{T1}, 1'); a(f's_cmp_lt_u32 s{T1}, {cfg.spin}'); a(f's_cbranch_scc1 {l3}')
    a.label(l3ok)
    stamp(a, cfg, 'e2ok', 'F'); stampv(a, cfg, 'polls', 'F', T1)
    VI, VR = IN + 8, IN + 12
    for k in range(4):
        a(f'v_cndmask_b32 v{VI+k}, v{D3+k}, 0, {sr(mK5,2)}'); a(f'v_cndmask_b32 v{VR+k}, v{D3+4+k}, 0, {sr(mK5,2)}')
    C5 = WK
    for dh in range(2):
        a(f'{MF16} {vr(C5+8*dh,4)}, {vr(D3,4)}, {vr(N8+12*dh+2,4)}, 0')
        a(f'{MF16} {vr(C5+8*dh+4,4)}, {vr(D3+4,4)}, {vr(N8+12*dh+6,4)}, 0')
    for dh in range(2):
        a(f'{MF16} {vr(C5+8*dh,4)}, {vr(VR,4)}, {vr(N8+12*dh+8,4)}, {vr(C5+8*dh,4)}')
        a(f'{MF16} {vr(C5+8*dh+4,4)}, {vr(VI,4)}, {vr(N8+12*dh,4)}, {vr(C5+8*dh+4,4)}')
    for k in range(8): a(f'v_cvt_pk_bf16_f32 v{PK+k}, v{C5+2*k}, v{C5+2*k+1}')
    for dh in range(2): a(f'ds_write_b128 v{vX3}, {vr(PK+4*dh,4)} offset:{FA + 2048*dh}')
    a.wait(lg=0)
    lds_arrive(a, vCN, cF3, vONE)
    a(f's_and_b32 s{T0}, s{sW}, 1'); a(f's_lshl_b32 s{T0}, s{T0}, 12'); a(f's_lshr_b32 s{T1}, s{sW}, 1'); a(f's_lshl_b32 s{T2}, s{T1}, 11'); a(f's_add_u32 s{T0}, s{T0}, s{T2}')
    a(f'v_add_u32 v{vX3}, s{T0}, v{vL16}')
    a(f's_lshl_b32 s{T1}, s{T1}, 2'); a(f'v_add_u32 v{IN+9}, s{T1}, v{vQ}'); a(f'v_lshrrev_b32 v{IN+10}, 1, v{vN}'); a(f'v_xor_b32 v{IN+9}, v{IN+9}, v{IN+10}')
    a(f'v_lshlrev_b32 v{IN+9}, 4, v{IN+9}'); a(f'v_lshl_add_u32 v{IN+9}, v{vN}, 7, v{IN+9}')
    a(f's_and_b32 s{T0}, s{sW}, 1'); a(f's_lshl_b32 s{T0}, s{T0}, 3'); a(f'v_add_u32 v{vL3}, s{T0}, v{IN+9}')
    lds_spin(a, vCN, cF3, 4, IN+8)
    for st in range(2): a(f'ds_read_b128 {vr(IN+4*st,4)}, v{vX3} offset:{FA + 1024*st}')
    for st in range(2):
        for nt in range(4):
            a(f'{MF16} {vr(C5+4*nt,4)}, {vr(IN+4*st,4)}, {vr(N64+8*nt+4*st,4)}, {vr(C5+4*nt,4) if st else 0}')
    for k in range(8): a(f'v_cvt_pk_bf16_f32 v{PK+k}, v{C5+2*k}, v{C5+2*k+1}')
    for nt in range(4): a(f'ds_write_b64 v{vL3}, {vr(PK+2*nt,2)} offset:{FB + 2048*nt}')
    a.wait(lg=0)
    a.label('L_FQ')
    if cfg.diagt:
        a.label('L_DT'); a('s_memrealtime s[10:11]'); a('s_waitcnt lgkmcnt(0)'); a('s_sub_u32 s10, s10, s98'); a(f's_cmp_lt_u32 s10, {cfg.diagt}'); a('s_cbranch_scc1 L_DT')
    if cfg.diagx:
        a(f'v_mov_b32 v{IN+1}, 0'); a(f'buffer_load_dword v{IN}, v{IN+1}, {sr(SE,4)}, 0 offen sc1'); a(f'v_readfirstlane_b32 s6, v{IN}'); a('s_bcnt1_i32_b32 s6, s6')
        a('s_cmp_le_u32 s6, 1'); a('s_cbranch_scc1 L_DX'); a('s_memrealtime s[8:9]'); a('s_waitcnt lgkmcnt(0)')
        a.label('L_DY'); a('s_memrealtime s[10:11]'); a('s_waitcnt lgkmcnt(0)'); a('s_sub_u32 s10, s10, s8'); a('s_cmp_lt_u32 s10, 3000'); a('s_cbranch_scc1 L_DY')
        a.label('L_DX')
    stamp(a, cfg, 'Fend', 'F')
    a(f's_or_b32 s{T0}, s2, s{sW}'); a(f's_cmp_eq_u32 s{T0}, 0'); a(f's_cselect_b32 s{T0}, {NONCE}, {OOB}')
    a(f'v_mov_b32 v{IN}, s{sNON}'); a(f'v_mov_b32 v{IN+1}, s{sNON+1}'); a(f'v_mov_b32 v{IN+2}, 0'); a('s_mov_b64 exec, 1')
    a(f'buffer_store_dwordx2 {vr(IN,2)}, v{IN+2}, {sr(SA,4)}, s{T0} offen')
    a('s_mov_b64 exec, -1')
    enc_spin(a, cfg, 'F')
    a('s_barrier')
    if cfg.stamps: stamps_out(a, cfg, 10, SA)
    a('s_endpgm')
    a.label(lsp)
    a.hist, a.vq, a.lq = snap
    P1_, M3_, P2_, P4_ = IN, IN + 8, IN + 16, IN + 24
    for t2 in range(2):
        a(f'{MF16} {vr(P1_+4*t2,4)}, {vr(M2+12*t2,4)}, {vr(PK,4)}, 0')
        a(f'{MF16} {vr(M3_+4*t2,4)}, {vr(M2+12*t2+8,4)}, {vr(PK,4)}, 0')
        a(f'{MF16} {vr(P2_+4*t2,4)}, {vr(M2+12*t2+4,4)}, {vr(PK+4,4)}, 0')
        a(f'{MF16} {vr(P4_+4*t2,4)}, {vr(M2+12*t2,4)}, {vr(PK+4,4)}, 0')
    a('s_waitcnt vmcnt(0)')
    unpackW(a, HB, XS)
    a(f's_and_b32 s{T0}, s{sW}, 1'); a(f'v_or_b32 v{WK}, s{T0}, v{vN}'); a(f'v_cmp_eq_u32 vcc, 0, v{WK}')
    for k in range(16): a(f'v_cndmask_b32 v{HB+k}, v{WF+k}, v{HB+k}, vcc')
    for k in range(8):
        x, y = WK + 2*(k & 1), WK + 1 + 2*(k & 1)
        a(f'v_mul_f32 v{x}, v{P1_+k}, v{WF+2*k}'); a(f'v_mul_f32 v{y}, v{P1_+k}, v{WF+2*k+1}')
        a(f'v_fma_f32 v{x}, -v{M3_+k}, v{WF+2*k+1}, v{x}'); a(f'v_fmac_f32 v{y}, v{M3_+k}, v{WF+2*k}')
        a(f'v_fma_f32 v{x}, -v{P4_+k}, v{HB+2*k+1}, v{x}'); a(f'v_fmac_f32 v{y}, v{P4_+k}, v{HB+2*k}')
        a(f'v_fma_f32 v{P1_+k}, v{P2_+k}, v{HB+2*k}, v{x}'); a(f'v_fma_f32 v{M3_+k}, v{P2_+k}, v{HB+2*k+1}, v{y}')
    for k in range(4): a(f'v_cvt_pk_bf16_f32 v{PK+k}, v{P1_+2*k}, v{P1_+2*k+1}')
    for k in range(4): a(f'v_cvt_pk_bf16_f32 v{PK+4+k}, v{M3_+2*k}, v{M3_+2*k+1}')
    a('s_nop 1')
    a(f's_branch {ljn}')

HEADER = open('gated_mix__spectral_gfnet__dense_activation_mish__prompt.s.ref').read().split('; Override')[0] if True else ''
def build(cfg):
    import align
    t = build0(cfg)
    if 's' in cfg.abl: t = fake16(t)
    if 'k' in cfg.abl: t = fake16(t, 0, 99)
    if 'l' in cfg.abl: t = fake16(t, 100, 999)
    return align.run(t)[0] if getattr(cfg, 'align', True) else t
def fake16(t, lo=0, hi=999):
    import re
    out = []; k = 0
    for l in t.split('\n'):
        m = re.match(r'\s*v_mfma_f32_32x32x16_bf16 v\[(\d+):\d+\], (v\[\d+:\d+\]), (v\[\d+:\d+\]), (\S+)', l)
        if m: k += 1
        if m and lo <= k <= hi:
            d = int(m.group(1))
            for h in range(2):
                dd = d + 4*((2*k + h) % 4)
                out.append(f'    v_mfma_f32_16x16x32_bf16 v[{dd}:{dd+3}], {m.group(2)}, {m.group(3)}, v[{dd}:{dd+3}]')
        else: out.append(l)
    return '\n'.join(out)
def build0(cfg):
    Stream.gid = 0
    a = Stream(); prologue(a, cfg)
    g = Stream(); g.hist, g.vq, g.lq = list(a.hist), list(a.vq), list(a.lq); gen_G(g, cfg)
    f = Stream(); f.hist, f.vq, f.lq = list(a.hist), list(a.vq), list(a.lq); gen_F(f, cfg)
    assert g.text().count('s_barrier') == f.text().count('s_barrier'), 'barrier mismatch'
    return f"""{HEADER}; One persistent launch: 256 workgroups x 8 waves (waves 0-3: MLP, waves 4-7: spectral branch). Generated by my own script.
; @launch grid=(256,1,1) block=(512,1,1) lds={LDSZ}
.amdgcn_target "amdgcn-amd-amdhsa--gfx950"
.text
.globl {KN}
.p2align 8
.type {KN},@function
{KN}:
{a.text()}{g.text()}{f.text()}L_END:
    s_endpgm
.section .rodata,"a"
.p2align 6
.amdhsa_kernel {KN}
  .amdhsa_next_free_vgpr 256
  .amdhsa_next_free_sgpr 102
  .amdhsa_accum_offset 256
  .amdhsa_group_segment_fixed_size 0
  .amdhsa_kernarg_size 88
  .amdhsa_user_sgpr_count 2
  .amdhsa_user_sgpr_kernarg_segment_ptr 1
  .amdhsa_system_sgpr_workgroup_id_x 1
  .amdhsa_float_denorm_mode_32 3
.end_amdhsa_kernel
"""
if __name__ == '__main__':
    cfg = Cfg()
    out = sys.argv[1]
    for kv in sys.argv[2:]:
        k, v = kv.split('='); setattr(cfg, k, eval(v))
    open(out, 'w').write(build(cfg))
```

```python
import sys, struct
from sa import Stream
KN = 'gated_mix__spectral_gfnet__dense_activation_mish__prompt_kernel'
MB = 1 << 20
FLAGB = 65536; FLAGC = 196608; FLAGA2 = 262144
NONCE, FLAGA, E1, E2, WB, WBX, W2P, ACT, STAMP, WSZ = 0, 131072, 1*MB, 4*MB, 7*MB, 10*MB, 11*MB, 13*MB, 19*MB, 20*MB
OOB = 0x40000000
XP = 1040
NSLOT, SLAB = 6, 12288
WP = 528
FA = 0; FB = FA + 8704; GW = FB + 8192; GL = GW + 1024; CNT = GL + 256
XT = CNT + 128; RING = XT + 64*XP; LDSZ = RING + NSLOT*SLAB
REG = 86*2048
PST = XT; RED = RING
NPL = 7; assert PST + 4*NPL*2048 <= RING
assert RED + 49152 <= LDSZ <= 163840
cGO, cF1, cF2, cF3, cACT, cGOB, cFA, cFC, cGOC, cFA2, cGO2 = 72, 76, 80, 84, 88, 92, 96, 100, 104, 108, 112
ALL4 = 0x01010101
kF = 11
kQ, kP = 9, 10
k3 = 8
kD = 7
kM = 5
kS = 6
kW = 4
kX, kL, kK, kE = 0, 1, 2, 3
def f32(x): return '0x%08x' % struct.unpack('<I', struct.pack('<f', x))[0]
def vr(a, n): return f'v[{a}:{a+n-1}]' if n > 1 else f'v{a}'
def sr(a, n): return f's[{a}:{a+n-1}]'
sX, sWR, sWI, sW1, sB1, sW2, sGWp, sOUT, sWS = 4, 6, 8, 12, 14, 16, 18, 20, 22
sG0, sJ, sWV, sW = 24, 25, 26, 27
SX, SA, SB, SC, SD, SE = 28, 32, 36, 40, 44, 48
T0, T1, T2, T3 = 52, 53, 54, 55
sNON = 56
sTK = 3
sST = 80
MF16 = 'v_mfma_f32_16x16x32_bf16'; MF32 = 'v_mfma_f32_32x32x16_bf16'

class Cfg:
    stamps = False; dbgst = False
    gst = ['start', 'X', 'Kend', 'mish', 'go', 'drain', 'goB', 'g2end', 'fbar', 'end']
    fst = ['start', 'X', 'fft1', 'flag', 'prepoll', 'go', 'in', 'e2st', 'e2ok', 'Fend']
    NP, NQ = 15, 7
    prioG = 1; prioF = 2; prioM = 3; prioG2 = 1
    spin = 200000
    S1 = 32768; S2 = 16384; SW = 8192; FS = 64; FS2 = 8
    map84 = False; x0 = 8; stgFirst = True; stgBy = 'G'; w1t = True; brB = True; slp = ''; deep = 1; nF = 0; ofl = ''; prio0 = 0; xrot = True; p0 = 1; p1 = 4; p2 = 5; late0 = 6; late1 = 3; hold = False; holdAt = 2
    pre = ''; ford = 'Erwbch1Ag245kaiXYI'
    pollAt = 1; slpA = 8; n64pre = 2
    pAt = 16; mAt = 22; dAt = 11; slpB = 0; goAt = 9; pgap = 14; gateAt = 'F'; stg = False; ipf = 8; own = False; prioS = 2; stgAt = 99; plAt = 8; unpLate = False; npre = 15; dP = 6; np1 = 4; pollB = 18; pfl = 'sc1'
    diagx = False; diagt = 0; enc = None; abl = ''; clrF = False; slp3 = 0; t3 = 5; slpC = 0

def srd(a, d, base, nbytes, off=None):
    if off is None:
        a(f's_mov_b32 s{d}, s{base}'); a(f's_mov_b32 s{d+1}, s{base+1}')
    else:
        a(f's_add_u32 s{d}, s{base}, {off}'); a(f's_addc_u32 s{d+1}, s{base+1}, 0')
    a(f's_mov_b32 s{d+2}, {nbytes}'); a(f's_mov_b32 s{d+3}, 0x20000')

def enc_spin(a, cfg, role):
    if cfg.enc and cfg.enc[0] == role:
        l = a.lab('enc')
        a('s_waitcnt lgkmcnt(0)'); a('s_sub_u32 s96, s96, s98'); a('s_lshl_b32 s96, s96, 2'); a('s_add_u32 s96, s96, 3000')
        a.label(l); a('s_sleep 2'); a('s_memrealtime s[94:95]'); a('s_waitcnt lgkmcnt(0)'); a('s_sub_u32 s94, s94, s98'); a('s_cmp_lt_u32 s94, s96'); a(f's_cbranch_scc1 {l}')
def stamp(a, cfg, name, role=None):
    if cfg.enc == (role, name): a('s_memrealtime s[96:97]')
    if not cfg.stamps: return
    L = cfg.gst if role == 'G' else cfg.fst
    if name in L:
        i = L.index(name)
        a(f's_memtime {sr(sST+2*i, 2)}' if name.startswith('c') and name[1:2] == '_' else f's_memrealtime {sr(sST+2*i, 2)}')
    if 'C' + name in L: a(f's_memtime {sr(sST+2*L.index("C" + name), 2)}')
def stampv(a, cfg, name, role, sreg):
    if not cfg.stamps: return
    L = cfg.gst if role == 'G' else cfg.fst
    if name in L: a(f's_mov_b32 s{sST+2*L.index(name)}, s{sreg}')

def stamps_out(a, cfg, n, srdws):
    if not cfg.stamps: return
    a('s_waitcnt lgkmcnt(0)')
    if cfg.dbgst:
        l = a.lab('nodbg')
        a(f's_cmp_lg_u32 s{sWV}, 0'); a(f's_cbranch_scc1 {l}')
        a('s_load_dwordx2 s[4:5], s[0:1], 72'); a('s_waitcnt lgkmcnt(0)')
        srd(a, SB, 4, 256)
        a('s_mov_b64 exec, 1'); a('v_mov_b32 v2, 0')
        a(f's_not_b32 s{T0}, s{sST}'); a(f'v_mov_b32 v3, s{T0}')
        a(f'buffer_atomic_umax v3, v2, {sr(SB,4)}, 0 offen')
        for i in range(n):
            a(f'v_mov_b32 v{4+i}, s{sST+2*i}')
            a(f'buffer_atomic_umax v{4+i}, v2, {sr(SB,4)}, 0 offen offset:{4+4*i}')
        a.label(l)
        return
    a(f's_lshl_b32 s{T0}, s2, 3'); a(f's_add_u32 s{T0}, s{T0}, s{sWV}'); a(f's_lshl_b32 s{T0}, s{T0}, 6'); a(f's_add_u32 s{T0}, s{T0}, {STAMP}')
    a('s_mov_b64 exec, 1'); a('v_mov_b32 v2, 0')
    for i in range(n):
        a(f'v_mov_b32 v3, s{sST+2*i}')
        a(f'buffer_store_dword v3, v2, {sr(srdws,4)}, s{T0} offen offset:{4*i}')
        a('s_nop 1')
    a('s_mov_b64 exec, -1')

def lds_spin(a, vaddr, off, target, vt, sleep=False):
    l = a.lab('spin')
    a.wait(lg=0)
    if sleep:
        l2 = a.lab('spin'); a(f's_branch {l2}'); a.label(l); a('s_sleep 1'); a.label(l2)
    else: a.label(l)
    a(f'ds_read_b32 v{vt}, v{vaddr} offset:{off}')
    a('s_waitcnt lgkmcnt(0)')
    a(f'v_readfirstlane_b32 s{T3}, v{vt}')
    a(f's_cmp_lt_u32 s{T3}, {target}')
    a(f's_cbranch_scc1 {l}')

def kf_spin(a, vaddr, idx, vt, sleep=False):
    l = a.lab('spin4')
    a.wait(lg=0)
    if sleep:
        l2 = a.lab('spin'); a(f's_branch {l2}'); a.label(l); a('s_sleep 1'); a.label(l2)
    else: a.label(l)
    a(f'ds_read_b32 v{vt}, v{vaddr} offset:{4*idx}')
    a('s_waitcnt lgkmcnt(0)')
    a(f'v_cmp_ne_u32 vcc, {ALL4}, v{vt}')
    a(f's_cbranch_vccnz {l}')

def lds_arrive(a, vaddr, off, vone):
    a('s_mov_b64 exec, 1')
    a(f'ds_add_u32 v{vaddr}, v{vone} offset:{off}')
    a('s_mov_b64 exec, -1')

def prologue(a, cfg):
    a('s_cmp_ge_u32 s2, 256'); a('s_cbranch_scc1 L_END')
    stamp(a, cfg, 'start', 'G'); stamp(a, cfg, 'c_start', 'G')
    if cfg.diagt or cfg.enc: a('s_memrealtime s[98:99]')
    a('s_load_dwordx16 s[4:19], s[0:1], 0')
    a('s_load_dwordx2 s[20:21], s[0:1], 64')
    a('s_load_dwordx2 s[22:23], s[0:1], 80')
    a('v_lshrrev_b32 v2, 6, v0'); a('v_and_b32 v1, 63, v0')
    if cfg.ipf:
        a('s_getpc_b64 s[52:53]'); a.label('L_PC')
        a('s_lshr_b32 s3, s2, 3'); a(f's_and_b32 s3, s3, {cfg.ipf - 1}'); a(f's_mul_i32 s3, s3, (L_END - L_PC + 63)/64/{cfg.ipf} + 1')
        a('v_add_u32 v6, s3, v0'); a('v_lshlrev_b32 v6, 6, v6'); a('v_min_u32 v6, L_END - L_PC, v6')
        a('v_mov_b32 v9, s53'); a('v_add_co_u32 v8, vcc, s52, v6'); a('v_addc_co_u32 v9, vcc, 0, v9, vcc')
        a(f'v_cmp_gt_u32 vcc, (L_END - L_PC + 63)/64/{cfg.ipf} + 1, v0'); a('s_and_saveexec_b64 s[54:55], vcc'); h = a.skip_begin('s_cbranch_execz')
        a('global_load_dword v255, v[8:9], off')
        a.skip_end(h, drop=True)
        a('s_mov_b64 exec, s[54:55]')
    a(f'v_readfirstlane_b32 s{sWV}, v2')
    if cfg.map84:
        a(f's_and_b32 s3, s2, 6'); a(f's_lshl_b32 s{sG0}, s3, 2'); a('s_lshr_b32 s3, s2, 5'); a(f's_add_u32 s{sG0}, s{sG0}, s3')
        a(f's_bfe_u32 s{sJ}, s2, 0x20003'); a('s_and_b32 s3, s2, 1'); a('s_lshl_b32 s3, s3, 2'); a(f's_add_u32 s{sJ}, s{sJ}, s3')
    else:
        a(f's_and_b32 s3, s2, 7'); a(f's_lshl_b32 s{sG0}, s3, 2'); a('s_lshr_b32 s3, s2, 6'); a(f's_add_u32 s{sG0}, s{sG0}, s3')
        a(f's_lshr_b32 s{sJ}, s2, 3'); a(f's_and_b32 s{sJ}, s{sJ}, 7')
    a(f's_mul_i32 s{T0}, s{sG0}, 5'); a(f's_add_u32 s{T0}, s{T0}, s{sJ}'); a(f's_sub_u32 s{T0}, s{T0}, 8')
    a(f's_add_u32 s{T1}, s{sG0}, 154'); a(f's_cmp_eq_u32 s{sJ}, 2'); a(f's_cselect_b32 s{T1}, s{T1}, 200'); a(f's_cmp_ge_u32 s{sJ}, 3'); a(f's_cselect_b32 s{sTK}, s{T0}, s{T1}')
    a(f's_cmp_eq_u32 s{sG0}, 0'); a(f's_cselect_b32 s{sTK}, 200, s{sTK}')
    a('v_lshlrev_b32 v12, 4, v1')
    a(f's_and_b32 s{sW}, s{sWV}, 3')
    a(f'v_mov_b32 v4, {CNT}'); a('v_mov_b32 v5, 0'); a('v_and_b32 v3, 31, v1'); a('v_lshl_add_u32 v3, v3, 2, v4')
    a('ds_write_b32 v3, v5')
    a('s_waitcnt lgkmcnt(0)')
    a(f's_cmp_ge_u32 s{sWV}, 4'); a('s_cbranch_scc1 L_F')

def nonce(a):
    a(f's_mul_i32 s{sNON}, s{sNON}, 0x9e3779b1'); a(f's_add_u32 s{sNON}, s{sNON}, 0x7f4a7c15')
    a(f's_mul_i32 s{sNON+1}, s{sNON+1}, 0x85ebca6b'); a(f's_add_u32 s{sNON+1}, s{sNON+1}, 0xc2b2ae35')

def mish8(a, h, e, u, o, sK):
    for k in range(4): a(f'v_pk_mul_f32 {vr(e+2*k,2)}, {vr(h+2*k,2)}, {sr(sK,2)}')
    for k in range(8): a(f'v_exp_f32 v{e+k}, v{e+k}')
    for k in range(4): a(f'v_pk_add_f32 {vr(u+2*k,2)}, {vr(e+2*k,2)}, {sr(sK+2,2)}')
    for k in range(4): a(f'v_pk_fma_f32 {vr(e+2*k,2)}, {vr(e+2*k,2)}, {vr(e+2*k,2)}, {vr(u+2*k,2)}')
    for k in range(8): a(f'v_rcp_f32 v{e+k}, v{e+k}')
    for k in range(4): a(f'v_pk_mul_f32 {vr(e+2*k,2)}, {vr(e+2*k,2)}, {vr(u+2*k,2)} clamp')
    for k in range(4): a(f'v_pk_mul_f32 {vr(e+2*k,2)}, {vr(e+2*k,2)}, {vr(h+2*k,2)}')
    for k in range(4): a(f'v_cvt_pk_bf16_f32 v{o+k}, v{e+2*k}, v{e+2*k+1}')

class Staging:
    def __init__(self, a, cfg, r): self.a, self.cfg, self.r = a, cfg, r
    def waddr(self, k1off):
        a = self.a
        for u in range(3):
            r_ = self.r + 6 + 3*u; d_ = self.r + 3*k1off + u
            if not k1off:
                a(f'v_add_u32 v{r_}, {64*u}, v1'); a(f'v_mul_u32_u24 v{r_+1}, 1986, v{r_}'); a(f'v_lshrrev_b32 v{r_+1}, 16, v{r_+1}')
                a(f'v_mul_u32_u24 v{r_+2}, 33, v{r_+1}'); a(f'v_sub_u32 v{r_}, v{r_}, v{r_+2}'); a(f'v_lshlrev_b32 v{r_}, 4, v{r_}')
                a(f'v_add_u32 v{r_}, {2048 - 1024*u}, v{r_}')
                a(f'v_lshlrev_b32 v{r_+1}, 6, v{r_+1}'); a(f'v_add_u32 v{r_+1}, s{T0}, v{r_+1}')
            else: a(f'v_add_u32 v{r_+1}, 32, v{r_+1}')
            a(f'v_sub_u32 v{r_+2}, 2048, v{r_+1}'); a(f'v_and_b32 v{r_+2}, 2047, v{r_+2}'); a(f'v_cndmask_b32 v{r_+2}, v{r_+1}, v{r_+2}, vcc')
            a(f'v_mul_u32_u24 v{r_+2}, 514, v{r_+2}'); a(f'v_and_b32 v{r_+2}, -16, v{r_+2}'); a(f'v_add_u32 v{d_}, v{r_+2}, v{r_}')
    def addr(self):
        a = self.a
        a(f's_and_b32 s{T0}, s{sW}, 1'); a(f's_cmp_eq_u32 s{T0}, 0')
        a(f's_cselect_b32 s{SE}, s{sWR}, s{sWI}'); a(f's_cselect_b32 s{SE+1}, s{sWR+1}, s{sWI+1}')
        a(f's_sub_u32 s{SE}, s{SE}, 2048'); a(f's_subb_u32 s{SE+1}, s{SE+1}, 0'); a(f's_mov_b32 s{SE+2}, {2048*514 + 2048}'); a(f's_mov_b32 s{SE+3}, 0x20000')
        a(f's_cmp_ge_u32 s{sW}, 2'); a('s_cselect_b64 vcc, -1, 0')
        a(f's_lshl_b32 s{T0}, s{sJ}, 8'); a(f's_add_u32 s{T0}, s{T0}, s{sG0}')
        self.waddr(0)
    def wrows(self, k1off):
        a = self.a
        a(f's_mul_i32 s{T1}, s{sW}, {4*WP}'); a(f's_add_u32 m0, s{T1}, {FA + (16*WP if k1off else 0)}')
        for u in range(3):
            if u == 2: a('s_mov_b64 exec, 15')
            a(f'buffer_load_dwordx4 v{self.r+3*k1off+u}, {sr(SE,4)}, 0 offen offset:{1024*u} lds', tag='ws')
            if u == 2: a('s_mov_b64 exec, -1')
    def w(self):
        a = self.a
        self.wrows(0)
        a(f's_cmp_lg_u32 s{sG0}, 0'); h = a.skip_begin('s_cbranch_scc1')
        a(f's_cmp_ge_u32 s{sW}, 2'); a('s_cselect_b64 vcc, -1, 0'); self.waddr(1); self.wrows(1); a.skip_end(h, drop=True)
    def w2(self):
        a = self.a
        a(f's_lshr_b32 s{T0}, s{sTK}, 1'); a(f's_lshl_b32 s{T0}, s{T0}, 14'); a(f's_and_b32 s{T1}, s{sTK}, 1'); a(f's_lshl_b32 s{T1}, s{T1}, 12'); a(f's_add_u32 s{T0}, s{T0}, s{T1}')
        a(f's_lshr_b32 s{T1}, s{sW}, 1'); a(f's_lshl_b32 s{T1}, s{T1}, 13'); a(f's_add_u32 s{T0}, s{T0}, s{T1}'); a(f's_and_b32 s{T1}, s{sW}, 1'); a(f's_lshl_b32 s{T1}, s{T1}, 11'); a(f's_add_u32 s{T0}, s{T0}, s{T1}')
        srd(a, SB, sW2, 1376*1024)
        a(f's_lshl_b32 s{T1}, s{sW}, 11'); a(f's_add_u32 m0, s{T1}, {FB}')
        a(f's_cmp_ge_u32 s{sTK}, 172'); h = a.skip_begin('s_cbranch_scc1')
        for u in range(2): a(f'buffer_load_dwordx4 v12, {sr(SB,4)}, s{T0} offen offset:{1024*u} lds', tag='ws')
        a.skip_end(h, drop=True)
        srd(a, SB, sGWp, 1024)
        a(f's_lshl_b32 s{T0}, s{sW}, 8'); a(f's_add_u32 m0, s{T0}, {GW}'); a(f'v_lshlrev_b32 v{self.r+15}, 2, v1')
        a(f'buffer_load_dword v{self.r+15}, {sr(SB,4)}, s{T0} offen lds', tag='ws')

def gate_code(a, cfg, GB, GA, t):
    vGX, vGG, vGL = (t + 1, t + 2, t + 3) if t != 10 else (11, 2, 13)
    a(f'v_and_b32 v{t}, 15, v1'); a(f's_lshl_b32 s{T2}, s{sW}, 4'); a(f'v_add_u32 v{t}, s{T2}, v{t}'); a(f'v_lshlrev_b32 v{vGL}, 2, v{t}'); a(f'v_mul_u32_u24 v{t}, {XP}, v{t}')
    a(f'v_and_b32 v{vGG}, 48, v1'); a(f'v_add_u32 v{vGX}, v{vGG}, v{t}')
    def rd(ks): a(f'ds_read_b128 {vr(GB+8*(ks%7),4)}, v{vGX} offset:{XT + 64*ks}'); a(f'ds_read_b128 {vr(GB+8*(ks%7)+4,4)}, v{vGG} offset:{GW + 64*ks}')
    for ks in range(6): rd(ks)
    for ks in range(16):
        a(f'{MF16} {vr(GA+4*(ks&1),4)}, {vr(GB+8*(ks%7)+4,4)}, {vr(GB+8*(ks%7),4)}, {vr(GA+4*(ks&1),4) if ks > 1 else 0}')
        if ks + 6 < 16: rd(ks + 6)
    a(f'v_add_f32 v{GA}, v{GA}, v{GA+4}')
    a(f'v_mul_f32 v{GA}, {f32(-1.4426950408889634)}, v{GA}'); a(f'v_exp_f32 v{GA}, v{GA}'); a(f'v_add_f32 v{GA}, 1.0, v{GA}'); a(f'v_rcp_f32 v{GA}, v{GA}')
    a(f'ds_write_b32 v{vGL}, v{GA} offset:{GL}')

def gen_G(a, cfg):
    vCN, vD, vL16 = 4, 5, 12
    vP, vQ0, vQ1, vPW, vSV = 13, 14, 15, 8, 9
    vT, vX0, vX1, vPA = 10, 11, 2, 3
    PR, ACC2, QR = 16, 136, 200
    ACC1, ACCX, FR, TM = 136, 184, 16, 232
    BI = 56
    RW = NSLOT*3072
    sU0, sNU, sRH, sFH, sSL = 58, 59, 60, 61, 62
    sAO = 63
    sK = 66
    sROT, sOWN, sTMP = 78, 79, 71
    def step_off(i, dst):
        L = [f's_add_u32 s{dst}, s{sROT}, {i*8192}', f's_sub_u32 s{sTMP}, s{dst}, {REG}', f's_cselect_b32 s{dst}, s{dst}, s{sTMP}']
        if i == 21: L += [f's_cmp_lt_u32 s{sW}, 2', f's_cselect_b32 s{dst}, s{dst}, {OOB}']
        return L
    if cfg.prioG: a(f's_setprio {cfg.prioG}')
    srd(a, SX, sX, 2*MB)
    a(f's_load_dwordx2 {sr(sNON,2)}, {sr(sWS,2)}, {NONCE}')
    a(f'v_add_u32 v{vPW}, s{sW}, v{vCN}'); a(f'v_mov_b32 v{vSV}, 1')
    def post(i): a(f'ds_write_b8 v{vPW}, v{vSV} offset:{4*i}')
    sXO, sXM, sXB = 70, 71, 72
    a(f's_lshl_b32 s{sXO}, s{sW}, 16'); a(f's_lshl_b32 s{T0}, s{sG0}, 10'); a(f's_add_u32 s{sXO}, s{sXO}, s{T0}'); a(f's_mul_i32 s{sXM}, s{sW}, {2*XP}')
    def xdma(i0, i1, fill=None):
        for i in range(i0, i1):
            if i % 2 == 0:
                if cfg.xrot: a(f's_add_u32 s{sXB}, s{sJ}, {i//2}'); a(f's_and_b32 s{sXB}, s{sXB}, 7')
                else: a(f's_mov_b32 s{sXB}, {i//2}')
                a(f's_mul_i32 s{T1}, s{sXB}, {8*XP}'); a(f's_add_u32 s{T1}, s{T1}, s{sXM}')
                a(f's_lshl_b32 s{sXB}, s{sXB}, 18'); a(f's_add_u32 s{sXB}, s{sXB}, s{sXO}')
            else: a(f's_add_u32 s{sXB}, s{sXB}, 32768')
            a(f's_add_u32 m0, s{T1}, {XT + (i % 2)*XP}')
            a(f'buffer_load_dwordx4 v12, {sr(SX,4)}, s{sXB} offen lds', tag='x')
            if fill: fill()
    xdma(0, cfg.x0)
    a('s_barrier')
    t = TM
    vBO = FR + 7
    stg = Staging(a, cfg, FR + 8)
    if cfg.stgBy == 'G': stg.addr()
    srd(a, SA, sW1, 512*2752)
    a(f's_min_u32 s{sU0}, s{sJ}, 3'); a(f's_mul_i32 s{T0}, s{sJ}, 5'); a(f's_add_u32 s{sU0}, s{sU0}, s{T0}')
    a(f's_cmp_lt_u32 s{sJ}, 3'); a(f's_cselect_b32 s{sNU}, 6, 5')
    a(f's_and_b32 s{sRH}, s{sW}, 1'); a(f's_lshr_b32 s{sFH}, s{sW}, 1')
    a(f's_mul_i32 s{T2}, s{sFH}, 3')
    a(f's_add_u32 s{T0}, s{sU0}, s{T2}'); a(f's_lshl_b32 s{T0}, s{T0}, 6'); a(f's_sub_u32 s{T3}, s{sNU}, s{T2}')
    for u in range(3):
        a(f'v_add_u32 v{t}, {64*u}, v1')
        a(f'v_mul_u32_u24 v{t+1}, 5462, v{t}'); a(f'v_lshrrev_b32 v{t+1}, 16, v{t+1}')
        a(f'v_mul_u32_u24 v{t+2}, 12, v{t+1}'); a(f'v_sub_u32 v{t}, v{t}, v{t+2}')
        a(f'v_lshrrev_b32 v{t+2}, 2, v{t}'); a(f'v_cmp_gt_u32 vcc, s{T3}, v{t+2}')
        a(f'v_mul_u32_u24 v{t+1}, 2752, v{t+1}'); a(f'v_lshl_add_u32 v{t}, v{t}, 4, v{t+1}'); a(f'v_add_u32 v{t}, s{T0}, v{t}')
        a(f'v_mov_b32 v{t+1}, {OOB}')
        if u: a(f'v_subrev_u32 v{t}, {1024*u}, v{t}')
        a(f'v_cndmask_b32 v{vD+u}, v{t+1}, v{t}, vcc')
    a(f's_mul_i32 s{sSL}, s{sRH}, {256*2752}')
    sRM = 73
    a(f's_mul_i32 s{sRM}, s{sW}, {RW}')
    def dma_m0(s):
        if s <= 15: a(f's_add_u32 m0, s{sRM}, {RING + (s % NSLOT)*3072}')
    def dma_so(s):
        if 0 < s <= 15: a(f's_add_u32 s{sSL}, s{sSL}, {16*2752}')
    def dma1(s, u):
        if s <= 15: a(f'buffer_load_dwordx4 v{vD+u}, {sr(SA,4)}, s{sSL} offen offset:{1024*u} lds', tag=f'w{s}')
    def dma(s):
        dma_m0(s); dma_so(s)
        for u in range(3): dma1(s, u)
    sBO = 74
    a(f'v_and_b32 v{t}, 31, v1'); a(f'v_lshlrev_b32 v{t}, 1, v{t}'); a(f'v_cmp_gt_u32 vcc, 32, v1')
    a(f'v_mov_b32 v{t+1}, {OOB}'); a(f'v_cndmask_b32 v{vBO}, v{t+1}, v{t}, vcc')
    for T in range(3):
        a(f's_add_u32 s{T3}, s{T2}, {T}'); a(f's_cmp_lt_u32 s{T3}, s{sNU}')
        a(f's_cselect_b32 s{T0}, 0, {OOB}')
        a(f's_add_u32 s{T3}, s{T3}, s{sU0}')
        a(f's_lshl_b32 s{sAO+T}, s{T3}, 12'); a(f's_add_u32 s{sAO+T}, s{sAO+T}, s{T0}')
        a(f's_lshl_b32 s{T3}, s{T3}, 6'); a(f's_add_u32 s{sBO+T}, s{T3}, s{T0}')
    U0 = 100
    late = []
    L = late.append
    L(lambda: (a(f's_mul_i32 s{U0}, s{sG0}, {REG}'), a(f's_add_u32 s{U0}, s{U0}, {ACT}'),))
    L(lambda: (srd(a, SC, sWS, REG, f's{U0}'),))
    L(lambda: (a(f's_mul_i32 s{U0}, s{sJ}, {REG}'), a(f's_add_u32 s{U0}, s{U0}, {W2P}'),))
    L(lambda: (srd(a, SD, sWS, REG, f's{U0}'),))
    L(lambda: (a(f's_lshl_b32 s{U0}, s{sRH}, 10'), a(f'v_add_u32 v{vQ0}, s{U0}, v{vL16}'),))
    L(lambda: (a(f'v_and_b32 v{t+1}, 31, v1'), a(f's_lshl_b32 s{U0}, s{sFH}, 4'), a(f'v_xor_b32 v{t+1}, s{U0}, v{t+1}'),))
    L(lambda: (a(f'v_lshrrev_b32 v{t+2}, 5, v1'), a(f'v_lshlrev_b32 v{t+2}, 9, v{t+2}'), a(f'v_lshl_add_u32 v{vPA}, v{t+1}, 4, v{t+2}'),))
    L(lambda: (a(f's_lshl_b32 s{sROT}, s{sU0}, 1'), a(f's_add_u32 s{sROT}, s{sROT}, s{sW}'), a(f's_lshl_b32 s{sROT}, s{sROT}, 11'),))
    if not cfg.own: L(lambda: a(f's_lshl_b32 s{sROT}, s{sW}, 11'))
    L(lambda: (a(f's_lshl_b32 s{U0}, s{sNU}, 1'), a(f's_sub_u32 s{U0}, s{U0}, s{sW}'), a(f's_cmp_gt_u32 s{U0}, 8'), a(f's_cselect_b32 s{sOWN}, 1, 0'),))
    L(lambda: (a(f'v_lshrrev_b32 v{t}, 5, v1'), a(f'v_lshlrev_b32 v{t}, 3, v{t}'), a(f'v_bfe_u32 v{t+1}, v1, 2, 2'), a(f'v_add_u32 v{t}, v{t}, v{t+1}'),))
    L(lambda: (a(f'v_mul_u32_u24 v{t}, 192, v{t}'),))
    L(lambda: (a(f'v_bfe_u32 v{t+2}, v1, 4, 1'), a(f'v_lshl_add_u32 v{t}, v{t+2}, 5, v{t}'),))
    L(lambda: (a(f'v_and_b32 v{t+2}, 3, v1'), a(f'v_lshl_add_u32 v{t}, v{t+2}, 3, v{t}'),))
    L(lambda: (a(f's_add_u32 s{U0}, s{sRM}, {RING}'), a(f'v_add_u32 v{vT}, s{U0}, v{t}'),))
    L(lambda: (a(f'v_add_u32 v{vP}, s{U0}, v{vL16}'),))
    L(lambda: (a(f's_xor_b32 s{U0}, s{sW}, 1'), a(f's_mul_i32 s{U0}, s{U0}, {RW}'), a(f's_add_u32 s{U0}, s{U0}, {RING}'), a(f'v_add_u32 v{vQ1}, s{U0}, v{vL16}'),))
    L(lambda: (a(f'v_and_b32 v{t}, 31, v1'), a(f'v_mul_u32_u24 v{t}, {XP}, v{t}'), a(f'v_lshrrev_b32 v{t+1}, 5, v1'), a(f'v_lshl_add_u32 v{t}, v{t+1}, 4, v{t}'),))
    L(lambda: (a(f's_mul_i32 s{U0}, s{sRH}, {32*XP + 512}'), a(f'v_add_u32 v{vX0}, s{U0}, v{t}'),))
    L(lambda: (a(f's_mul_i32 s{U0}, s{sRH}, {512 - 32*XP}'), a(f's_add_u32 s{U0}, s{U0}, {32*XP}'), a(f'v_add_u32 v{vX1}, s{U0}, v{t}'),))
    for T in range(3): L(lambda T=T: [a(f'v_mov_b32 v{BI+4*T+k}, 0') for k in range(1, 4)])
    L(lambda: (a(f'v_cmp_gt_u32 vcc, 32, v1'), a(f'v_mov_b32 v{t}, 0x3f80'), a(f'v_mov_b32 v{BI+13}, 0'), a(f'v_mov_b32 v{BI+14}, 0'), a(f'v_mov_b32 v{BI+15}, 0'), a(f'v_cndmask_b32 v{BI+12}, 0, v{t}, vcc')))
    L(lambda: (a(f's_mov_b32 s{sK}, {f32(-1.4426950408889634)}'), a(f's_mov_b32 s{sK+1}, {f32(-1.4426950408889634)}'),))
    L(lambda: (a(f's_mov_b32 s{sK+2}, 0.5'), a(f's_mov_b32 s{sK+3}, 0.5'),))
    L(lambda: (nonce(a),))
    def late_setup(n=99):
        for _ in range(n):
            if late: late.pop(0)()
    late_setup(cfg.late0)
    stamp(a, cfg, 'set', 'G')
    xdma(cfg.x0, 16, lambda: late_setup(cfg.late1))
    srd(a, SB, sB1, 2752)
    for T in range(3): a(f'buffer_load_ushort v{BI+4*T}, v{vBO}, {sr(SB,4)}, s{sBO+T} offen')
    def staging():
        if cfg.stgBy == 'G': stg.w(); stg.w2()
        srd(a, SE, sOUT, 2*MB)
    if cfg.stgFirst: staging()
    for s in range(cfg.p0): dma(s)
    stamp(a, cfg, 'iss', 'G')
    a.wait_tag('x'); post(kX); stamp(a, cfg, 'X', 'G')
    if not cfg.stgFirst: staging()
    for s in range(cfg.p0, cfg.p1): dma(s)
    late_setup()
    for T in range(3): a(f'{MF32} {vr(ACC1+16*T,16)}, {vr(BI+4*T,4)}, {vr(BI+12,4)}, 0')
    def reads(s):
        if s > 15: return [None]*8
        f = FR + 20*(s & 1)
        L = [f'ds_read_b128 {vr(f,4)}, v{vX0} offset:{XT + s*32}', f'ds_read_b128 {vr(f+4,4)}, v{vX1} offset:{XT + s*32}']
        for T in range(3):
            for hf in range(2):
                L.append(f'ds_read_b64_tr_b16 {vr(f+8+4*T+2*hf,2)}, v{vT} offset:{(s % NSLOT)*3072 + 768*hf + 64*T}')
        return L
    def rd(s, i, j):
        for x in reads(s)[i:j]:
            if x: a(x, tag=f'r{s}')
    def mf(s, T, rt):
        f = FR + 20*(s & 1); d = (ACCX if rt else ACC1) + 16*T
        a(f'{MF32} {vr(d,16)}, {vr(f+8+4*T,4)}, {vr(f+4*rt,4)}, {vr(d,16) if (s or not rt) else 0}')
    a.wait_tag('w0')
    if cfg.stgFirst and cfg.stgBy == 'G': post(kW)
    kf_spin(a, vCN, kX, TM)
    pend = []
    for i in range(cfg.npre):
        r = PR + 8*i
        pend.append(step_off(i, 77) + [f'buffer_load_dwordx4 {vr(r,4)}, v{vPA}, {sr(SD,4)}, s77 offen {cfg.pfl}'])
        pend.append([f'buffer_load_dwordx4 {vr(r+4,4)}, v{vPA}, {sr(SD,4)}, s77 offen offset:1024 {cfg.pfl}'])
    early = [2*(cfg.npre - 7)]
    def popP(n):
        for _ in range(n):
            if pend:
                for l in pend.pop(0): a(l, tag='p')
    def popE(s):
        if s >= cfg.pAt and early[0]: popP(1); early[0] -= 1
    rd(0, 0, 8)
    n = NSLOT - 1 + cfg.deep
    assert not cfg.hold
    for s in range(cfg.p1, cfg.p2): dma(s)
    nxt = max(cfg.p1, cfg.p2)
    for s in range(14):
        stamp(a, cfg, f'k{s}', 'G')
        lds_ = [x for x in (nxt, nxt + 1) if x <= min(s + n, 15)]
        items = [[lambda x=x: (dma_m0(x), dma_so(x), dma1(x, 0)), lambda x=x: dma1(x, 1), lambda x=x: dma1(x, 2)] for x in lds_]
        gaps = [[] for _ in range(6)]
        if len(items) == 1: gaps[1] = [lambda x=lds_[0]: dma_m0(x)]; gaps[2] = [lambda x=lds_[0]: dma_so(x)]; gaps[3] = [lambda x=lds_[0]: dma1(x, 0)]; gaps[4] = [items[0][1]]; gaps[5] = [items[0][2]]
        elif len(items) == 2:
            for g, it in enumerate(items[0] + items[1]): gaps[g] = [it]
        nxt += len(items)
        def gap(g):
            for f_ in gaps[g]: f_()
        if s == cfg.mAt: post(kM)
        if s == cfg.dAt: post(kD)
        a.wait_ltag(f'r{s}')
        mf(s, 0, 0)
        a.wait_tag(f'w{s+1}')
        if s == cfg.p0 - 1 and not cfg.stgFirst and cfg.stgBy == 'G': post(kW)
        rd(s+1, 0, 2); gap(0)
        mf(s, 0, 1); rd(s+1, 2, 4); gap(1)
        mf(s, 1, 0); rd(s+1, 4, 6); gap(2)
        mf(s, 1, 1); rd(s+1, 6, 8); gap(3)
        mf(s, 2, 0); gap(4)
        mf(s, 2, 1); gap(5)
    assert nxt >= 16 and cfg.pAt > 15
    a.wait_ltag('r14')
    mf(14, 0, 1); a.wait_tag('w15'); post(kL); rd(15, 0, 4)
    mf(14, 1, 1); rd(15, 4, 8)
    mf(14, 2, 1); mf(14, 0, 0)
    a.wait_ltag('r15')
    for T in range(3): mf(15, T, 1)
    def exw(q): a(f'ds_write_b128 v{vP}, {vr(ACCX+4*q,4)} offset:{1024*q}')
    mf(14, 1, 0); mf(14, 2, 0)
    for q in range(0, 4): exw(q)
    mf(15, 0, 0)
    for q in range(4, 7): exw(q)
    mf(15, 1, 0)
    for q in range(7, 10): exw(q)
    mf(15, 2, 0)
    stamp(a, cfg, 'Kl', 'G')
    if cfg.prioM != cfg.prioG: a(f's_setprio {cfg.prioM}')
    for q in range(10, 12): exw(q)
    for q in range(12 - 2*cfg.nF, 12): a(f'ds_write_b128 v{vP}, {vr(ACC1+4*q,4)} offset:{1024*(q + 2*cfg.nF)}')
    a.wait(lg=0); post(kK)
    kf_spin(a, vCN, kK, TM)
    if cfg.mAt == 16: post(kM)
    for q in range(12 - 2*cfg.nF): a(f'ds_read_b128 {vr(ACCX+4*q,4)}, v{vQ1} offset:{1024*q}')
    stamp(a, cfg, 'Kend', 'G')
    def wait_go():
        lds_spin(a, vCN, cGO2 if 'B' in cfg.ford else cGO, 4, TM + 2, sleep=True); stamp(a, cfg, 'go', 'G')
    cnt = [0, False]
    def m(x):
        a(x); cnt[0] += 1
        if cnt[1] and cnt[0] % cfg.pgap == 0: popP(1)
    for T in range(3):
        for hb in range(2):
            if 2*T + hb >= 6 - cfg.nF: continue
            h = ACC1 + 16*T + 8*hb
            if cfg.goAt == 2*T + hb: wait_go(); cnt[1] = True
            e, u, o = TM, TM + 8, TM + 16 + 4*((2*T+hb) % 2)
            for k in range(4): m(f'v_pk_add_f32 {vr(h+2*k,2)}, {vr(h+2*k,2)}, {vr(h+48+2*k,2)}')
            mish8(m, h, e, u, o, sK)
            a(f'buffer_store_dwordx4 {vr(o,4)}, v{vQ0}, {sr(SC,4)}, s{sAO+T} offen offset:{2048*hb} sc1', tag='act')
            if cfg.mAt == 20 + 2*T + hb: post(kM)
    stamp(a, cfg, 'mish', 'G')
    if cfg.prioM != cfg.prioG2: a(f's_setprio {cfg.prioG2}')
    assert cfg.np1 == 0 or cfg.mAt != 26
    if cfg.np1 and cfg.goAt > 5: wait_go()
    popP(cfg.np1)
    gate = lambda: gate_code(a, cfg, 136, 192, 10)
    if cfg.gateAt == 'D': gate()
    srd(a, SA, sWS, WSZ)
    a(f'v_mov_b32 v{TM+8}, 1'); a(f'v_mov_b32 v{TM+10}, s{sNON}'); a(f'v_mov_b32 v{TM+11}, s{sNON+1}')
    a(f'v_and_b32 v{TM+12}, 7, v1'); a(f'v_lshlrev_b32 v{TM+12}, 7, v{TM+12}'); a(f'v_mov_b32 v{TM+13}, 0')
    a(f's_lshl_b32 s{T0}, s{sG0}, 10'); a(f's_add_u32 s{T0}, s{T0}, {FLAGB}'); a(f's_lshl_b32 s{T2}, s{sJ}, 7'); a(f's_add_u32 s{T2}, s{T2}, s{T0}')
    a.wait_tag('act')
    stamp(a, cfg, 'drain', 'G')
    if cfg.mAt == 26: post(kM)
    a('s_mov_b64 exec, 1'); a(f'ds_add_rtn_u32 v{TM+9}, v{vCN}, v{TM+8} offset:{cACT}'); a('s_mov_b64 exec, -1')
    a(f'v_readfirstlane_b32 s{T3}, v{TM+9}')
    lnp = a.lab('nopollB'); lpb = a.lab('pollB'); lgb = a.lab('goB')
    if cfg.nF:
        a(f's_mov_b32 s{sNU}, s{T3}'); a(f's_cmp_lg_u32 s{sNU}, 3'); h = a.skip_begin('s_cbranch_scc1'); kf_spin(a, vCN, kF, TM + 2); a.skip_end(h)
        a(f's_mov_b32 s{T3}, s{sNU}')
    if cfg.brB:
        a(f's_mov_b32 s{sNU}, s{T3}'); a(f's_cmp_lg_u32 s{sNU}, 3'); h = a.skip_begin('s_cbranch_scc1')
        a('s_mov_b64 exec, 1'); a(f'buffer_store_dwordx2 {vr(TM+10,2)}, v{TM+13}, {sr(SA,4)}, s{T2} offen sc1'); a('s_mov_b64 exec, -1')
        a.skip_end(h, drop=True)
    else:
        a(f's_cmp_eq_u32 s{T3}, 3'); a(f's_cselect_b32 s{T2}, s{T2}, {OOB}'); a(f's_mov_b32 s{sNU}, s{T3}')
        a('s_mov_b64 exec, 1'); a(f'buffer_store_dwordx2 {vr(TM+10,2)}, v{TM+13}, {sr(SA,4)}, s{T2} offen sc1'); a('s_mov_b64 exec, -1')
        a(f's_cmp_eq_u32 s{sNU}, 3'); a(f's_cselect_b32 s{sNU+11}, s{T0}, {OOB}')
    NS = 22
    def loadP(i, hb):
        if i < cfg.npre or i >= NS or cfg.stg: return
        r = PR + 8*(i % cfg.NP)
        if hb == 0:
            for l in step_off(i, T1): a(l)
        a(f'buffer_load_dwordx4 {vr(r+4*hb,4)}, v{vPA}, {sr(SD,4)}, s{T1} offen offset:{1024*hb} {cfg.pfl}')
    def loadQ(i, hb):
        if i >= NS: return
        k = i % cfg.NQ; r = QR + 8*k
        if hb == 0:
            for l in step_off(i, sSL): a(l)
        a(f'buffer_load_dwordx4 {vr(r+4*hb,4)}, v{vQ0+hb}, {sr(SC,4)}, s{sSL} offen sc1')
    a(f's_lshl_b32 s{T2}, s{sRH}, 10'); a(f'v_add_u32 v{vQ0}, s{T2}, v{vL16}'); a(f'v_xor_b32 v{vQ1}, 1024, v{vQ0}')
    def mf2(i, mt, nt):
        p = PR + 8*(i % cfg.NP); q = QR + 8*(i % cfg.NQ); d = ACC2 + 32*mt + 16*nt
        a(f'{MF32} {vr(d,16)}, {vr(p+4*mt,4)}, {vr(q+4*nt,4)}, {vr(d,16) if i else 0}')
    i00 = 0
    if cfg.own:
        lds_spin(a, vCN, cACT, 4, TM + 2)
        for i in range(2): loadQ(i, 0); loadQ(i, 1)
        a(f's_cmp_eq_u32 s{sOWN}, 0'); h = a.skip_begin('s_cbranch_scc1'); loadQ(2, 0); loadQ(2, 1); a.skip_end(h, drop=True)
        i00 = 2
    if not cfg.np1 and cfg.goAt > 5: wait_go()
    popP(cfg.pollB)
    if cfg.slpB: a(f's_sleep {cfg.slpB}')
    if cfg.brB:
        a(f's_cmp_lg_u32 s{sNU}, 3'); h = a.skip_begin('s_cbranch_scc1')
        a(f'buffer_load_dwordx2 {vr(TM,2)}, v{TM+12}, {sr(SA,4)}, s{T0} offen sc1'); a.skip_end(h, drop=True)
        nb = len(a.vq)
    else: a(f'buffer_load_dwordx2 {vr(TM,2)}, v{TM+12}, {sr(SA,4)}, s{sNU+11} offen sc1', tag='pb')
    if cfg.stg:
        popP(max(0, cfg.stgAt - cfg.np1 - cfg.pollB)); post(kQ)
    popP(99)
    stamp(a, cfg, 'piss', 'G')
    a(f's_mov_b32 s{sU0}, 0')
    a(f's_cmp_lg_u32 s{sNU}, 3'); a(f's_cbranch_scc1 {lnp}')
    vq = list(a.vq)
    if cfg.brB: a(f's_waitcnt vmcnt({len(a.vq) - nb})')
    else: a.wait_tag('pb')
    a.label(lpb)
    a(f'v_xor_b32 v{TM}, s{sNON}, v{TM}'); a(f'v_xor_b32 v{TM+1}, s{sNON+1}, v{TM+1}'); a(f'v_or_b32 v{TM}, v{TM}, v{TM+1}')
    a(f'v_cmp_ne_u32 vcc, 0, v{TM}'); a(f's_cbranch_vccz {lgb}')
    a(f'buffer_load_dwordx2 {vr(TM,2)}, v{TM+12}, {sr(SA,4)}, s{T0} offen sc1')
    a('s_waitcnt vmcnt(0)')
    a(f's_add_u32 s{sU0}, s{sU0}, 1'); a(f's_cmp_lt_u32 s{sU0}, {cfg.spin}'); a(f's_cbranch_scc1 {lpb}')
    a.label(lgb)
    lds_arrive(a, vCN, cGOB, TM+8)
    a.label(lnp)
    a.vq = vq
    for i in range(i00):
        for mt in range(2):
            for nt in range(2): mf2(i, mt, nt)
    if cfg.gateAt == 'B': gate()
    if cfg.stg: a(f's_mul_i32 s{T0}, s{sW}, {NPL*2048}'); a(f'v_add_u32 v{vPA}, s{T0}, v{vL16}')
    lds_spin(a, vCN, cGOB, 1, TM + 2, sleep='B' in cfg.slp)
    stamp(a, cfg, 'goB', 'G')
    if cfg.t3 == -1: post(k3)
    dq, dp = cfg.NQ - 1, cfg.dP
    assert dp < cfg.NP and cfg.npre <= cfg.NP
    for i in range(i00, i00 + max(dq, dp)):
        if i < i00 + dq: loadQ(i, 0); loadQ(i, 1)
        if i < i00 + dp: loadP(i, 0); loadP(i, 1)
    if cfg.gateAt == 'Q': gate()
    for i in range(i00, NS - 2):
        p = PR + 8*(i % cfg.NP); q = QR + 8*(i % cfg.NQ)
        stamp(a, cfg, f'g{i}', 'G')
        if i == cfg.t3: post(k3)
        for mt in range(2):
            for nt in range(2):
                d = ACC2 + 32*mt + 16*nt
                a(f'{MF32} {vr(d,16)}, {vr(p+4*mt,4)}, {vr(q+4*nt,4)}, {vr(d,16) if i else 0}')
                if nt == 0: loadQ(i + dq, mt)
                else: loadP(i + dp, mt)
        if cfg.stg:
            if i == cfg.plAt: kf_spin(a, vCN, kP, 2)
            if cfg.plAt <= i < cfg.plAt + NPL:
                for hb in range(2): a(f'ds_read_b128 {vr(PR+8*(i-cfg.plAt)+4*hb,4)}, v{vPA} offset:{PST + (i-cfg.plAt)*2048 + 1024*hb}')
    def quad(k, mt, rr): return ACC2 + 32*mt + 16*(k & 1) + 4*(2*(k >> 1) + rr)
    for k in range(1, 4):
        a(f's_xor_b32 s{T0}, s{sW}, {k}'); a(f's_mul_i32 s{T0}, s{T0}, 12288'); a(f's_add_u32 s{T0}, s{T0}, {RED}'); a(f'v_add_u32 v{4+k}, s{T0}, v{vL16}')
    def redw(k, mt, rr): a(f'ds_write_b128 v{4+k}, {vr(quad(k,mt,rr),4)} offset:{(k-1)*4096 + (2*mt+rr)*1024}')
    for mt in range(2):
        for i in (NS - 2, NS - 1): mf2(i, mt, 1)
    mf2(NS - 2, 0, 0); mf2(NS - 1, 0, 0)
    for k in (1, 3):
        for rr in range(2): redw(k, 0, rr)
    mf2(NS - 2, 1, 0)
    redw(1, 1, 0); redw(1, 1, 1)
    mf2(NS - 1, 1, 0)
    redw(3, 1, 0); redw(3, 1, 1); redw(2, 0, 0); redw(2, 0, 1)
    stamp(a, cfg, 'g2end', 'G')
    vRA, vAA, vGA, vO = 2, 3, 8, 9
    a(f's_mul_i32 s{T0}, s{sW}, 12288'); a(f's_add_u32 s{T0}, s{T0}, {RED}'); a(f'v_add_u32 v{vRA}, s{T0}, v{vL16}')
    a(f'v_and_b32 v10, 31, v1'); a(f's_and_b32 s{T0}, s{sW}, 1'); a(f's_lshl_b32 s{T0}, s{T0}, 5'); a(f'v_add_u32 v10, s{T0}, v10')
    a(f'v_lshrrev_b32 v11, 5, v1'); a(f's_lshr_b32 s{T0}, s{sW}, 1'); a(f's_lshl_b32 s{T0}, s{T0}, 2'); a(f'v_add_u32 v11, s{T0}, v11')
    a(f'v_lshlrev_b32 v{vGA}, 2, v10'); a(f'v_add_u32 v{vGA}, {GL}, v{vGA}')
    a(f'v_bfe_u32 v13, v10, 1, 3'); a('v_xor_b32 v13, v13, v11'); a(f'v_lshlrev_b32 v{vAA}, 7, v10'); a(f'v_lshl_add_u32 v{vAA}, v13, 4, v{vAA}'); a(f'v_add_u32 v{vAA}, {FB}, v{vAA}')
    a(f'v_xor_b32 v13, 32, v{vAA}')
    a(f'v_lshlrev_b32 v{vO}, 15, v10'); a(f'v_lshl_add_u32 v{vO}, v11, 7, v{vO}')
    a(f's_lshl_b32 s{T1}, s{sG0}, 10'); a(f's_lshl_b32 s{T0}, s{sJ}, 4'); a(f's_add_u32 s{T1}, s{T1}, s{T0}')
    redw(2, 1, 0); redw(2, 1, 1)
    enc_spin(a, cfg, 'G')
    a.wait(lg=0); a('s_barrier')
    stamp(a, cfg, 'fbar', 'G')
    RD = PR
    for k in range(1, 4):
        for mq in range(4): a(f'ds_read_b128 {vr(RD+16*(k-1)+4*mq,4)}, v{vRA} offset:{(k-1)*4096 + mq*1024}')
    AA = PR + 48
    a(f'ds_read_b128 {vr(AA,4)}, v{vAA}'); a(f'ds_read_b128 {vr(AA+4,4)}, v13'); a(f'ds_read_b32 v14, v{vGA}')
    for k in range(1, 4):
        for mt in range(2):
            for rr in range(2):
                for pp in range(2):
                    d = quad(0, mt, rr) + 2*pp; s_ = RD + 16*(k-1) + 4*(2*mt+rr) + 2*pp
                    a(f'v_pk_add_f32 {vr(d,2)}, {vr(d,2)}, {vr(s_,2)}')
    U = PR + 56
    for rr in range(2):
        for k in range(4):
            lo, hi = U + 2*k, U + 2*k + 1
            b0, b1 = quad(0, 0, rr) + k, quad(0, 1, rr) + k
            a(f'v_lshlrev_b32 v{lo}, 16, v{AA+4*rr+k}'); a(f'v_and_b32 v{hi}, 0xffff0000, v{AA+4*rr+k}')
            a(f'v_sub_f32 v{lo}, v{lo}, v{b0}'); a(f'v_sub_f32 v{hi}, v{hi}, v{b1}')
            a(f'v_fmac_f32 v{b0}, v14, v{lo}'); a(f'v_fmac_f32 v{b1}, v14, v{hi}')
        for k in range(4): a(f'v_cvt_pk_bf16_f32 v{U+8+4*rr+k}, v{quad(0,0,rr)+k}, v{quad(0,1,rr)+k}')
        a(f'buffer_store_dwordx4 {vr(U+8+4*rr,4)}, v{vO}, {sr(SE,4)}, s{T1} offen offset:{256*rr} {cfg.ofl}')
    stamp(a, cfg, 'end', 'G')
    if cfg.stamps and 'end2' in cfg.gst:
        a('s_waitcnt vmcnt(0)'); stamp(a, cfg, 'end2', 'G')
    if cfg.stamps:
        stamp(a, cfg, 'c_end', 'G'); stampv(a, cfg, 'retry', 'G', sU0); srd(a, SA, sWS, WSZ); stamps_out(a, cfg, 10, SA)
    a('s_endpgm')

def cs_pairs(a, base, step, mults, tmp, outs):
    for g in range(len(mults)//4):
        an, c, s = tmp, tmp + 4, tmp + 8
        for k in range(4):
            m = mults[4*g+k]
            if m: a(f'v_fmamk_f32 v{an+k}, v{step}, {f32(float(m))}, v{base}')
        src = lambda k: an + k if mults[4*g+k] else base
        for k in range(4): a(f'v_cos_f32 v{c+k}, v{src(k)}')
        for k in range(4): a(f'v_sin_f32 v{s+k}, v{src(k)}')
        L = [(kind, dst, p) for p in range(2) for kind, dst in outs(2*g+p)]
        L.sort(key=lambda x: x[0] != 'c')
        for kind, dst, p in L:
            if kind == 'c': a(f'v_cvt_pk_bf16_f32 v{dst}, v{c+2*p}, v{c+2*p+1}')
            elif kind == 's': a(f'v_cvt_pk_bf16_f32 v{dst}, v{s+2*p}, v{s+2*p+1}')
            else: a(f'v_cvt_pk_bf16_f32 v{dst}, -v{s+2*p}, -v{s+2*p+1}')

def gen_F(a, cfg):
    a0 = a
    vN, vQ, vL16, vCN, vONE = 2, 3, 12, 4, 5
    vE2, vMA, vMB, vNf, vQf, vN4 = 6, 7, 8, 9, 10, 15
    M1, M2, M4, M5, N8, N64, WF, IN, WK, PK = 16, 48, 72, 96, 128, 152, 184, 200, 232, 248
    sB, sK1, sROT, sPAIR = 58, 59, 60, 61
    mK0, mK5, mK04 = 62, 64, 66
    sWD = 68; sW2D = 44
    sE2, sE1, sIH, sKH = 70, 72, 74, 75
    a0.label('L_F')
    a('s_barrier')
    t = WK
    a(f'v_and_b32 v{vN}, 15, v1'); a(f'v_lshrrev_b32 v{vQ}, 4, v1')
    if cfg.prio0: a(f's_setprio {cfg.prio0}')
    if cfg.w1t:
        srd(a, SB, sW1, 512*2752)
        a(f's_mul_i32 s{T0}, s2, 5504'); a(f's_mul_i32 s{T1}, s{sW}, {22*64}'); a(f's_add_u32 s{T0}, s{T0}, s{T1}'); a(f'v_lshlrev_b32 v{t}, 6, v1')
        a(f's_mov_b64 exec, {(1 << 22) - 1}'); a(f'buffer_load_dword v199, v{t}, {sr(SB,4)}, s{T0} offen'); a('s_mov_b64 exec, -1')
    if cfg.stgBy == 'F':
        stg = Staging(a, cfg, IN); stg.w2(); stg.addr(); stg.w()
    if cfg.prio0: a('s_setprio 0')
    stamp(a, cfg, 'iss', 'F')
    a(f's_load_dwordx2 {sr(sNON,2)}, {sr(sWS,2)}, {NONCE}')
    srd(a, SA, sWS, WSZ)
    a(f'v_mov_b32 v{vONE}, 1')
    if 'G' in cfg.abl:
        lds_arrive(a, vCN, cGO, vONE); a(f'v_add_u32 v14, s{sW}, v{vCN}'); a(f'ds_write_b8 v14, v{vONE} offset:{4*kS}'); a.wait(lg=0); nonce(a); a('s_branch L_FQ')
    LW, LM, P0, P1 = M4, 188, 168, 176
    vSG, vAL, vAU, vMA_, vMB_, vT2 = M5, M5 + 3, M5 + 4, M5 + 5, M5 + 6, M5 + 7
    vWD, vMD, vD2 = 192, 193, 194
    mZ, mP = 76, 78
    def perm_addr(a):
        vK, vC = t, t + 1
        a(f's_cmp_eq_u32 s{sG0}, 0'); a(f's_cselect_b64 {sr(mZ,2)}, -1, 0')
        a(f'v_lshrrev_b32 v{vK}, 3, v1'); a(f'v_and_b32 v{t+2}, 7, v1'); a(f'v_lshl_add_u32 v{vC}, v{t+2}, 3, v{vK}')
        a(f's_lshl_b32 s{T2}, s{sW}, 6'); a(f'v_add_u32 v{vC}, s{T2}, v{vC}')
        a(f'v_mul_u32_u24 v{vWD}, {cfg.SW}, v{vK}'); a(f'v_lshl_add_u32 v{vWD}, v{t+2}, 4, v{vWD}'); a(f's_lshl_b32 s{T1}, s{sW}, 7'); a(f'v_add_u32 v{vWD}, s{T1}, v{vWD}')
        a(f'v_cmp_eq_u32 vcc, 0, v{vC}'); a(f'v_mov_b32 v{t+7}, {OOB}'); a(f'v_cndmask_b32 v{vWD}, v{vWD}, v{t+7}, vcc')
        a(f's_lshl_b32 s{T0}, s{sG0}, 1'); a(f's_and_b32 s{T0}, s{T0}, 15'); a(f's_sub_u32 s{T1}, 16, s{T0}'); a(f's_and_b32 s{T1}, s{T1}, 15')
        a(f's_add_u32 s{T0}, s{T0}, {FA}'); a(f's_add_u32 s{T1}, s{T1}, {FA + 8*WP + 512}')
        a(f'v_cmp_lt_u32 vcc, 4, v{vK}'); a(f's_and_b64 vcc, vcc, {sr(mZ,2)}'); a(f'v_mov_b32 v{t+3}, {16*WP}'); a(f'v_cndmask_b32 v{t+4}, 0, v{t+3}, vcc')
        a(f'v_lshlrev_b32 v{vC}, 1, v{vC}'); a(f'v_add3_u32 v{vAL}, v{vC}, s{T0}, v{t+4}')
        a(f'v_sub_u32 v{vAU}, s{T1}, v{vC}'); a(f'v_add_u32 v{vAU}, v{vAU}, v{t+4}')
        a(f'v_and_b32 v{t+5}, 3, v{vK}'); a(f'v_cmp_eq_u32 vcc, 0, v{t+5}'); a(f's_and_b64 {sr(mP,2)}, vcc, {sr(mZ,2)}')
        a(f'v_add_u32 v{t+5}, v{vAL}, v{t+3}'); a(f'v_cndmask_b32 v{vAU}, v{vAU}, v{t+5}, {sr(mP,2)}')
        a(f'v_mov_b32 v{vSG}, 0x80000000'); a(f'v_cndmask_b32 v{vSG}, v{vSG}, 0, {sr(mP,2)}')
        a(f'v_bfe_u32 v{t}, v1, 2, 1'); a(f'v_bfe_u32 v{t+1}, v1, 3, 1'); a(f'v_and_b32 v{t+2}, 3, v1')
        a(f'v_mul_u32_u24 v{t+4}, {16*WP}, v{t}'); a(f'v_cndmask_b32 v{t+4}, 0, v{t+4}, {sr(mZ,2)}')
        a(f'v_cndmask_b32 v{t+5}, v{t}, v{t+1}, {sr(mZ,2)}'); a(f'v_lshlrev_b32 v{t+5}, 9, v{t+5}')
        a(f'v_mul_u32_u24 v{t+6}, {WP}, v{t+2}'); a(f'v_add3_u32 v{t+4}, v{t+4}, v{t+5}, v{t+6}')
        a(f'v_add_u32 v{vMA_}, s{T0}, v{t+4}'); a(f's_sub_u32 s{T1}, s{T1}, 512'); a(f'v_add_u32 v{vMB_}, s{T1}, v{t+4}')
        a(f's_mul_i32 s{T0}, s{sG0}, {8*cfg.SW}'); a(f's_lshl_b32 s{T1}, s{sJ}, 10'); a(f's_add_u32 s{sWD}, s{T0}, s{T1}'); a(f's_add_u32 s{sWD}, s{sWD}, {WB}')
        a(f'v_lshlrev_b32 v{t+4}, 9, v{t}'); a(f'v_add_u32 v{t+4}, s{sWD}, v{t+4}')
        a(f's_lshl_b32 s{T1}, s{sJ}, 4'); a(f's_add_u32 s{T1}, s{T1}, {WBX}'); a(f'v_lshlrev_b32 v{t+5}, 7, v{t}'); a(f'v_add_u32 v{t+5}, s{T1}, v{t+5}')
        a(f'v_cmp_eq_u32 vcc, 0, v{t+1}'); a(f'v_cndmask_b32 v{vMD}, v{t+5}, v{t+4}, vcc'); a(f'v_lshl_add_u32 v{vMD}, v{t+2}, 2, v{vMD}')
        a(f's_cmp_eq_u32 s{sG0}, 0'); a(f's_cselect_b32 s{T1}, 16, 8'); a(f'v_cmp_gt_u32 vcc, s{T1}, v1'); a(f'v_cndmask_b32 v{vMD}, v{t+7}, v{vMD}, vcc')
        a(f'v_bfe_u32 v{t}, v1, 2, 2'); a(f'v_lshlrev_b32 v{vT2}, 10, v{t}'); a(f'v_bfe_u32 v{t}, v1, 1, 1'); a(f'v_lshl_add_u32 v{vT2}, v{t}, 7, v{vT2}')
        a(f'v_and_b32 v{t}, 1, v1'); a(f'v_lshl_add_u32 v{vT2}, v{t}, 3, v{vT2}'); a(f'v_lshl_add_u32 v{vT2}, v{vQ}, 4, v{vT2}')
        a(f's_lshl_b32 s{T0}, s{sW}, 8'); a(f'v_add_u32 v{vT2}, s{T0}, v{vT2}')
        a(f's_mov_b32 s{T1}, {REG}'); a(f'v_mul_lo_u32 v{vD2}, v{vQ}, s{T1}'); a(f'v_and_b32 v{t}, 1, v1'); a(f'v_lshl_add_u32 v{vD2}, v{t}, 10, v{vD2}')
        a(f'v_bfe_u32 v{t}, v1, 1, 3'); a(f'v_lshl_add_u32 v{vD2}, v{t}, 4, v{vD2}'); a(f's_lshl_b32 s{T0}, s{sW}, 7'); a(f'v_add_u32 v{vD2}, s{T0}, v{vD2}')
        a(f's_lshr_b32 s{T2}, s{sTK}, 1'); a(f's_lshl_b32 s{T2}, s{T2}, 11'); a(f's_and_b32 s{T1}, s{sTK}, 1'); a(f's_lshl_b32 s{T1}, s{T1}, 9'); a(f's_add_u32 s{T2}, s{T2}, s{T1}')
        a(f's_add_u32 s{sW2D}, s{T2}, {W2P}'); a(f's_add_u32 s{sW2D+1}, s{sW2D}, {4*REG}')
    def job_r(a):
        kf_spin(a, vCN, kW, IN, sleep=True); stamp(a, cfg, 'kW', 'F')
        for up in range(2):
            for ar in range(2):
                for r in range(4): a(f'ds_read_u16 v{LW+8*up+4*ar+r}, v{vAU if up else vAL} offset:{(4*ar+r)*WP}')
            if up == 0:
                for u in range(2):
                    for hf in range(2): a(f'ds_read_b64_tr_b16 {vr(P0+4*u+2*hf,2)}, v{vT2} offset:{FB + 4096*hf + 64*u}')
        for r in range(4): a(f'v_lshl_or_b32 v{P1+r}, v{LW+4+r}, 16, v{LW+r}')
        a(f'ds_read_u16 v{LM}, v{vMA_}'); a(f'ds_read_u16 v{LM+1}, v{vMA_} offset:{4*WP}'); a(f'ds_read_u16 v{LM+2}, v{vMB_}'); a(f'ds_read_u16 v{LM+3}, v{vMB_} offset:{4*WP}')
        for r in range(4):
            a(f'v_lshl_or_b32 v{P1+4+r}, v{LW+12+r}, 16, v{LW+8+r}'); a(f'v_xor_b32 v{P1+4+r}, v{P1+4+r}, v{vSG}')
        for k in range(4): a(f'v_lshlrev_b32 v{LM+k}, 16, v{LM+k}')
        a(f'v_add_f32 v{LM}, v{LM}, v{LM+2}'); a(f'v_sub_f32 v{LM+1}, v{LM+1}, v{LM+3}')
        a(f'v_mul_f32 v{LM}, 0.5, v{LM}'); a(f'v_mul_f32 v{LM+1}, 0.5, v{LM+1}'); a(f'v_cvt_pk_bf16_f32 v{LM}, v{LM}, v{LM+1}')
    mark = {}
    def job_w(a):
        a(f's_cmp_ge_u32 s{sTK}, 172'); h = a.skip_begin('s_cbranch_scc1')
        for u in range(2): a(f'buffer_store_dwordx4 {vr(P0+4*u,4)}, v{vD2}, {sr(SA,4)}, s{sW2D+u} offen sc1')
        a.skip_end(h, drop=True)
        mark['w'] = len(a.vq)
    def job_b(a):
        a(f'buffer_store_dwordx4 {vr(P1,4)}, v{vWD}, {sr(SA,4)}, s{sWD} offen sc1')
        a(f'buffer_store_dwordx4 {vr(P1+4,4)}, v{vWD}, {sr(SA,4)}, s{sWD} offen offset:512 sc1')
        a(f's_cmp_lg_u32 s{sW}, 3'); h = a.skip_begin('s_cbranch_scc1')
        a(f'buffer_store_dword v{LM}, v{vMD}, {sr(SA,4)}, 0 offen sc1')
        a.skip_end(h, drop=True)
    def job_c(a):
        if not cfg.clrF: return
        for k in range(4): a(f'v_mov_b32 v{P1+8+k}, -1')
        for tt in range(2): a(f'buffer_store_dwordx4 {vr(P1+8,4)}, v{vE2}, {sr(SA,4)}, s{sE2+tt} offen sc1')
    def job_h(a):
        if cfg.hold: a(f'v_add_u32 v14, s{sW}, v{vCN}'); a(f'ds_write_b8 v14, v{vONE} offset:{4*kS}')
        stamp(a, cfg, 'wiss', 'F')
    def signal(a, base, stride, cnt, younger):
        f0 = WK
        a(f'v_mov_b32 v{f0}, s{sNON}'); a(f'v_mov_b32 v{f0+1}, s{sNON+1}'); a(f'v_mov_b32 v{f0+2}, 0')
        a(f's_mul_i32 s{T0}, s2, {stride}'); a(f's_add_u32 s{T0}, s{T0}, {base}')
        a(f's_waitcnt vmcnt({younger})')
        a('s_mov_b64 exec, 1'); a(f'ds_add_rtn_u32 v{f0+3}, v{vCN}, v{vONE} offset:{cnt}')
        a(f'v_readfirstlane_b32 s{T1}, v{f0+3}')
        a(f's_cmp_lg_u32 s{T1}, 3'); h = a.skip_begin('s_cbranch_scc1')
        a(f'buffer_store_dwordx2 {vr(f0,2)}, v{f0+2}, {sr(SA,4)}, s{T0} offen sc1')
        a.skip_end(h, drop=True)
        a('s_mov_b64 exec, -1')
    def poll(a, base, stride, cnt, name, pr, hook=None):
        lgo = a.lab('go'); lp = a.lab('poll')
        a(f's_mul_i32 s{T0}, s{sW}, {64*stride}'); a(f's_add_u32 s{T0}, s{T0}, {base}'); a(f's_mov_b32 s{T1}, 0'); a(f'v_mul_u32_u24 v{pr+2}, {stride}, v1')
        a.label(lp)
        a(f'buffer_load_dwordx2 {vr(pr,2)}, v{pr+2}, {sr(SA,4)}, s{T0} offen sc1')
        if hook: a('s_waitcnt vmcnt(1)'); hook(a)
        a('s_waitcnt vmcnt(0)')
        a(f'v_xor_b32 v{pr}, s{sNON}, v{pr}'); a(f'v_xor_b32 v{pr+1}, s{sNON+1}, v{pr+1}'); a(f'v_or_b32 v{pr}, v{pr}, v{pr+1}')
        a(f'v_cmp_ne_u32 vcc, 0, v{pr}')
        a(f's_cbranch_vccz {lgo}')
        a(f's_sleep {cfg.slpA}'); a(f's_add_u32 s{T1}, s{T1}, 1'); a(f's_cmp_lt_u32 s{T1}, {cfg.spin}'); a(f's_cbranch_scc1 {lp}')
        a.label(lgo)
        lds_arrive(a, vCN, cnt, vONE)
        stampv(a, cfg, name, 'F', T1)
    F64, F8 = 128, 144
    a(f's_and_b32 s{sIH}, s{sW}, 1'); a(f's_lshr_b32 s{sKH}, s{sW}, 1')
    a(f'v_cvt_f32_u32 v{vNf}, v{vN}'); a(f'v_cvt_f32_u32 v{vQf}, v{vQ}')
    a(f's_lshl_b32 s{T0}, s{sKH}, 4'); a(f'v_add_u32 v{t}, s{T0}, v{vN}'); a(f'v_cmp_eq_u32 {sr(mK0,2)}, 0, v{t}')
    a(f'v_cvt_f32_u32 v{t}, v{t}'); a(f'v_mul_f32 v{t}, {f32(1/64)}, v{t}'); a(f'v_mul_f32 v{t+1}, {f32(8.0)}, v{vQf}'); a(f'v_mul_f32 v{t+1}, v{t+1}, v{t}')
    cs_pairs(a, t+1, t, [32*st + e for st in range(2) for e in range(8)], t+2,
             lambda pi: [('c', F64 + 8*(pi//4) + pi % 4), ('m', F64 + 8*(pi//4) + 4 + pi % 4)])
    a(f'v_mov_b32 v{t}, 0xbf803f80')
    for st in range(2):
        for k in range(4): a(f'v_cndmask_b32 v{F64+8*st+4+k}, v{F64+8*st+4+k}, v{t}, {sr(mK0,2)}')
    a(f'v_and_b32 v{t}, 1, v1'); a(f'v_lshlrev_b32 v{t}, 4, v{t}'); a(f'v_mov_b32 v{t+1}, 0xffff'); a(f'v_lshlrev_b32 v{t}, v{t}, v{t+1}')
    a(f'v_and_b32 v{t+1}, 2, v1'); a(f'v_cmp_eq_u32 vcc, 0, v{t+1}')
    a(f'v_lshrrev_b32 v{vN4}, 2, v{vN}'); a(f'v_cvt_f32_u32 v{vN4}, v{vN4}'); a(f'v_mul_f32 v{vN4}, {f32(0.125)}, v{vN4}')
    a(f'v_cndmask_b32 v{vMA}, 0, v{t}, vcc'); a(f'v_xor_b32 v{vMB}, v{vMA}, v{t}')
    def dft8(a, t, emit):
        a(f'v_add_f32 v{t}, 0.5, v{vN4}'); a(f'v_add_f32 v{t+1}, 4.0, v{vQf}')
        for i in range(2):
            for k in range(2): a(f'v_mul_f32 v{t+2+2*i+k}, v{t if i else vN4}, v{t+1 if k else vQf}')
        for u in range(4): a(f'v_cos_f32 v{t+6+u}, v{t+2+u}')
        for u in range(4): a(f'v_sin_f32 v{t+10+u}, v{t+2+u}')
        for u in range(4): a(f'v_cvt_pk_bf16_f32 v{t+6+u}, v{t+6+u}, v{t+6+u}')
        for u in range(4): a(f'v_cvt_pk_bf16_f32 v{t+2+u}, -v{t+10+u}, -v{t+10+u}')
        for u in range(4): a(f'v_cvt_pk_bf16_f32 v{t+10+u}, v{t+10+u}, v{t+10+u}')
        for u in range(4):
            for kind, src in (('c', t+6+u), ('m', t+2+u), ('s', t+10+u)):
                d = emit(u >> 1, u & 1, kind)
                a(f'v_and_b32 v{d}, v{src}, v{vMA}'); a(f'v_and_b32 v{d+1}, v{src}, v{vMB}')
    a(f's_mul_i32 s{T0}, s{sIH}, {f32(0.5)}'); a(f'v_add_f32 v{t}, s{T0}, v{vN4}'); a(f'v_add_f32 v{t+1}, 4.0, v{vQf}')
    a(f'v_mul_f32 v{t+2}, v{t}, v{vQf}'); a(f'v_mul_f32 v{t+3}, v{t}, v{t+1}')
    for u in range(2): a(f'v_cos_f32 v{t+4+u}, v{t+2+u}')
    for u in range(2): a(f'v_sin_f32 v{t+6+u}, v{t+2+u}')
    for u in range(2): a(f'v_cvt_pk_bf16_f32 v{t+4+u}, v{t+4+u}, v{t+4+u}')
    for u in range(2): a(f'v_cvt_pk_bf16_f32 v{t+2+u}, -v{t+6+u}, -v{t+6+u}')
    for u in range(2): a(f'v_cvt_pk_bf16_f32 v{t+6+u}, v{t+6+u}, v{t+6+u}')
    for u in range(2):
        for o_, src in ((0, t+4+u), (8, t+2+u), (4, t+6+u)):
            a(f'v_and_b32 v{F8+o_+2*u}, v{src}, v{vMA}'); a(f'v_and_b32 v{F8+o_+2*u+1}, v{src}, v{vMB}')
    stamp(a, cfg, 'con1', 'F')
    vTR, vE1 = 11, 13
    a(f'v_lshlrev_b32 v{t}, 3, v{vQ}'); a(f'v_bfe_u32 v{t+1}, v1, 2, 2'); a(f'v_add_u32 v{t}, v{t}, v{t+1}'); a(f'v_mul_u32_u24 v{t}, {XP}, v{t}')
    a(f'v_and_b32 v{t+1}, 3, v1'); a(f'v_lshl_add_u32 v{t}, v{t+1}, 7, v{t}')
    a(f's_lshl_b32 s{T0}, s{sJ}, 4'); a(f'v_add_u32 v{vTR}, s{T0}, v{t}')
    a(f'v_lshrrev_b32 v{t}, 2, v{vN}'); a(f'v_and_b32 v{t+1}, 2, v{vQ}'); a(f'v_lshl_add_u32 v{t}, v{t}, 3, v{t+1}')
    a(f's_lshl_b32 s{T0}, s{sKH}, 5'); a(f's_lshl_b32 s{T1}, s{sIH}, 2'); a(f's_add_u32 s{T0}, s{T0}, s{T1}'); a(f'v_add_u32 v{t}, s{T0}, v{t}')
    a(f'v_mul_u32_u24 v{t}, {cfg.S1}, v{t}'); a(f'v_and_b32 v{t+1}, 3, v{vN}'); a(f'v_lshl_add_u32 v{t}, v{t+1}, 5, v{t}')
    a(f'v_and_b32 v{t+1}, 1, v{vQ}'); a(f'v_lshl_add_u32 v{vE1}, v{t+1}, 4, v{t}')
    a(f's_lshl_b32 s{T0}, s{sG0}, 3'); a(f's_add_u32 s{sB}, s{T0}, s{sJ}')
    a(f's_lshl_b32 s{T0}, s{sB}, 7'); a(f's_add_u32 s{sE1}, s{T0}, {E1}'); a(f's_add_u32 s{sE1+1}, s{sE1}, {cfg.S1}')
    a(f'v_cmp_eq_u32 vcc, 0, v{vQ}'); a(f's_and_b64 {sr(mK04,2)}, vcc, {sr(mK0,2)}'); a(f's_andn2_b64 {sr(mK5,2)}, {sr(mK0,2)}, vcc')
    a(f's_cmp_eq_u32 s{sIH}, 0'); a(f's_cselect_b64 {sr(mK5,2)}, 0, {sr(mK5,2)}')
    perm_addr(a)
    a(f's_cmp_eq_u32 s{sG0}, 0'); a(f's_cselect_b32 s{T0}, 1, 0')
    a(f's_and_b32 s{T1}, s{sJ}, 3'); a(f's_cmp_eq_u32 s{T1}, 0'); a(f's_cselect_b32 s{sPAIR}, s{T0}, 0')
    a(f's_cmp_gt_u32 s{sJ}, 4'); a(f's_cselect_b32 s{T1}, s{T0}, 0')
    a(f's_mul_i32 s{sROT}, s{T1}, {f32(0.25)}')
    a(f's_lshr_b32 s{T2}, s{sW}, 1')
    a(f's_and_b32 s{T2}, s{T2}, s{sPAIR}'); a(f's_or_b32 s{T1}, s{T1}, s{T2}'); a(f's_lshl_b32 s{T1}, s{T1}, 5')
    a(f's_add_u32 s{sK1}, s{sG0}, s{T1}')
    nonce(a)
    t = IN
    def con_M1(a):
        if 'f' in cfg.abl: return
        a(f's_lshl_b32 s{T0}, s{sPAIR}, 1'); a(f's_andn2_b32 s{T0}, s{sW}, s{T0}'); a(f's_lshl_b32 s{T0}, s{T0}, 7'); a(f's_add_u32 s{T0}, s{T0}, s{sJ}')
        a(f'v_lshlrev_b32 v{t}, 3, v{vN}'); a(f'v_add_u32 v{t}, s{T0}, v{t}'); a(f'v_cvt_f32_u32 v{t}, v{t}'); a(f'v_mul_f32 v{t}, {f32(1/512)}, v{t}')
        a(f'v_mul_f32 v{t+1}, 4.0, v{vQf}'); a(f'v_mul_f32 v{t+1}, v{t+1}, v{t}')
        cs_pairs(a, t+1, t, [16*sg + e for sg in range(4) for e in range(4)], t+2,
                 lambda pi: [('c', M1 + 8*(pi//2) + pi % 2), ('s', M1 + 8*(pi//2) + 2 + pi % 2), ('m', M1 + 8*(pi//2) + 4 + pi % 2), ('c', M1 + 8*(pi//2) + 6 + pi % 2)])
    def con_M2(a):
        if 'f' in cfg.abl: return
        for t2 in range(2):
            a(f'v_lshlrev_b32 v{t}, 6, v{vN}'); a(f's_add_u32 s{T0}, s{sK1}, {1024*t2}'); a(f'v_add_u32 v{t}, s{T0}, v{t}'); a(f'v_cvt_f32_u32 v{t}, v{t}'); a(f'v_mul_f32 v{t}, {f32(1/2048)}, v{t}')
            a(f'v_mul_f32 v{t+1}, 4.0, v{vQf}'); a(f'v_mul_f32 v{t+1}, v{t+1}, v{t}')
            cs_pairs(a, t+1, t, [16*tt + r for tt in range(2) for r in range(4)], t+2,
                     lambda pi: [('c', M2 + 12*t2 + pi), ('s', M2 + 12*t2 + 4 + pi), ('m', M2 + 12*t2 + 8 + pi)])
    def con_M4(a):
        if 'f' in cfg.abl: return
        a(f'v_lshlrev_b32 v{t+14}, 8, v{vQ}'); a(f'v_add_u32 v{t+14}, s{sK1}, v{t+14}'); a(f'v_cvt_f32_u32 v{t+14}, v{t+14}'); a(f'v_mul_f32 v{t+14}, {f32(1/64)}, v{t+14}')
        for tt in range(2):
            a(f'v_add_f32 v{t}, {f32(16.0*tt)}, v{vNf}'); a(f'v_mul_f32 v{t}, {f32(1/32)}, v{t}')
            a(f'v_fma_f32 v{t+1}, v{t}, v{t+14}, s{sROT}')
            cs_pairs(a, t+1, t, [16*t2 + r for t2 in range(2) for r in range(4)], t+2,
                     lambda pi: [('c', M4 + 12*tt + pi), ('s', M4 + 12*tt + 4 + pi), ('m', M4 + 12*tt + 8 + pi)])
    def con_M5(a):
        if 'f' in cfg.abl: return
        a(f's_lshl_b32 s{T0}, s{sW}, 4'); a(f'v_add_u32 v{t}, s{T0}, v{vN}'); a(f'v_cvt_f32_u32 v{t}, v{t}'); a(f'v_mul_f32 v{t}, {f32(1/64)}, v{t}')
        a(f'v_lshlrev_b32 v{t+1}, 5, v{vQ}'); a(f'v_add_u32 v{t+1}, s{sJ}, v{t+1}'); a(f'v_cvt_f32_u32 v{t+1}, v{t+1}'); a(f'v_mul_f32 v{t+1}, {f32(0.125)}, v{t+1}'); a(f'v_mul_f32 v{t+1}, v{t+1}, v{t}')
        cs_pairs(a, t+1, t, [16*sg + e for sg in range(4) for e in range(4)], t+2,
                 lambda pi: [('c', M5 + 8*(pi//2) + pi % 2), ('m', M5 + 8*(pi//2) + 2 + pi % 2), ('s', M5 + 8*(pi//2) + 4 + pi % 2), ('c', M5 + 8*(pi//2) + 6 + pi % 2)])
    conj = {'1': con_M1, '2': con_M2, '4': con_M4, '5': con_M5}
    for c in cfg.pre: conj[c](a)
    if cfg.prioF: a(f's_setprio {cfg.prioF}')
    stamp(a, cfg, 'perm', 'F')
    stamp(a, cfg, 'preX', 'F')
    if cfg.stgBy == 'F':
        a('s_waitcnt vmcnt(0)'); a(f'v_add_u32 v14, s{sW}, v{vCN}'); a(f'ds_write_b8 v14, v{vONE} offset:{4*kW}')
    kf_spin(a, vCN, kX, IN, sleep='X' in cfg.slp)
    stamp(a, cfg, 'X', 'F')
    assert not cfg.pre
    DA, C1, PB, BM, C2, Z, O = IN, M1, M2, M2 + 16, WK, IN, IN + 16
    for ih in range(2):
        for st in range(2):
            for tt in range(2):
                for hf in range(2):
                    a(f'ds_read_b64_tr_b16 {vr(DA+16*ih+8*st+4*tt+2*hf,2)}, v{vTR} offset:{XT + (32*st+4*hf)*XP + 512*tt + 8*ih}')
    for ih in range(2):
        for st in range(2):
            for tt in range(2):
                for c in range(2):
                    d = C1 + 16*ih + 8*c + 4*tt
                    a(f'{MF16} {vr(d,4)}, {vr(DA+16*ih+8*st+4*tt,4)}, {vr(F64+8*st+4*c,4)}, {vr(d,4) if st else 0}')
    cc, ss, mm = F8, F8 + 4, F8 + 8
    for ih in range(2):
        for k in range(8): a(f'v_cvt_pk_bf16_f32 v{PB+8*ih+k}, v{C1+16*ih+2*k}, v{C1+16*ih+2*k+1}')
        for k in range(4): a(f'v_cndmask_b32 v{BM+4*ih+k}, v{PB+8*ih+4+k}, 0, {sr(mK0,2)}')
        a(f'{MF16} {vr(C2+8*ih,4)}, {vr(cc,4)}, {vr(PB+8*ih,4)}, 0')
        a(f'{MF16} {vr(C2+8*ih+4,4)}, {vr(mm,4)}, {vr(PB+8*ih,4)}, 0')
        a(f'{MF16} {vr(Z+8*ih,4)}, {vr(cc,4)}, {vr(PB+8*ih+4,4)}, 0')
        a(f'{MF16} {vr(Z+8*ih+4,4)}, {vr(mm,4)}, {vr(PB+8*ih+4,4)}, 0')
        a(f'{MF16} {vr(C2+8*ih,4)}, {vr(ss,4)}, {vr(BM+4*ih,4)}, {vr(C2+8*ih,4)}')
        a(f'{MF16} {vr(C2+8*ih+4,4)}, {vr(cc,4)}, {vr(BM+4*ih,4)}, {vr(C2+8*ih+4,4)}')
    for ih in range(2):
        for k in range(4): a(f'v_cvt_pk_bf16_f32 v{PK+4*ih+k}, v{Z+8*ih+2*k}, v{Z+8*ih+2*k+1}')
        for k in range(4): a(f'v_cvt_pk_bf16_f32 v{O+4*ih+k}, v{C2+8*ih+2*k}, v{C2+8*ih+2*k+1}')
        for k in range(2): a(f'v_cndmask_b32 v{O+4*ih+2+k}, v{O+4*ih+2+k}, v{PK+4*ih+k}, {sr(mK04,2)}')
        for k in range(4): a(f'v_cndmask_b32 v{O+4*ih+k}, v{O+4*ih+k}, v{PK+4*ih+k}, {sr(mK5,2)}')
        for k in range(4): a(f'v_or_b32 v{O+4*ih+k}, 1, v{O+4*ih+k}')
    for k in range(4): a(f'v_permlane16_swap_b32 v{O+k}, v{O+4+k}')
    def job_E(a):
        for t2 in range(2): a(f'buffer_store_dwordx4 {vr(O+4*t2,4)}, v{vE1}, {sr(SA,4)}, s{sE1+t2} offen sc1', tag='e1')
    def job_d(a):
        stamp(a, cfg, 'pred', 'F'); kf_spin(a, vCN, kD, IN, sleep=True); stamp(a, cfg, 'd', 'F')
    stamp(a, cfg, 'fft1', 'F')
    HB, XS = N64, N64 + 16
    def fixups(a):
        t = IN + 4
        a(f's_cmp_eq_u32 s{sPAIR}, 0'); h = a.skip_begin('s_cbranch_scc1')
        a(f's_cmp_lg_u32 s{sJ}, 0'); h2 = a.skip_begin('s_cbranch_scc1')
        a(f's_and_b32 s{T0}, s{sW}, 1'); a(f'v_or_b32 v{t}, s{T0}, v{vN}'); a(f'v_cmp_eq_u32 vcc, 0, v{t}'); a(f'v_mov_b32 v{t}, 0xbf803f80')
        for sg in range(4):
            for k in range(2): a(f'v_cndmask_b32 v{M1+8*sg+4+k}, v{M1+8*sg+4+k}, v{t}, vcc')
        a(f'v_cmp_eq_u32 vcc, 0, v{vQ}'); a(f'v_mov_b32 v{t+2}, 0xffff')
        a(f'v_mov_b32 v{t}, 0x3f00'); a(f'v_bfi_b32 v{t}, v{t+2}, v{t}, v{M5}'); a(f'v_cndmask_b32 v{M5}, v{M5}, v{t}, vcc')
        a(f'v_and_b32 v{t}, 1, v{vN}'); a(f'v_lshlrev_b32 v{t}, 15, v{t}'); a(f'v_or_b32 v{t}, 0x3f00, v{t}'); a(f'v_bfi_b32 v{t}, v{t+2}, v{t}, v{M5+2}'); a(f'v_cndmask_b32 v{M5+2}, v{M5+2}, v{t}, vcc')
        a.skip_end(h2)
        for sg in range(2):
            for k in range(4):
                a(f'v_mov_b32 v{M5+8*(sg+2)+4+k}, v{M5+8*sg+k}'); a(f'v_mov_b32 v{M5+8*(sg+2)+k}, 0'); a(f'v_mov_b32 v{M5+8*sg+4+k}, 0')
        a(f's_cmp_ge_u32 s{sW}, 2'); a(f's_cselect_b64 vcc, -1, 0')
        for sg in range(4):
            for k in range(2):
                for o in (0, 4):
                    a(f'v_cndmask_b32 v{M1+8*sg+o+2+k}, 0, v{M1+8*sg+o+k}, vcc'); a(f'v_cndmask_b32 v{M1+8*sg+o+k}, v{M1+8*sg+o+k}, 0, vcc')
        a.skip_end(h)
    vIN, vWB, sI, sWb, WR = 13, 11, 72, 74, N8
    def job_k(a):
        a(f'v_lshrrev_b32 v{vE2}, 1, v{vQ}'); a(f'v_lshlrev_b32 v{vE2}, 7, v{vE2}'); a(f'v_lshl_add_u32 v{vE2}, v{vN}, 10, v{vE2}'); a(f'v_and_b32 v{vIN}, 1, v{vQ}'); a(f'v_lshl_add_u32 v{vE2}, v{vIN}, 4, v{vE2}')
        a(f's_lshr_b32 s{T0}, s{sG0}, 2'); a(f's_lshl_b32 s{T0}, s{T0}, 3'); a(f's_add_u32 s{T0}, s{T0}, s{sJ}'); a(f's_mul_i32 s{T0}, s{T0}, {cfg.S1}')
        a(f's_and_b32 s{T1}, s{sG0}, 3'); a(f's_lshl_b32 s{T1}, s{T1}, 5'); a(f's_add_u32 s{T0}, s{T0}, s{T1}'); a(f's_lshl_b32 s{T1}, s{sW}, 8'); a(f's_add_u32 s{T0}, s{T0}, s{T1}')
        a(f's_add_u32 s{sE2}, s{T0}, {E1}'); a(f's_add_u32 s{sE2+1}, s{sE2}, 16384')
        a(f'v_lshlrev_b32 v{vWB}, 10, v{vQ}'); a(f'v_lshl_add_u32 v{vWB}, v{vN}, 4, v{vWB}')
        a(f's_mul_i32 s{T0}, s{sB}, {cfg.SW}'); a(f's_add_u32 s{T0}, s{T0}, s{T1}'); a(f's_add_u32 s{sWb}, s{T0}, {WB}'); a(f's_add_u32 s{sWb+1}, s{sWb}, 4096')
        stamp(a, cfg, 'prepoll', 'F')
        if cfg.pollAt is not None: kf_spin(a, vCN, cfg.pollAt, IN + 4, sleep=True)
        stamp(a, cfg, 'poll', 'F')
    def job_a(a):
        poll(a, FLAGA, cfg.FS, cGO, 'pollsA', IN, job_N if ('M' in cfg.ford and 'N' not in cfg.ford) else None)
        lds_spin(a, vCN, cGO, 4, IN + 3, sleep='A' in cfg.slp)
        stamp(a, cfg, 'go', 'F')
    def job_i(a):
        for tt in range(2):
            a(f's_lshl_b32 s{T0}, s{sW}, 11'); a(f's_add_u32 m0, s{T0}, {FA + 1024*tt}')
            a(f'buffer_load_dwordx4 v{vE2}, {sr(SA,4)}, s{sE2+tt} offen sc1 lds', tag='in')
    def job_X(a):
        if 'B' in cfg.ford:
            if 'in' not in mark:
                a.wait_tag('in'); lds_arrive(a, vCN, cF1, vONE); mark['in'] = True
            kf_spin(a, vCN, kM, IN + 4, sleep=True); stamp(a, cfg, 'poll2', 'F')
            poll(a, FLAGA2, cfg.FS2, cGO2, 'pollsA2', IN)
            lds_spin(a, vCN, cGO2, 4, IN + 3, sleep=True)
            stamp(a, cfg, 'go2', 'F')
    def job_Y(a):
        for t2 in range(2): a(f'buffer_load_dwordx4 {vr(WR+4*t2,4)}, v{vWB}, {sr(SA,4)}, s{sWb+t2} offen sc1')
        a(f's_cmp_lg_u32 s{sB}, 0'); h = a.skip_begin('s_cbranch_scc1')
        a(f'v_lshlrev_b32 v{vWB}, 4, v{vQ}'); a(f's_lshr_b32 s{T0}, s{sW}, 1'); a(f's_lshl_b32 s{T0}, s{T0}, 7'); a(f's_add_u32 s{T0}, s{T0}, {WBX}')
        for t2 in range(2): a(f'buffer_load_dwordx4 {vr(XS+4*t2,4)}, v{vWB}, {sr(SA,4)}, s{T0} offen offset:{64*t2} sc1')
        a.skip_end(h, drop=True)
    def job_I(a):
        if 'in' not in mark:
            a.wait_tag('in'); lds_arrive(a, vCN, cF1, vONE)
    def job_M(a):
        if not cfg.nF: return
        sK, sAO, SCF = 76, 44, 40
        RW = NSLOT*3072; H, X, TMF = N8, N8 + 24, IN
        a(f's_mul_i32 s{T0}, s{sG0}, {REG}'); a(f's_add_u32 s{T0}, s{T0}, {ACT}'); srd(a, SCF, sWS, REG, f's{T0}')
        a(f's_min_u32 s{T0}, s{sJ}, 3'); a(f's_mul_i32 s{T1}, s{sJ}, 5'); a(f's_add_u32 s{T0}, s{T0}, s{T1}'); a(f's_lshr_b32 s{T1}, s{sW}, 1'); a(f's_mul_i32 s{T1}, s{T1}, 3'); a(f's_add_u32 s{T0}, s{T0}, s{T1}')
        a(f's_lshl_b32 s{T0}, s{T0}, 12'); a(f's_add_u32 s{sAO}, s{T0}, 4096'); a(f's_add_u32 s{sAO+1}, s{T0}, 8192')
        a(f's_cmp_ge_u32 s{sJ}, 3'); a(f's_cselect_b32 s{T1}, s{T1}, 0'); a(f's_cmp_eq_u32 s{T1}, 0'); a(f's_cselect_b32 s{sAO+1}, s{sAO+1}, {OOB}')
        a(f's_mov_b32 s{sK}, {f32(-1.4426950408889634)}'); a(f's_mov_b32 s{sK+1}, {f32(-1.4426950408889634)}'); a(f's_mov_b32 s{sK+2}, 0.5'); a(f's_mov_b32 s{sK+3}, 0.5')
        a(f's_mul_i32 s{T0}, s{sW}, {RW}'); a(f's_add_u32 s{T0}, s{T0}, {RING}'); a(f'v_add_u32 v{WK}, s{T0}, v{vL16}')
        a(f's_xor_b32 s{T0}, s{sW}, 1'); a(f's_mul_i32 s{T0}, s{T0}, {RW}'); a(f's_add_u32 s{T0}, s{T0}, {RING}'); a(f'v_add_u32 v{WK+1}, s{T0}, v{vL16}')
        a(f's_and_b32 s{T0}, s{sW}, 1'); a(f's_lshl_b32 s{T0}, s{T0}, 10'); a(f'v_add_u32 v{WK+2}, s{T0}, v{vL16}')
        kf_spin(a, vCN, kK, IN, sleep=True); stamp(a, cfg, 'kK', 'F')
        for k in range(2*cfg.nF):
            q = 12 - 2*cfg.nF + k
            a(f'ds_read_b128 {vr(H+4*k,4)}, v{WK} offset:{1024*(q + 2*cfg.nF)}'); a(f'ds_read_b128 {vr(X+4*k,4)}, v{WK+1} offset:{1024*q}')
        for k in range(cfg.nF):
            hh = 6 - cfg.nF + k; h = H + 8*k; o = TMF + 16 + 4*k
            for kk in range(4): a(f'v_pk_add_f32 {vr(h+2*kk,2)}, {vr(h+2*kk,2)}, {vr(X+8*k+2*kk,2)}')
            mish8(a, h, TMF, TMF + 8, o, sK)
            a(f'buffer_store_dwordx4 {vr(o,4)}, v{WK+2}, {sr(SCF,4)}, s{sAO + (hh >> 1) - 1} offen offset:{2048*(hh & 1)} sc1', tag='act')
        stamp(a, cfg, 'fmish', 'F')
    def job_N(a):
        if not cfg.nF: return
        a.wait_tag('act') if any(e['tag'] == 'act' for e in a.vq) else None
        a(f'v_add_u32 v14, s{sW}, v{vCN}'); a(f'ds_write_b8 v14, v{vONE} offset:{4*kF}')
    def job_A(a):
        signal(a, FLAGA, cfg.FS, cFA, 0); stamp(a, cfg, 'flag', 'F')
    def job_B(a):
        signal(a, FLAGA2, cfg.FS2, cFA2, 0); stamp(a, cfg, 'flag2', 'F')
    def unpackW(a, dst, src):
        a(f's_mov_b32 s{T0}, {f32(2.0**-19)}')
        for k in range(8):
            a(f'v_lshlrev_b32 v{dst+2*k}, 16, v{src+k}'); a(f'v_and_b32 v{dst+2*k+1}, 0xffff0000, v{src+k}')
        for k in range(16): a(f'v_mul_f32 v{dst+k}, s{T0}, v{dst+k}')
    jobs = dict(M=job_M, N=job_N, E=job_E, d=job_d, r=job_r, w=job_w, b=job_b, c=job_c, h=job_h, A=job_A, B=job_B, k=job_k, a=job_a, i=job_i, X=job_X, Y=job_Y, I=job_I, g=lambda a: gate_code(a, cfg, 128, WK + 8, WK + 4))
    jobs.update(conj)
    o = cfg.ford
    assert set(cfg.pre) <= set('12') and sorted(set('1245') - set(cfg.pre)) == sorted(c for c in o if c in '1245')
    before = lambda x, y: o.index(x) < o.index(y)
    assert all(before(*p) for p in ('rw', 'rb', 'r4', 'r5', 'bY', 'wY', 'cY', 'ka', 'ai', 'iX', 'XY', 'iI', 'ra', 'Aa', 'EA', 'Ek'))
    assert ('B' in o and before('b', 'B') and before('c', 'B') and before('w', 'B') and before('B', 'X')) or (before('b', 'A') and before('c', 'A') and before('w', 'A'))
    assert ('g' in o) == (cfg.gateAt == 'F') and ('g' not in o or all(before(*p) for p in ('wg', 'bg', 'cg', 'gY')))
    assert (cfg.nF > 0) == ('M' in o) and (not cfg.nF or (all(before(*p) for p in ('EM', 'wM', 'bM', 'AM')) and ('g' not in o or before('g', 'M')) and (before('M', 'N') if 'N' in o else before('M', 'a')) and before('M', 'Y')))
    for c in o: jobs[c](a)
    fixups(a)
    if not cfg.unpLate: unpackW(a, WF, WR)
    lds_spin(a, vCN, cF1, 4, IN)
    stamp(a, cfg, 'in', 'F')
    for u in range(8): a(f'ds_read_b128 {vr(IN+4*u,4)}, v{vL16} offset:{FA + 1024*u}')
    C1 = WK
    for sg in range(4):
        for tt in range(2):
            for c in range(2):
                d = C1 + 8*c + 4*tt
                a(f'{MF16} {vr(d,4)}, {vr(IN+8*sg+4*tt,4)}, {vr(M1+8*sg+4*c,4)}, {vr(d,4) if sg else 0}')
    for c in range(2):
        for k in range(4): a(f'v_cvt_pk_bf16_f32 v{PK+4*c+k}, v{C1+8*c+2*k}, v{C1+8*c+2*k+1}')
    if cfg.unpLate: unpackW(a, WF, WR)
    lsp = a.lab('special'); ljn = a.lab('join')
    a(f's_cmp_eq_u32 s{sB}, 0'); a(f's_cbranch_scc1 {lsp}')
    snap = (list(a.hist), list(a.vq), list(a.lq))
    Cre, Cim, Yre, Yim = IN, IN + 8, IN + 16, IN + 24
    for t2 in range(2):
        a(f'{MF16} {vr(Cre+4*t2,4)}, {vr(M2+12*t2,4)}, {vr(PK,4)}, 0')
        a(f'{MF16} {vr(Cim+4*t2,4)}, {vr(M2+12*t2+8,4)}, {vr(PK,4)}, 0')
    for t2 in range(2):
        a(f'{MF16} {vr(Cre+4*t2,4)}, {vr(M2+12*t2+4,4)}, {vr(PK+4,4)}, {vr(Cre+4*t2,4)}')
        a(f'{MF16} {vr(Cim+4*t2,4)}, {vr(M2+12*t2,4)}, {vr(PK+4,4)}, {vr(Cim+4*t2,4)}')
    for k in range(8):
        a(f'v_mul_f32 v{Yre+k}, v{Cre+k}, v{WF+2*k}'); a(f'v_mul_f32 v{Yim+k}, v{Cre+k}, v{WF+2*k+1}')
    for k in range(8):
        a(f'v_fma_f32 v{Yre+k}, -v{Cim+k}, v{WF+2*k+1}, v{Yre+k}'); a(f'v_fmac_f32 v{Yim+k}, v{Cim+k}, v{WF+2*k}')
    for k in range(4): a(f'v_cvt_pk_bf16_f32 v{PK+k}, v{Yre+2*k}, v{Yre+2*k+1}')
    for k in range(4): a(f'v_cvt_pk_bf16_f32 v{PK+4+k}, v{Yim+2*k}, v{Yim+2*k+1}')
    a.label(ljn)
    C3 = WK
    for tt in range(2):
        a(f'{MF16} {vr(C3+8*tt,4)}, {vr(PK,4)}, {vr(M4+12*tt,4)}, 0')
        a(f'{MF16} {vr(C3+8*tt+4,4)}, {vr(PK,4)}, {vr(M4+12*tt+4,4)}, 0')
    for tt in range(2):
        a(f'{MF16} {vr(C3+8*tt,4)}, {vr(PK+4,4)}, {vr(M4+12*tt+8,4)}, {vr(C3+8*tt,4)}')
        a(f'{MF16} {vr(C3+8*tt+4,4)}, {vr(PK+4,4)}, {vr(M4+12*tt,4)}, {vr(C3+8*tt+4,4)}')
    a(f's_lshl_b32 s{T0}, s{sW}, 11'); a(f'v_add_u32 v{vIN}, s{T0}, v{vL16}')
    for k in range(8): a(f'v_cvt_pk_bf16_f32 v{PK+k}, v{C3+2*k}, v{C3+2*k+1}')
    for tt in range(2): a(f'ds_write_b128 v{vIN}, {vr(PK+4*tt,4)} offset:{FB + 1024*tt}')
    a.wait(lg=0)
    lds_arrive(a, vCN, cF2, vONE)
    lds_spin(a, vCN, cF2, 4, IN)
    for u in range(8): a(f'ds_read_b128 {vr(IN+4*u,4)}, v{vL16} offset:{FB + 1024*u}')
    C4 = WK
    for sg in range(4):
        for tt in range(2):
            for c in range(2):
                d = C4 + 8*tt + 4*c
                a(f'{MF16} {vr(d,4)}, {vr(M5+8*sg+4*c,4)}, {vr(IN+8*sg+4*tt,4)}, {vr(d,4) if sg else 0}')
    for k in range(8): a(f'v_cvt_pk_bf16_f32 v{PK+k}, v{C4+2*k}, v{C4+2*k+1}')
    for k in range(8): a(f'v_and_b32 v{PK+k}, -2, v{PK+k}')
    for tt in range(2): a(f'buffer_store_dwordx4 {vr(PK+4*tt,4)}, v{vE2}, {sr(SA,4)}, s{sE2+tt} offen sc1', tag='e2')
    stamp(a, cfg, 'e2st', 'F')
    t = IN
    dft8(a, t, lambda dh, st, kind: N8 + 12*dh + 6*st + {'s': 0, 'c': 2, 'm': 4}[kind])
    vL3, vX3 = 11, 13
    a(f'v_cmp_eq_u32 vcc, 0, v{vQ}')
    a(f'v_and_b32 v{t}, 7, v1'); a(f's_lshl_b32 s{T0}, s{sW}, 3'); a(f'v_add_u32 v{t}, s{T0}, v{t}')
    a(f'v_cmp_eq_u32 {sr(mK0,2)}, 0, v{t}'); a(f's_andn2_b64 {sr(mK5,2)}, {sr(mK0,2)}, vcc'); a(f's_mov_b64 {sr(mK04,2)}, vcc')
    a(f'v_lshrrev_b32 v{t}, 2, v{t}'); a(f'v_lshl_add_u32 v{t}, v{t}, 3, v{vQ}'); a(f'v_mul_u32_u24 v{t}, {cfg.S1}, v{t}'); a(f'v_and_b32 v{t+1}, 3, v1'); a(f'v_lshl_add_u32 v{t}, v{t+1}, 5, v{t}')
    a(f'v_bfe_u32 v{t+1}, v1, 3, 1'); a(f'v_lshl_add_u32 v{vL3}, v{t+1}, 4, v{t}')
    a(f's_lshl_b32 s{T0}, s{sB}, 7'); a(f's_add_u32 s{sI}, s{T0}, {E1}'); a(f's_add_u32 s{sI+1}, s{sI}, {4*cfg.S1}')
    a(f'v_lshrrev_b32 v{t}, 1, v{vQ}'); a(f'v_lshlrev_b32 v{t}, 12, v{t}'); a(f'v_and_b32 v{t+1}, 1, v{vQ}'); a(f'v_lshl_add_u32 v{t}, v{t+1}, 8, v{t}')
    a(f'v_lshl_add_u32 v{t}, v{vN}, 4, v{t}'); a(f's_lshl_b32 s{T1}, s{sW}, 9'); a(f'v_add_u32 v{vX3}, s{T1}, v{t}')
    def n64(nt):
        a(f'v_add_f32 v{t}, {f32(16.0*nt)}, v{vNf}'); a(f'v_mul_f32 v{t}, {f32(1/64)}, v{t}')
        a(f'v_mul_f32 v{t+1}, 4.0, v{vQf}'); a(f'v_mul_f32 v{t+1}, v{t+1}, v{t}')
        cs_pairs(a, t+1, t, [16*st + r for st in range(2) for r in range(4)], t+2,
                 lambda pi: [('c', N64 + 8*nt + 4*(pi//2) + pi % 2), ('m', N64 + 8*nt + 4*(pi//2) + 2 + pi % 2)])
    for nt in range(cfg.n64pre): n64(nt)
    a.wait_tag('e2')
    stamp(a, cfg, 'e2dr', 'F')
    D3 = WF
    def ld3():
        for st in range(2): a(f'buffer_load_dwordx4 {vr(D3+4*st,4)}, v{vL3}, {sr(SA,4)}, s{sI+st} offen sc1')
    if cfg.t3 is None:
        if cfg.slp3: a(f's_sleep {cfg.slp3}')
        ld3()
    for nt in range(cfg.n64pre, 4): n64(nt)
    a(f'v_mov_b32 v{t+2}, 0xffff')
    a(f'v_and_b32 v{t}, 1, v{vN}'); a(f'v_lshlrev_b32 v{t}, 15, v{t}'); a(f'v_or_b32 v{t}, 0x3f80, v{t}')
    for nt in range(4):
        a(f'v_bfi_b32 v{t+1}, v{t+2}, v{t}, v{N64+8*nt+2}'); a(f'v_cndmask_b32 v{N64+8*nt+2}, v{N64+8*nt+2}, v{t+1}, {sr(mK04,2)}')
    if cfg.stg:
        assert cfg.gateAt == 'F' and cfg.npre == 22 - NPL
        a(f's_mul_i32 s{T0}, s{sJ}, {REG}'); a(f's_add_u32 s{T0}, s{T0}, {W2P}')
        srd(a, SB, sWS, REG, f's{T0}')
        a(f'v_and_b32 v{IN}, 31, v1'); a(f's_lshr_b32 s{T0}, s{sW}, 1'); a(f's_lshl_b32 s{T0}, s{T0}, 4'); a(f'v_xor_b32 v{IN}, s{T0}, v{IN}')
        a(f'v_lshrrev_b32 v{IN+1}, 5, v1'); a(f'v_lshlrev_b32 v{IN+1}, 9, v{IN+1}'); a(f'v_lshl_add_u32 v{IN}, v{IN}, 4, v{IN+1}')
        a(f's_lshl_b32 s{T0}, s{sW}, 11'); a(f'v_add_u32 v14, s{T0}, v{IN}'); a(f's_mul_i32 s{T1}, s{sW}, {NPL*2048}')
        kf_spin(a, vCN, kQ, IN, sleep=True)
        a(f's_setprio {cfg.prioS}')
        for i in range(NPL):
            a(f's_add_u32 m0, s{T1}, {PST + i*2048}'); a(f's_mov_b32 s{T0}, {(22 - NPL + i)*8192}')
            for hb in range(2): a(f'buffer_load_dwordx4 v14, {sr(SB,4)}, s{T0} offen offset:{1024*hb} {cfg.pfl} lds', tag='pl')
        a(f's_setprio {cfg.prioF}')
        stamp(a, cfg, 'pst', 'F')
        a.wait_tag('pl'); a(f'v_add_u32 v14, s{sW}, v{vCN}'); a(f'ds_write_b8 v14, v{vONE} offset:{4*kP}')
    if cfg.t3 is not None:
        kf_spin(a, vCN, k3, IN, sleep=True); stamp(a, cfg, 'try3', 'F')
        ld3()
    l3 = a.lab('e2poll'); l3ok = a.lab('e2ok')
    a(f's_mov_b32 s{T1}, 0')
    a.wait(vm=0)
    a.label(l3)
    a(f'v_or3_b32 v{IN+8}, v{D3}, v{D3+1}, v{D3+2}'); a(f'v_or3_b32 v{IN+9}, v{D3+3}, v{D3+4}, v{D3+5}')
    a(f'v_or3_b32 v{IN+8}, v{IN+8}, v{D3+6}, v{D3+7}'); a(f'v_or_b32 v{IN+8}, v{IN+8}, v{IN+9}'); a(f'v_and_b32 v{IN+8}, 1, v{IN+8}')
    a(f'v_cmp_ne_u32 vcc, 0, v{IN+8}')
    a(f's_cbranch_vccz {l3ok}')
    if cfg.slpC: a(f's_sleep {cfg.slpC}')
    ld3()
    a('s_waitcnt vmcnt(0)')
    a(f's_add_u32 s{T1}, s{T1}, 1'); a(f's_cmp_lt_u32 s{T1}, {cfg.spin}'); a(f's_cbranch_scc1 {l3}')
    a.label(l3ok)
    stamp(a, cfg, 'e2ok', 'F'); stampv(a, cfg, 'polls', 'F', T1)
    VI, VR = IN + 8, IN + 12
    for k in range(4):
        a(f'v_cndmask_b32 v{VI+k}, v{D3+k}, 0, {sr(mK5,2)}'); a(f'v_cndmask_b32 v{VR+k}, v{D3+4+k}, 0, {sr(mK5,2)}')
    C5 = WK
    for dh in range(2):
        a(f'{MF16} {vr(C5+8*dh,4)}, {vr(D3,4)}, {vr(N8+12*dh+2,4)}, 0')
        a(f'{MF16} {vr(C5+8*dh+4,4)}, {vr(D3+4,4)}, {vr(N8+12*dh+6,4)}, 0')
    for dh in range(2):
        a(f'{MF16} {vr(C5+8*dh,4)}, {vr(VR,4)}, {vr(N8+12*dh+8,4)}, {vr(C5+8*dh,4)}')
        a(f'{MF16} {vr(C5+8*dh+4,4)}, {vr(VI,4)}, {vr(N8+12*dh,4)}, {vr(C5+8*dh+4,4)}')
    for k in range(8): a(f'v_cvt_pk_bf16_f32 v{PK+k}, v{C5+2*k}, v{C5+2*k+1}')
    for dh in range(2): a(f'ds_write_b128 v{vX3}, {vr(PK+4*dh,4)} offset:{FA + 2048*dh}')
    a.wait(lg=0)
    lds_arrive(a, vCN, cF3, vONE)
    a(f's_and_b32 s{T0}, s{sW}, 1'); a(f's_lshl_b32 s{T0}, s{T0}, 12'); a(f's_lshr_b32 s{T1}, s{sW}, 1'); a(f's_lshl_b32 s{T2}, s{T1}, 11'); a(f's_add_u32 s{T0}, s{T0}, s{T2}')
    a(f'v_add_u32 v{vX3}, s{T0}, v{vL16}')
    a(f's_lshl_b32 s{T1}, s{T1}, 2'); a(f'v_add_u32 v{IN+9}, s{T1}, v{vQ}'); a(f'v_lshrrev_b32 v{IN+10}, 1, v{vN}'); a(f'v_xor_b32 v{IN+9}, v{IN+9}, v{IN+10}')
    a(f'v_lshlrev_b32 v{IN+9}, 4, v{IN+9}'); a(f'v_lshl_add_u32 v{IN+9}, v{vN}, 7, v{IN+9}')
    a(f's_and_b32 s{T0}, s{sW}, 1'); a(f's_lshl_b32 s{T0}, s{T0}, 3'); a(f'v_add_u32 v{vL3}, s{T0}, v{IN+9}')
    lds_spin(a, vCN, cF3, 4, IN+8)
    for st in range(2): a(f'ds_read_b128 {vr(IN+4*st,4)}, v{vX3} offset:{FA + 1024*st}')
    for st in range(2):
        for nt in range(4):
            a(f'{MF16} {vr(C5+4*nt,4)}, {vr(IN+4*st,4)}, {vr(N64+8*nt+4*st,4)}, {vr(C5+4*nt,4) if st else 0}')
    for k in range(8): a(f'v_cvt_pk_bf16_f32 v{PK+k}, v{C5+2*k}, v{C5+2*k+1}')
    for nt in range(4): a(f'ds_write_b64 v{vL3}, {vr(PK+2*nt,2)} offset:{FB + 2048*nt}')
    a.wait(lg=0)
    a.label('L_FQ')
    if cfg.diagt:
        a.label('L_DT'); a('s_memrealtime s[10:11]'); a('s_waitcnt lgkmcnt(0)'); a('s_sub_u32 s10, s10, s98'); a(f's_cmp_lt_u32 s10, {cfg.diagt}'); a('s_cbranch_scc1 L_DT')
    if cfg.diagx:
        a(f'v_mov_b32 v{IN+1}, 0'); a(f'buffer_load_dword v{IN}, v{IN+1}, {sr(SE,4)}, 0 offen sc1'); a(f'v_readfirstlane_b32 s6, v{IN}'); a('s_bcnt1_i32_b32 s6, s6')
        a('s_cmp_le_u32 s6, 1'); a('s_cbranch_scc1 L_DX'); a('s_memrealtime s[8:9]'); a('s_waitcnt lgkmcnt(0)')
        a.label('L_DY'); a('s_memrealtime s[10:11]'); a('s_waitcnt lgkmcnt(0)'); a('s_sub_u32 s10, s10, s8'); a('s_cmp_lt_u32 s10, 3000'); a('s_cbranch_scc1 L_DY')
        a.label('L_DX')
    stamp(a, cfg, 'Fend', 'F')
    a(f's_or_b32 s{T0}, s2, s{sW}'); a(f's_cmp_eq_u32 s{T0}, 0'); a(f's_cselect_b32 s{T0}, {NONCE}, {OOB}')
    a(f'v_mov_b32 v{IN}, s{sNON}'); a(f'v_mov_b32 v{IN+1}, s{sNON+1}'); a(f'v_mov_b32 v{IN+2}, 0'); a('s_mov_b64 exec, 1')
    a(f'buffer_store_dwordx2 {vr(IN,2)}, v{IN+2}, {sr(SA,4)}, s{T0} offen')
    a('s_mov_b64 exec, -1')
    enc_spin(a, cfg, 'F')
    a('s_barrier')
    if cfg.stamps: stamps_out(a, cfg, 10, SA)
    a('s_endpgm')
    a.label(lsp)
    a.hist, a.vq, a.lq = snap
    P1_, M3_, P2_, P4_ = IN, IN + 8, IN + 16, IN + 24
    for t2 in range(2):
        a(f'{MF16} {vr(P1_+4*t2,4)}, {vr(M2+12*t2,4)}, {vr(PK,4)}, 0')
        a(f'{MF16} {vr(M3_+4*t2,4)}, {vr(M2+12*t2+8,4)}, {vr(PK,4)}, 0')
        a(f'{MF16} {vr(P2_+4*t2,4)}, {vr(M2+12*t2+4,4)}, {vr(PK+4,4)}, 0')
        a(f'{MF16} {vr(P4_+4*t2,4)}, {vr(M2+12*t2,4)}, {vr(PK+4,4)}, 0')
    a('s_waitcnt vmcnt(0)')
    unpackW(a, HB, XS)
    a(f's_and_b32 s{T0}, s{sW}, 1'); a(f'v_or_b32 v{WK}, s{T0}, v{vN}'); a(f'v_cmp_eq_u32 vcc, 0, v{WK}')
    for k in range(16): a(f'v_cndmask_b32 v{HB+k}, v{WF+k}, v{HB+k}, vcc')
    for k in range(8):
        x, y = WK + 2*(k & 1), WK + 1 + 2*(k & 1)
        a(f'v_mul_f32 v{x}, v{P1_+k}, v{WF+2*k}'); a(f'v_mul_f32 v{y}, v{P1_+k}, v{WF+2*k+1}')
        a(f'v_fma_f32 v{x}, -v{M3_+k}, v{WF+2*k+1}, v{x}'); a(f'v_fmac_f32 v{y}, v{M3_+k}, v{WF+2*k}')
        a(f'v_fma_f32 v{x}, -v{P4_+k}, v{HB+2*k+1}, v{x}'); a(f'v_fmac_f32 v{y}, v{P4_+k}, v{HB+2*k}')
        a(f'v_fma_f32 v{P1_+k}, v{P2_+k}, v{HB+2*k}, v{x}'); a(f'v_fma_f32 v{M3_+k}, v{P2_+k}, v{HB+2*k+1}, v{y}')
    for k in range(4): a(f'v_cvt_pk_bf16_f32 v{PK+k}, v{P1_+2*k}, v{P1_+2*k+1}')
    for k in range(4): a(f'v_cvt_pk_bf16_f32 v{PK+4+k}, v{M3_+2*k}, v{M3_+2*k+1}')
    a('s_nop 1')
    a(f's_branch {ljn}')

HEADER = open('gated_mix__spectral_gfnet__dense_activation_mish__prompt.s.ref').read().split('; Override')[0] if True else ''
def build(cfg):
    import align
    t = build0(cfg)
    if 's' in cfg.abl: t = fake16(t)
    if 'k' in cfg.abl: t = fake16(t, 0, 99)
    if 'l' in cfg.abl: t = fake16(t, 100, 999)
    return align.run(t)[0] if getattr(cfg, 'align', True) else t
def fake16(t, lo=0, hi=999):
    import re
    out = []; k = 0
    for l in t.split('\n'):
        m = re.match(r'\s*v_mfma_f32_32x32x16_bf16 v\[(\d+):\d+\], (v\[\d+:\d+\]), (v\[\d+:\d+\]), (\S+)', l)
        if m: k += 1
        if m and lo <= k <= hi:
            d = int(m.group(1))
            for h in range(2):
                dd = d + 4*((2*k + h) % 4)
                out.append(f'    v_mfma_f32_16x16x32_bf16 v[{dd}:{dd+3}], {m.group(2)}, {m.group(3)}, v[{dd}:{dd+3}]')
        else: out.append(l)
    return '\n'.join(out)
def build0(cfg):
    Stream.gid = 0
    a = Stream(); prologue(a, cfg)
    g = Stream(); g.hist, g.vq, g.lq = list(a.hist), list(a.vq), list(a.lq); gen_G(g, cfg)
    f = Stream(); f.hist, f.vq, f.lq = list(a.hist), list(a.vq), list(a.lq); gen_F(f, cfg)
    assert g.text().count('s_barrier') == f.text().count('s_barrier'), 'barrier mismatch'
    return f"""{HEADER}; One persistent launch: 256 workgroups x 8 waves (waves 0-3: MLP, waves 4-7: spectral branch). Generated by my own script.
; @launch grid=(256,1,1) block=(512,1,1) lds={LDSZ}
.amdgcn_target "amdgcn-amd-amdhsa--gfx950"
.text
.globl {KN}
.p2align 8
.type {KN},@function
{KN}:
{a.text()}{g.text()}{f.text()}L_END:
    s_endpgm
.section .rodata,"a"
.p2align 6
.amdhsa_kernel {KN}
  .amdhsa_next_free_vgpr 256
  .amdhsa_next_free_sgpr 102
  .amdhsa_accum_offset 256
  .amdhsa_group_segment_fixed_size 0
  .amdhsa_kernarg_size 88
  .amdhsa_user_sgpr_count 2
  .amdhsa_user_sgpr_kernarg_segment_ptr 1
  .amdhsa_system_sgpr_workgroup_id_x 1
  .amdhsa_float_denorm_mode_32 3
.end_amdhsa_kernel
"""
if __name__ == '__main__':
    cfg = Cfg()
    out = sys.argv[1]
    for kv in sys.argv[2:]:
        k, v = kv.split('='); setattr(cfg, k, eval(v))
    open(out, 'w').write(build(cfg))
```

```python
import sys, struct
from sa import Stream
KN = 'gated_mix__spectral_gfnet__dense_activation_mish__prompt_kernel'
MB = 1 << 20
FLAGB = 65536; FLAGC = 196608; FLAGA2 = 262144
NONCE, FLAGA, E1, E2, WB, WBX, W2P, ACT, STAMP, WSZ = 0, 131072, 1*MB, 4*MB, 7*MB, 10*MB, 11*MB, 13*MB, 19*MB, 20*MB
OOB = 0x40000000
XP = 1040
NSLOT, SLAB = 6, 12288
WP = 528
FA = 0; FB = FA + 8704; GW = FB + 8192; GL = GW + 1024; CNT = GL + 256
XT = CNT + 128; RING = XT + 64*XP; LDSZ = RING + NSLOT*SLAB
REG = 86*2048
PST = XT; RED = RING
NPL = 7; assert PST + 4*NPL*2048 <= RING
assert RED + 49152 <= LDSZ <= 163840
cGO, cF1, cF2, cF3, cACT, cGOB, cFA, cFC, cGOC, cFA2, cGO2 = 72, 76, 80, 84, 88, 92, 96, 100, 104, 108, 112
ALL4 = 0x01010101
kR = 12
kF = 11
kQ, kP = 9, 10
k3 = 8
kD = 7
kM = 5
kS = 6
kW = 4
kX, kL, kK, kE = 0, 1, 2, 3
def f32(x): return '0x%08x' % struct.unpack('<I', struct.pack('<f', x))[0]
def vr(a, n): return f'v[{a}:{a+n-1}]' if n > 1 else f'v{a}'
def sr(a, n): return f's[{a}:{a+n-1}]'
sX, sWR, sWI, sW1, sB1, sW2, sGWp, sOUT, sWS = 4, 6, 8, 12, 14, 16, 18, 20, 22
sG0, sJ, sWV, sW = 24, 25, 26, 27
SX, SA, SB, SC, SD, SE = 28, 32, 36, 40, 44, 48
T0, T1, T2, T3 = 52, 53, 54, 55
sNON = 56
sTK = 3
sST = 80
MF16 = 'v_mfma_f32_16x16x32_bf16'; MF32 = 'v_mfma_f32_32x32x16_bf16'

class Cfg:
    stamps = False; dbgst = False
    gst = ['start', 'X', 'Kend', 'mish', 'go', 'drain', 'goB', 'g2end', 'fbar', 'end']
    fst = ['start', 'X', 'fft1', 'flag', 'prepoll', 'go', 'in', 'e2st', 'e2ok', 'Fend']
    NP, NQ = 15, 7
    prioG = 1; prioF = 2; prioM = 3; prioG2 = 1
    spin = 200000
    S1 = 32768; S2 = 16384; SW = 8192; FS = 64; FS2 = 8
    map84 = False; x0 = 8; stgFirst = True; stgBy = 'G'; w1t = True; pair = False; share = True; paLate = False; brB = True; slp = ''; deep = 1; nF = 0; ofl = ''; prio0 = 0; xrot = True; p0 = 1; p1 = 4; p2 = 5; late0 = 6; late1 = 3; hold = False; holdAt = 2
    pre = ''; ford = 'Erwbch1Ag245kaiXYI'
    pollAt = 1; slpA = 8; n64pre = 2
    pAt = 16; mAt = 22; dAt = 11; slpB = 0; goAt = 9; pgap = 14; gateAt = 'F'; stg = False; ipf = 8; own = False; prioS = 2; stgAt = 99; plAt = 8; unpLate = False; npre = 15; dP = 6; np1 = 4; pollB = 18; pfl = 'sc1'
    diagx = False; diagt = 0; enc = None; abl = ''; clrF = False; slp3 = 0; t3 = 5; slpC = 0

def srd(a, d, base, nbytes, off=None):
    if off is None:
        a(f's_mov_b32 s{d}, s{base}'); a(f's_mov_b32 s{d+1}, s{base+1}')
    else:
        a(f's_add_u32 s{d}, s{base}, {off}'); a(f's_addc_u32 s{d+1}, s{base+1}, 0')
    a(f's_mov_b32 s{d+2}, {nbytes}'); a(f's_mov_b32 s{d+3}, 0x20000')

def enc_spin(a, cfg, role):
    if cfg.enc and cfg.enc[0] == role:
        l = a.lab('enc')
        a('s_waitcnt lgkmcnt(0)'); a('s_sub_u32 s96, s96, s98'); a('s_lshl_b32 s96, s96, 2'); a('s_add_u32 s96, s96, 3000')
        a.label(l); a('s_sleep 2'); a('s_memrealtime s[94:95]'); a('s_waitcnt lgkmcnt(0)'); a('s_sub_u32 s94, s94, s98'); a('s_cmp_lt_u32 s94, s96'); a(f's_cbranch_scc1 {l}')
def stamp(a, cfg, name, role=None):
    if cfg.enc == (role, name): a('s_memrealtime s[96:97]')
    if not cfg.stamps: return
    L = cfg.gst if role == 'G' else cfg.fst
    if name in L:
        i = L.index(name)
        a(f's_memtime {sr(sST+2*i, 2)}' if name.startswith('c') and name[1:2] == '_' else f's_memrealtime {sr(sST+2*i, 2)}')
    if 'C' + name in L: a(f's_memtime {sr(sST+2*L.index("C" + name), 2)}')
def stampv(a, cfg, name, role, sreg):
    if not cfg.stamps: return
    L = cfg.gst if role == 'G' else cfg.fst
    if name in L: a(f's_mov_b32 s{sST+2*L.index(name)}, s{sreg}')

def stamps_out(a, cfg, n, srdws):
    if not cfg.stamps: return
    a('s_waitcnt lgkmcnt(0)')
    if cfg.dbgst:
        l = a.lab('nodbg')
        a(f's_cmp_lg_u32 s{sWV}, 0'); a(f's_cbranch_scc1 {l}')
        a('s_load_dwordx2 s[4:5], s[0:1], 72'); a('s_waitcnt lgkmcnt(0)')
        srd(a, SB, 4, 256)
        a('s_mov_b64 exec, 1'); a('v_mov_b32 v2, 0')
        a(f's_not_b32 s{T0}, s{sST}'); a(f'v_mov_b32 v3, s{T0}')
        a(f'buffer_atomic_umax v3, v2, {sr(SB,4)}, 0 offen')
        for i in range(n):
            a(f'v_mov_b32 v{4+i}, s{sST+2*i}')
            a(f'buffer_atomic_umax v{4+i}, v2, {sr(SB,4)}, 0 offen offset:{4+4*i}')
        a.label(l)
        return
    a(f's_lshl_b32 s{T0}, s2, 3'); a(f's_add_u32 s{T0}, s{T0}, s{sWV}'); a(f's_lshl_b32 s{T0}, s{T0}, 6'); a(f's_add_u32 s{T0}, s{T0}, {STAMP}')
    a('s_mov_b64 exec, 1'); a('v_mov_b32 v2, 0')
    for i in range(n):
        a(f'v_mov_b32 v3, s{sST+2*i}')
        a(f'buffer_store_dword v3, v2, {sr(srdws,4)}, s{T0} offen offset:{4*i}')
        a('s_nop 1')
    a('s_mov_b64 exec, -1')

def lds_spin(a, vaddr, off, target, vt, sleep=False):
    l = a.lab('spin')
    a.wait(lg=0)
    if sleep:
        l2 = a.lab('spin'); a(f's_branch {l2}'); a.label(l); a('s_sleep 1'); a.label(l2)
    else: a.label(l)
    a(f'ds_read_b32 v{vt}, v{vaddr} offset:{off}')
    a('s_waitcnt lgkmcnt(0)')
    a(f'v_readfirstlane_b32 s{T3}, v{vt}')
    a(f's_cmp_lt_u32 s{T3}, {target}')
    a(f's_cbranch_scc1 {l}')

def kf_spin(a, vaddr, idx, vt, sleep=False):
    l = a.lab('spin4')
    a.wait(lg=0)
    if sleep:
        l2 = a.lab('spin'); a(f's_branch {l2}'); a.label(l); a('s_sleep 1'); a.label(l2)
    else: a.label(l)
    a(f'ds_read_b32 v{vt}, v{vaddr} offset:{4*idx}')
    a('s_waitcnt lgkmcnt(0)')
    a(f'v_cmp_ne_u32 vcc, {ALL4}, v{vt}')
    a(f's_cbranch_vccnz {l}')

def lds_arrive(a, vaddr, off, vone):
    a('s_mov_b64 exec, 1')
    a(f'ds_add_u32 v{vaddr}, v{vone} offset:{off}')
    a('s_mov_b64 exec, -1')

def prologue(a, cfg):
    a('s_cmp_ge_u32 s2, 256'); a('s_cbranch_scc1 L_END')
    stamp(a, cfg, 'start', 'G'); stamp(a, cfg, 'c_start', 'G')
    if cfg.diagt or cfg.enc: a('s_memrealtime s[98:99]')
    a('s_load_dwordx16 s[4:19], s[0:1], 0')
    a('s_load_dwordx2 s[20:21], s[0:1], 64')
    a('s_load_dwordx2 s[22:23], s[0:1], 80')
    a('v_lshrrev_b32 v2, 6, v0'); a('v_and_b32 v1, 63, v0')
    if cfg.ipf:
        a('s_getpc_b64 s[52:53]'); a.label('L_PC')
        a('s_lshr_b32 s3, s2, 3'); a(f's_and_b32 s3, s3, {cfg.ipf - 1}'); a(f's_mul_i32 s3, s3, (L_END - L_PC + 63)/64/{cfg.ipf} + 1')
        a('v_add_u32 v6, s3, v0'); a('v_lshlrev_b32 v6, 6, v6'); a('v_min_u32 v6, L_END - L_PC, v6')
        a('v_mov_b32 v9, s53'); a('v_add_co_u32 v8, vcc, s52, v6'); a('v_addc_co_u32 v9, vcc, 0, v9, vcc')
        a(f'v_cmp_gt_u32 vcc, (L_END - L_PC + 63)/64/{cfg.ipf} + 1, v0'); a('s_and_saveexec_b64 s[54:55], vcc'); h = a.skip_begin('s_cbranch_execz')
        a('global_load_dword v255, v[8:9], off')
        a.skip_end(h, drop=True)
        a('s_mov_b64 exec, s[54:55]')
    a(f'v_readfirstlane_b32 s{sWV}, v2')
    if cfg.map84:
        a(f's_and_b32 s3, s2, 6'); a(f's_lshl_b32 s{sG0}, s3, 2'); a('s_lshr_b32 s3, s2, 5'); a(f's_add_u32 s{sG0}, s{sG0}, s3')
        a(f's_bfe_u32 s{sJ}, s2, 0x20003'); a('s_and_b32 s3, s2, 1'); a('s_lshl_b32 s3, s3, 2'); a(f's_add_u32 s{sJ}, s{sJ}, s3')
    else:
        a(f's_and_b32 s3, s2, 7'); a(f's_lshl_b32 s{sG0}, s3, 2'); a('s_lshr_b32 s3, s2, 6'); a(f's_add_u32 s{sG0}, s{sG0}, s3')
        a(f's_lshr_b32 s{sJ}, s2, 3'); a(f's_and_b32 s{sJ}, s{sJ}, 7')
    a('v_lshlrev_b32 v12, 4, v1')
    a(f's_and_b32 s{sW}, s{sWV}, 3')
    a(f'v_mov_b32 v4, {CNT}'); a('v_mov_b32 v5, 0'); a('v_and_b32 v3, 31, v1'); a('v_lshl_add_u32 v3, v3, 2, v4')
    a('ds_write_b32 v3, v5')
    a(f's_cmp_ge_u32 s{sWV}, 4'); a('s_cbranch_scc1 L_F')

def task_id(a):
    a(f's_mul_i32 s{T0}, s{sG0}, 5'); a(f's_add_u32 s{T0}, s{T0}, s{sJ}'); a(f's_sub_u32 s{T0}, s{T0}, 8')
    a(f's_add_u32 s{T1}, s{sG0}, 154'); a(f's_cmp_eq_u32 s{sJ}, 2'); a(f's_cselect_b32 s{T1}, s{T1}, 200'); a(f's_cmp_ge_u32 s{sJ}, 3'); a(f's_cselect_b32 s{sTK}, s{T0}, s{T1}')
    a(f's_cmp_eq_u32 s{sG0}, 0'); a(f's_cselect_b32 s{sTK}, 200, s{sTK}')

def nonce(a):
    a(f's_mul_i32 s{sNON}, s{sNON}, 0x9e3779b1'); a(f's_add_u32 s{sNON}, s{sNON}, 0x7f4a7c15')
    a(f's_mul_i32 s{sNON+1}, s{sNON+1}, 0x85ebca6b'); a(f's_add_u32 s{sNON+1}, s{sNON+1}, 0xc2b2ae35')

def mish8(a, h, e, u, o, sK):
    for k in range(4): a(f'v_pk_mul_f32 {vr(e+2*k,2)}, {vr(h+2*k,2)}, {sr(sK,2)}')
    for k in range(8): a(f'v_exp_f32 v{e+k}, v{e+k}')
    for k in range(4): a(f'v_pk_add_f32 {vr(u+2*k,2)}, {vr(e+2*k,2)}, {sr(sK+2,2)}')
    for k in range(4): a(f'v_pk_fma_f32 {vr(e+2*k,2)}, {vr(e+2*k,2)}, {vr(e+2*k,2)}, {vr(u+2*k,2)}')
    for k in range(8): a(f'v_rcp_f32 v{e+k}, v{e+k}')
    for k in range(4): a(f'v_pk_mul_f32 {vr(e+2*k,2)}, {vr(e+2*k,2)}, {vr(u+2*k,2)} clamp')
    for k in range(4): a(f'v_pk_mul_f32 {vr(e+2*k,2)}, {vr(e+2*k,2)}, {vr(h+2*k,2)}')
    for k in range(4): a(f'v_cvt_pk_bf16_f32 v{o+k}, v{e+2*k}, v{e+2*k+1}')

vRA, vAA, vGA, vO, sO = 2, 3, 8, 9, 101
GAL = 0
def final_addr(a, cfg):
    a(f's_mul_i32 s{T0}, s{sW}, 12288'); a(f's_add_u32 s{T0}, s{T0}, {RED}'); a(f'v_add_u32 v{vRA}, s{T0}, v12')
    a(f'v_and_b32 v10, 31, v1'); a(f's_and_b32 s{T0}, s{sW}, 1'); a(f's_lshl_b32 s{T0}, s{T0}, 5'); a(f'v_add_u32 v10, s{T0}, v10')
    a(f'v_lshrrev_b32 v11, 5, v1'); a(f's_lshr_b32 s{T0}, s{sW}, 1'); a(f's_lshl_b32 s{T0}, s{T0}, 2'); a(f'v_add_u32 v11, s{T0}, v11')
    a(f'v_lshlrev_b32 v{vGA}, 2, v10')
    a(f'v_and_b32 v13, 7, v10'); a('v_xor_b32 v13, v13, v11'); a(f'v_lshlrev_b32 v{vAA}, 8, v10'); a(f'v_lshl_add_u32 v{vAA}, v13, 5, v{vAA}')
    a(f'v_xor_b32 v13, 64, v{vAA}')
    a(f'v_lshlrev_b32 v{vO}, 15, v10'); a(f'v_lshl_add_u32 v{vO}, v11, 7, v{vO}')
    a(f's_lshl_b32 s{sO}, s{sG0}, 10'); a(f's_lshl_b32 s{T0}, s{sJ}, 4'); a(f's_add_u32 s{sO}, s{sO}, s{T0}')
    assert not (cfg.share and cfg.stg)
    a(f's_lshl_b32 s{T0}, s{sW}, 11'); a(f'v_add_u32 v10, s{T0}, v12')
def final_code(a, cfg, rrs, acc, R, nsrc):
    AA = R + 48
    a(f'ds_read_b32 v14, v{vGA} offset:{GL}')
    if nsrc == 4:
        for mt in range(2): a(f'ds_read_b128 {vr(acc(mt,1),4)}, v10 offset:{XT + 1024*mt}')
    for k in range(1, 4):
        for rr in rrs:
            for mt in range(2): a(f'ds_read_b128 {vr(R+16*(k-1)+4*(2*mt+rr),4)}, v{vRA} offset:{(k-1)*4096 + (2*mt+rr)*1024}')
    for rr in rrs:
        for ih in range(2): a(f'ds_read_b128 {vr(AA+8*rr+4*ih,4)}, v{13 if rr else vAA} offset:{GAL + 16*ih}')
    a('v_sub_f32 v14, 1.0, v14')
    for rr in rrs:
        for k in range(1, 4):
            for mt in range(2):
                for pp in range(2):
                    d = acc(mt, rr) + 2*pp; s_ = R + 16*(k-1) + 4*(2*mt+rr) + 2*pp
                    a(f'v_pk_add_f32 {vr(d,2)}, {vr(d,2)}, {vr(s_,2)}')
        for i in range(8): a(f'v_fmac_f32 v{AA+8*rr+i}, v14, v{acc(i & 1, rr) + (i >> 1)}')
        U = R + 64 + 4*rr
        for k in range(4): a(f'v_cvt_pk_bf16_f32 v{U+k}, v{AA+8*rr+2*k}, v{AA+8*rr+2*k+1}')
        a(f'buffer_store_dwordx4 {vr(U,4)}, v{vO}, {sr(SE,4)}, s{sO} offen offset:{256*rr} {cfg.ofl}')

class Staging:
    def __init__(self, a, cfg, r): self.a, self.cfg, self.r = a, cfg, r
    def waddr(self, k1off):
        a = self.a
        for u in range(3):
            r_ = self.r + 6 + 3*u; d_ = self.r + 3*k1off + u
            if not k1off:
                a(f'v_add_u32 v{r_}, {64*u}, v1'); a(f'v_mul_u32_u24 v{r_+1}, 1986, v{r_}'); a(f'v_lshrrev_b32 v{r_+1}, 16, v{r_+1}')
                a(f'v_mul_u32_u24 v{r_+2}, 33, v{r_+1}'); a(f'v_sub_u32 v{r_}, v{r_}, v{r_+2}'); a(f'v_lshlrev_b32 v{r_}, 4, v{r_}')
                a(f'v_add_u32 v{r_}, {2048 - 1024*u}, v{r_}')
                a(f'v_lshlrev_b32 v{r_+1}, 6, v{r_+1}'); a(f'v_add_u32 v{r_+1}, s{T0}, v{r_+1}')
            else: a(f'v_add_u32 v{r_+1}, 32, v{r_+1}')
            a(f'v_sub_u32 v{r_+2}, 2048, v{r_+1}'); a(f'v_and_b32 v{r_+2}, 2047, v{r_+2}'); a(f'v_cndmask_b32 v{r_+2}, v{r_+1}, v{r_+2}, vcc')
            a(f'v_mul_u32_u24 v{r_+2}, 514, v{r_+2}'); a(f'v_and_b32 v{r_+2}, -16, v{r_+2}'); a(f'v_add_u32 v{d_}, v{r_+2}, v{r_}')
    def addr(self):
        a = self.a
        a(f's_and_b32 s{T0}, s{sW}, 1'); a(f's_cmp_eq_u32 s{T0}, 0')
        a(f's_cselect_b32 s{SE}, s{sWR}, s{sWI}'); a(f's_cselect_b32 s{SE+1}, s{sWR+1}, s{sWI+1}')
        a(f's_sub_u32 s{SE}, s{SE}, 2048'); a(f's_subb_u32 s{SE+1}, s{SE+1}, 0'); a(f's_mov_b32 s{SE+2}, {2048*514 + 2048}'); a(f's_mov_b32 s{SE+3}, 0x20000')
        a(f's_cmp_ge_u32 s{sW}, 2'); a('s_cselect_b64 vcc, -1, 0')
        a(f's_lshl_b32 s{T0}, s{sJ}, 8'); a(f's_add_u32 s{T0}, s{T0}, s{sG0}')
        self.waddr(0)
    def wrows(self, k1off):
        a = self.a
        a(f's_mul_i32 s{T1}, s{sW}, {4*WP}'); a(f's_add_u32 m0, s{T1}, {FA + (16*WP if k1off else 0)}')
        for u in range(3):
            if u == 2: a('s_mov_b64 exec, 15')
            a(f'buffer_load_dwordx4 v{self.r+3*k1off+u}, {sr(SE,4)}, 0 offen offset:{1024*u} lds', tag='ws')
            if u == 2: a('s_mov_b64 exec, -1')
    def w(self):
        a = self.a
        self.wrows(0)
        a(f's_cmp_lg_u32 s{sG0}, 0'); h = a.skip_begin('s_cbranch_scc1')
        a(f's_cmp_ge_u32 s{sW}, 2'); a('s_cselect_b64 vcc, -1, 0'); self.waddr(1); self.wrows(1); a.skip_end(h, drop=True)
    def w2(self):
        a = self.a
        a(f's_lshr_b32 s{T0}, s{sTK}, 1'); a(f's_lshl_b32 s{T0}, s{T0}, 14'); a(f's_and_b32 s{T1}, s{sTK}, 1'); a(f's_lshl_b32 s{T1}, s{T1}, 12'); a(f's_add_u32 s{T0}, s{T0}, s{T1}')
        a(f's_lshr_b32 s{T1}, s{sW}, 1'); a(f's_lshl_b32 s{T1}, s{T1}, 13'); a(f's_add_u32 s{T0}, s{T0}, s{T1}'); a(f's_and_b32 s{T1}, s{sW}, 1'); a(f's_lshl_b32 s{T1}, s{T1}, 11'); a(f's_add_u32 s{T0}, s{T0}, s{T1}')
        srd(a, SB, sW2, 1376*1024)
        a(f's_lshl_b32 s{T1}, s{sW}, 11'); a(f's_add_u32 m0, s{T1}, {FB}')
        a(f's_cmp_ge_u32 s{sTK}, 172'); h = a.skip_begin('s_cbranch_scc1')
        for u in range(2): a(f'buffer_load_dwordx4 v12, {sr(SB,4)}, s{T0} offen offset:{1024*u} lds', tag='ws')
        a.skip_end(h, drop=True)
        srd(a, SB, sGWp, 1024)
        a(f's_lshl_b32 s{T0}, s{sW}, 8'); a(f's_add_u32 m0, s{T0}, {GW}'); a(f'v_lshlrev_b32 v{self.r+15}, 2, v1')
        a(f'buffer_load_dword v{self.r+15}, {sr(SB,4)}, s{T0} offen lds', tag='ws')

def gate_code(a, cfg, GB, GA, t):
    vGX, vGG, vGL = (t + 1, t + 2, t + 3) if t != 10 else (11, 2, 13)
    a(f'v_and_b32 v{t}, 15, v1'); a(f's_lshl_b32 s{T2}, s{sW}, 4'); a(f'v_add_u32 v{t}, s{T2}, v{t}'); a(f'v_lshlrev_b32 v{vGL}, 2, v{t}'); a(f'v_mul_u32_u24 v{t}, {XP}, v{t}')
    a(f'v_and_b32 v{vGG}, 48, v1'); a(f'v_add_u32 v{vGX}, v{vGG}, v{t}')
    def rd(ks): a(f'ds_read_b128 {vr(GB+8*(ks%7),4)}, v{vGX} offset:{XT + 64*ks}'); a(f'ds_read_b128 {vr(GB+8*(ks%7)+4,4)}, v{vGG} offset:{GW + 64*ks}')
    for ks in range(6): rd(ks)
    for ks in range(16):
        a(f'{MF16} {vr(GA+4*(ks&1),4)}, {vr(GB+8*(ks%7)+4,4)}, {vr(GB+8*(ks%7),4)}, {vr(GA+4*(ks&1),4) if ks > 1 else 0}')
        if ks + 6 < 16: rd(ks + 6)
    a(f'v_add_f32 v{GA}, v{GA}, v{GA+4}')
    a(f'v_mul_f32 v{GA}, {f32(-1.4426950408889634)}, v{GA}'); a(f'v_exp_f32 v{GA}, v{GA}'); a(f'v_add_f32 v{GA}, 1.0, v{GA}'); a(f'v_rcp_f32 v{GA}, v{GA}')
    a(f'ds_write_b32 v{vGL}, v{GA} offset:{GL}')

def gen_G(a, cfg):
    vCN, vD, vL16 = 4, 5, 12
    vP, vQ0, vQ1, vPW, vSV = 13, 14, 15, 8, 9
    vT, vX0, vX1, vPA = 10, 11, 2, 3
    PR, ACC2, QR = 16, 136, 200
    ACC1, ACCX, FR, TM = 136, 184, 16, 232
    BI = 56
    RW = NSLOT*3072
    sU0, sNU, sRH, sFH, sSL = 58, 59, 60, 61, 62
    sAO = 63
    sK = 66
    sROT, sOWN, sTMP = 78, 79, 71
    def step_off(i, dst):
        if not cfg.own: return [f's_add_u32 s{dst}, s{sROT}, {i*8192}']
        L = [f's_add_u32 s{dst}, s{sROT}, {i*8192}', f's_sub_u32 s{sTMP}, s{dst}, {REG}', f's_cselect_b32 s{dst}, s{dst}, s{sTMP}']
        if i == 21: L += [f's_cmp_lt_u32 s{sW}, 2', f's_cselect_b32 s{dst}, s{dst}, {OOB}']
        return L
    if cfg.prioG: a(f's_setprio {cfg.prioG}')
    a(f'v_add_u32 v{vPW}, s{sW}, v{vCN}'); a(f'v_mov_b32 v{vSV}, 1')
    def post(i): a(f'ds_write_b8 v{vPW}, v{vSV} offset:{4*i}')
    sXO, sXM = 70, 71
    a(f's_and_b32 s{T1}, s{sJ}, {1 if cfg.xrot else 0}'); a(f's_lshl_b32 s{sXO}, s{T1}, 4'); a(f's_add_u32 s{sXO}, s{sXO}, s{sW}'); a(f's_mul_i32 s{sXM}, s{sXO}, {2*XP}')
    a(f's_lshl_b32 s{sXO}, s{sXO}, 16'); a(f's_lshl_b32 s{T0}, s{sG0}, 10'); a(f's_add_u32 s{sXO}, s{sXO}, s{T0}')
    def xdma(i0, i1, fill=None):
        for i in range(i0, i1):
            a(f's_add_u32 m0, s{sXM}, {XT + (8*((i % 8)//2) + i % 2)*XP}')
            if i % 8: a(f's_add_u32 s{sXO}, s{sXO}, {32768 if i % 2 else 7*32768}')
            a(f'buffer_load_dwordx4 v12, {sr(SX,4)}, s{sXO} offen lds', tag='x')
            if i == 7:
                a(f's_sub_u32 s{sXO}, s{sXO}, {25*32768}'); a(f's_xor_b32 s{sXO}, s{sXO}, {32*32768}')
                a(f's_mul_i32 s{T1}, s{T1}, {64*XP}'); a(f's_add_u32 s{sXM}, s{sXM}, {32*XP}'); a(f's_sub_u32 s{sXM}, s{sXM}, s{T1}')
            if fill: fill()
    assert cfg.x0 == 8
    a(f's_mov_b32 s{SX+2}, {2*MB}'); a(f's_mov_b32 s{SX+3}, 0x20000')
    a('s_waitcnt lgkmcnt(0)')
    a(f's_mov_b32 s{SX}, s{sX}'); a(f's_mov_b32 s{SX+1}, s{sX+1}')
    stamp(a, cfg, 'pre', 'G')
    xdma(0, 8)
    stamp(a, cfg, 'x0', 'G')
    a(f's_load_dwordx2 {sr(sNON,2)}, {sr(sWS,2)}, {NONCE}')
    a('s_barrier')
    task_id(a)
    t = TM
    vBO = FR + 7
    stg = Staging(a, cfg, FR + 8)
    if cfg.stgBy == 'G': stg.addr()
    srd(a, SA, sW1, 512*2752)
    a(f's_min_u32 s{sU0}, s{sJ}, 3'); a(f's_mul_i32 s{T0}, s{sJ}, 5'); a(f's_add_u32 s{sU0}, s{sU0}, s{T0}')
    a(f's_cmp_lt_u32 s{sJ}, 3'); a(f's_cselect_b32 s{sNU}, 6, 5')
    a(f's_and_b32 s{sRH}, s{sW}, 1'); a(f's_lshr_b32 s{sFH}, s{sW}, 1')
    a(f's_mul_i32 s{T2}, s{sFH}, 3')
    a(f's_add_u32 s{T0}, s{sU0}, s{T2}'); a(f's_lshl_b32 s{T0}, s{T0}, 6'); a(f's_sub_u32 s{T3}, s{sNU}, s{T2}')
    for u in range(3):
        a(f'v_add_u32 v{t}, {64*u}, v1')
        a(f'v_mul_u32_u24 v{t+1}, 5462, v{t}'); a(f'v_lshrrev_b32 v{t+1}, 16, v{t+1}')
        a(f'v_mul_u32_u24 v{t+2}, 12, v{t+1}'); a(f'v_sub_u32 v{t}, v{t}, v{t+2}')
        a(f'v_lshrrev_b32 v{t+2}, 2, v{t}'); a(f'v_cmp_gt_u32 vcc, s{T3}, v{t+2}')
        a(f'v_mul_u32_u24 v{t+1}, 2752, v{t+1}'); a(f'v_lshl_add_u32 v{t}, v{t}, 4, v{t+1}'); a(f'v_add_u32 v{t}, s{T0}, v{t}')
        a(f'v_mov_b32 v{t+1}, {OOB}')
        if u: a(f'v_subrev_u32 v{t}, {1024*u}, v{t}')
        a(f'v_cndmask_b32 v{vD+u}, v{t+1}, v{t}, vcc')
    a(f's_mul_i32 s{sSL}, s{sRH}, {256*2752}')
    sRM = 73
    a(f's_mul_i32 s{sRM}, s{sW}, {RW}')
    def dma_m0(s):
        if s <= 15: a(f's_add_u32 m0, s{sRM}, {RING + (s % NSLOT)*3072}')
    def dma_so(s):
        if 0 < s <= 15: a(f's_add_u32 s{sSL}, s{sSL}, {16*2752}')
    def dma1(s, u):
        if s <= 15: a(f'buffer_load_dwordx4 v{vD+u}, {sr(SA,4)}, s{sSL} offen offset:{1024*u} lds', tag=f'w{s}')
    def dma(s):
        dma_m0(s); dma_so(s)
        for u in range(3): dma1(s, u)
    sBO = 74
    a(f'v_and_b32 v{t}, 31, v1'); a(f'v_lshlrev_b32 v{t}, 1, v{t}'); a(f'v_cmp_gt_u32 vcc, 32, v1')
    a(f'v_mov_b32 v{t+1}, {OOB}'); a(f'v_cndmask_b32 v{vBO}, v{t+1}, v{t}, vcc')
    for T in range(3):
        a(f's_add_u32 s{T3}, s{T2}, {T}'); a(f's_cmp_lt_u32 s{T3}, s{sNU}')
        a(f's_cselect_b32 s{T0}, 0, {OOB}')
        a(f's_add_u32 s{T3}, s{T3}, s{sU0}')
        a(f's_lshl_b32 s{sAO+T}, s{T3}, 12'); a(f's_add_u32 s{sAO+T}, s{sAO+T}, s{T0}')
        a(f's_lshl_b32 s{T3}, s{T3}, 6'); a(f's_add_u32 s{sBO+T}, s{T3}, s{T0}')
    U0 = 100
    late = []
    L = late.append
    L(lambda: (a(f's_mul_i32 s{U0}, s{sG0}, {REG}'), a(f's_add_u32 s{U0}, s{U0}, {ACT}'),))
    L(lambda: (srd(a, SC, sWS, REG, f's{U0}'),))
    L(lambda: (a(f's_mul_i32 s{U0}, s{sJ}, {REG}'), a(f's_add_u32 s{U0}, s{U0}, {W2P}'),))
    L(lambda: (srd(a, SD, sWS, REG, f's{U0}'),))
    L(lambda: (a(f's_lshl_b32 s{U0}, s{sRH}, 10'), a(f'v_add_u32 v{vQ0}, s{U0}, v{vL16}'),))
    L(lambda: (a(f'v_and_b32 v{t+1}, 31, v1'), a(f's_lshl_b32 s{U0}, s{sFH}, 4'), a(f'v_xor_b32 v{t+1}, s{U0}, v{t+1}'),))
    L(lambda: (a(f'v_lshrrev_b32 v{t+2}, 5, v1'), a(f'v_lshlrev_b32 v{t+2}, 9, v{t+2}'), a(f'v_lshl_add_u32 v{vPA}, v{t+1}, 4, v{t+2}'),))
    L(lambda: (a(f's_lshl_b32 s{sROT}, s{sU0}, 1'), a(f's_add_u32 s{sROT}, s{sROT}, s{sW}'), a(f's_lshl_b32 s{sROT}, s{sROT}, 11'),))
    if not cfg.own: L(lambda: a(f's_lshl_b32 s{sROT}, s{sW}, 11'))
    L(lambda: (a(f's_lshl_b32 s{U0}, s{sNU}, 1'), a(f's_sub_u32 s{U0}, s{U0}, s{sW}'), a(f's_cmp_gt_u32 s{U0}, 8'), a(f's_cselect_b32 s{sOWN}, 1, 0'),))
    L(lambda: (a(f'v_lshrrev_b32 v{t}, 5, v1'), a(f'v_lshlrev_b32 v{t}, 3, v{t}'), a(f'v_bfe_u32 v{t+1}, v1, 2, 2'), a(f'v_add_u32 v{t}, v{t}, v{t+1}'),))
    L(lambda: (a(f'v_mul_u32_u24 v{t}, 192, v{t}'),))
    L(lambda: (a(f'v_bfe_u32 v{t+2}, v1, 4, 1'), a(f'v_lshl_add_u32 v{t}, v{t+2}, 5, v{t}'),))
    L(lambda: (a(f'v_and_b32 v{t+2}, 3, v1'), a(f'v_lshl_add_u32 v{t}, v{t+2}, 3, v{t}'),))
    L(lambda: (a(f's_add_u32 s{U0}, s{sRM}, {RING}'), a(f'v_add_u32 v{vT}, s{U0}, v{t}'),))
    L(lambda: (a(f'v_add_u32 v{vP}, s{U0}, v{vL16}'),))
    L(lambda: (a(f's_xor_b32 s{U0}, s{sW}, 1'), a(f's_mul_i32 s{U0}, s{U0}, {RW}'), a(f's_add_u32 s{U0}, s{U0}, {RING}'), a(f'v_add_u32 v{vQ1}, s{U0}, v{vL16}'),))
    L(lambda: (a(f'v_and_b32 v{t}, 31, v1'), a(f'v_mul_u32_u24 v{t}, {XP}, v{t}'), a(f'v_lshrrev_b32 v{t+1}, 5, v1'), a(f'v_lshl_add_u32 v{t}, v{t+1}, 4, v{t}'),))
    L(lambda: (a(f's_mul_i32 s{U0}, s{sRH}, {32*XP + 512}'), a(f'v_add_u32 v{vX0}, s{U0}, v{t}'),))
    L(lambda: (a(f's_mul_i32 s{U0}, s{sRH}, {512 - 32*XP}'), a(f's_add_u32 s{U0}, s{U0}, {32*XP}'), a(f'v_add_u32 v{vX1}, s{U0}, v{t}'),))
    for T in range(3): L(lambda T=T: [a(f'v_mov_b32 v{BI+4*T+k}, 0') for k in range(1, 4)])
    L(lambda: (a(f'v_cmp_gt_u32 vcc, 32, v1'), a(f'v_mov_b32 v{t}, 0x3f80'), a(f'v_mov_b32 v{BI+13}, 0'), a(f'v_mov_b32 v{BI+14}, 0'), a(f'v_mov_b32 v{BI+15}, 0'), a(f'v_cndmask_b32 v{BI+12}, 0, v{t}, vcc')))
    L(lambda: (a(f's_mov_b32 s{sK}, {f32(-1.4426950408889634)}'), a(f's_mov_b32 s{sK+1}, {f32(-1.4426950408889634)}'),))
    L(lambda: (a(f's_mov_b32 s{sK+2}, 0.5'), a(f's_mov_b32 s{sK+3}, 0.5'),))
    L(lambda: (nonce(a),))
    def late_setup(n=99):
        for _ in range(n):
            if late: late.pop(0)()
    late_setup(cfg.late0)
    stamp(a, cfg, 'set', 'G')
    xdma(cfg.x0, 16, lambda: late_setup(cfg.late1))
    srd(a, SB, sB1, 2752)
    for T in range(3): a(f'buffer_load_ushort v{BI+4*T}, v{vBO}, {sr(SB,4)}, s{sBO+T} offen')
    def staging():
        if cfg.stgBy == 'G': stg.w(); stg.w2()
        srd(a, SE, sOUT, 2*MB)
    if cfg.stgFirst: staging()
    for s in range(cfg.p0): dma(s)
    stamp(a, cfg, 'iss', 'G')
    a.wait_tag('x'); post(kX); stamp(a, cfg, 'X', 'G')
    if not cfg.stgFirst: staging()
    for s in range(cfg.p0, cfg.p1): dma(s)
    late_setup()
    for T in range(3): a(f'{MF32} {vr(ACC1+16*T,16)}, {vr(BI+4*T,4)}, {vr(BI+12,4)}, 0')
    def reads(s):
        if s > 15: return [None]*8
        f = FR + 20*(s & 1)
        L = [f'ds_read_b128 {vr(f,4)}, v{vX0} offset:{XT + s*32}', f'ds_read_b128 {vr(f+4,4)}, v{vX1} offset:{XT + s*32}']
        for T in range(3):
            for hf in range(2):
                L.append(f'ds_read_b64_tr_b16 {vr(f+8+4*T+2*hf,2)}, v{vT} offset:{(s % NSLOT)*3072 + 768*hf + 64*T}')
        return L
    def rd(s, i, j):
        for x in reads(s)[i:j]:
            if x: a(x, tag=f'r{s}')
    def mf(s, T, rt):
        f = FR + 20*(s & 1); d = (ACCX if rt else ACC1) + 16*T
        a(f'{MF32} {vr(d,16)}, {vr(f+8+4*T,4)}, {vr(f+4*rt,4)}, {vr(d,16) if (s or not rt) else 0}')
    a.wait_tag('w0')
    if cfg.stgFirst and cfg.stgBy == 'G': post(kW)
    kf_spin(a, vCN, kX, TM)
    pend = []
    for i in range(cfg.npre):
        r = PR + 8*i
        pend.append(step_off(i, 77) + [f'buffer_load_dwordx4 {vr(r,4)}, v{vPA}, {sr(SD,4)}, s77 offen {cfg.pfl}'])
        pend.append([f'buffer_load_dwordx4 {vr(r+4,4)}, v{vPA}, {sr(SD,4)}, s77 offen offset:1024 {cfg.pfl}'])
    early = [2*(cfg.npre - 7)]
    def popP(n):
        for _ in range(n):
            if pend:
                for l in pend.pop(0): a(l, tag='p')
    def popE(s):
        if s >= cfg.pAt and early[0]: popP(1); early[0] -= 1
    rd(0, 0, 8)
    n = NSLOT - 1 + cfg.deep
    assert not cfg.hold
    for s in range(cfg.p1, cfg.p2): dma(s)
    nxt = max(cfg.p1, cfg.p2)
    for s in range(14):
        stamp(a, cfg, f'k{s}', 'G')
        lds_ = [x for x in (nxt, nxt + 1) if x <= min(s + n, 15)]
        items = [[lambda x=x: (dma_m0(x), dma_so(x), dma1(x, 0)), lambda x=x: dma1(x, 1), lambda x=x: dma1(x, 2)] for x in lds_]
        gaps = [[] for _ in range(6)]
        if len(items) == 1: gaps[1] = [lambda x=lds_[0]: dma_m0(x)]; gaps[2] = [lambda x=lds_[0]: dma_so(x)]; gaps[3] = [lambda x=lds_[0]: dma1(x, 0)]; gaps[4] = [items[0][1]]; gaps[5] = [items[0][2]]
        elif len(items) == 2:
            for g, it in enumerate(items[0] + items[1]): gaps[g] = [it]
        nxt += len(items)
        def gap(g):
            for f_ in gaps[g]: f_()
        if s == cfg.mAt: post(kM)
        if s == cfg.dAt: post(kD)
        a.wait_ltag(f'r{s}')
        mf(s, 0, 0)
        a.wait_tag(f'w{s+1}')
        if s == cfg.p0 - 1 and not cfg.stgFirst and cfg.stgBy == 'G': post(kW)
        rd(s+1, 0, 2); gap(0)
        mf(s, 0, 1); rd(s+1, 2, 4); gap(1)
        mf(s, 1, 0); rd(s+1, 4, 6); gap(2)
        mf(s, 1, 1); rd(s+1, 6, 8); gap(3)
        mf(s, 2, 0); gap(4)
        mf(s, 2, 1); gap(5)
    assert nxt >= 16 and cfg.pAt > 15
    a.wait_ltag('r14')
    mf(14, 0, 1); a.wait_tag('w15'); post(kL); rd(15, 0, 4)
    mf(14, 1, 1); rd(15, 4, 8)
    mf(14, 2, 1); mf(14, 0, 0)
    a.wait_ltag('r15')
    for T in range(3): mf(15, T, 1)
    def exw(q): a(f'ds_write_b128 v{vP}, {vr(ACCX+4*q,4)} offset:{1024*q}')
    mf(14, 1, 0); mf(14, 2, 0)
    for q in range(0, 4): exw(q)
    mf(15, 0, 0)
    for q in range(4, 7): exw(q)
    mf(15, 1, 0)
    for q in range(7, 10): exw(q)
    mf(15, 2, 0)
    stamp(a, cfg, 'Kl', 'G')
    if cfg.prioM != cfg.prioG: a(f's_setprio {cfg.prioM}')
    for q in range(10, 12): exw(q)
    for q in range(12 - 2*cfg.nF, 12): a(f'ds_write_b128 v{vP}, {vr(ACC1+4*q,4)} offset:{1024*(q + 2*cfg.nF)}')
    a.wait(lg=0); post(kK)
    if cfg.pair:
        l = a.lab('pair'); a(f's_xor_b32 s{T0}, s{sW}, 1'); a(f'v_add_u32 v{TM+1}, s{T0}, v{vCN}'); a.wait(lg=0); a.label(l)
        a(f'ds_read_u8 v{TM}, v{TM+1} offset:{4*kK}'); a('s_waitcnt lgkmcnt(0)'); a(f'v_cmp_eq_u32 vcc, 0, v{TM}'); a(f's_cbranch_vccnz {l}')
    else: kf_spin(a, vCN, kK, TM)
    if cfg.mAt == 16: post(kM)
    for q in range(12 - 2*cfg.nF): a(f'ds_read_b128 {vr(ACCX+4*q,4)}, v{vQ1} offset:{1024*q}')
    stamp(a, cfg, 'Kend', 'G')
    def wait_go():
        lds_spin(a, vCN, cGO2 if 'B' in cfg.ford else cGO, 4, TM + 2, sleep=True); stamp(a, cfg, 'go', 'G')
    cnt = [0, False]
    def m(x):
        a(x); cnt[0] += 1
        if cnt[1] and cnt[0] % cfg.pgap == 0: popP(1)
    for T in range(3):
        for hb in range(2):
            if 2*T + hb >= 6 - cfg.nF: continue
            h = ACC1 + 16*T + 8*hb
            if cfg.goAt == 2*T + hb: wait_go(); cnt[1] = True
            e, u, o = TM, TM + 8, TM + 16 + 4*((2*T+hb) % 2)
            for k in range(4): m(f'v_pk_add_f32 {vr(h+2*k,2)}, {vr(h+2*k,2)}, {vr(h+48+2*k,2)}')
            mish8(m, h, e, u, o, sK)
            a(f'buffer_store_dwordx4 {vr(o,4)}, v{vQ0}, {sr(SC,4)}, s{sAO+T} offen offset:{2048*hb} sc1', tag='act')
            if cfg.own == 'L' and 2*T + hb < 6: a(f'ds_write_b128 v{vP}, {vr(o,4)} offset:{12288 + 1024*(2*T+hb)}')
            if cfg.mAt == 20 + 2*T + hb: post(kM)
    if cfg.own == 'L': a.wait(lg=0); post(kE)
    stamp(a, cfg, 'mish', 'G')
    if cfg.prioM != cfg.prioG2: a(f's_setprio {cfg.prioG2}')
    assert cfg.np1 == 0 or cfg.mAt != 26
    if cfg.np1 and cfg.goAt > 5: wait_go()
    popP(cfg.np1)
    gate = lambda: gate_code(a, cfg, 136, 192, 10)
    if cfg.gateAt == 'D': gate()
    srd(a, SA, sWS, WSZ)
    a(f'v_mov_b32 v{TM+8}, 1'); a(f'v_mov_b32 v{TM+10}, s{sNON}'); a(f'v_mov_b32 v{TM+11}, s{sNON+1}')
    a(f'v_and_b32 v{TM+12}, 7, v1'); a(f'v_lshlrev_b32 v{TM+12}, 7, v{TM+12}'); a(f'v_mov_b32 v{TM+13}, 0')
    a(f's_lshl_b32 s{T0}, s{sG0}, 10'); a(f's_add_u32 s{T0}, s{T0}, {FLAGB}'); a(f's_lshl_b32 s{T2}, s{sJ}, 7'); a(f's_add_u32 s{T2}, s{T2}, s{T0}')
    a.wait_tag('act')
    stamp(a, cfg, 'drain', 'G')
    if cfg.mAt == 26: post(kM)
    a('s_mov_b64 exec, 1'); a(f'ds_add_rtn_u32 v{TM+9}, v{vCN}, v{TM+8} offset:{cACT}'); a('s_mov_b64 exec, -1')
    a(f'v_readfirstlane_b32 s{T3}, v{TM+9}')
    lnp = a.lab('nopollB'); lpb = a.lab('pollB'); lgb = a.lab('goB')
    if cfg.nF:
        a(f's_mov_b32 s{sNU}, s{T3}'); a(f's_cmp_lg_u32 s{sNU}, 3'); h = a.skip_begin('s_cbranch_scc1'); kf_spin(a, vCN, kF, TM + 2); a.skip_end(h)
        a(f's_mov_b32 s{T3}, s{sNU}')
    if cfg.brB:
        a(f's_mov_b32 s{sNU}, s{T3}'); a(f's_cmp_lg_u32 s{sNU}, 3'); h = a.skip_begin('s_cbranch_scc1')
        a('s_mov_b64 exec, 1'); a(f'buffer_store_dwordx2 {vr(TM+10,2)}, v{TM+13}, {sr(SA,4)}, s{T2} offen sc1'); a('s_mov_b64 exec, -1')
        a.skip_end(h, drop=True)
    else:
        a(f's_cmp_eq_u32 s{T3}, 3'); a(f's_cselect_b32 s{T2}, s{T2}, {OOB}'); a(f's_mov_b32 s{sNU}, s{T3}')
        a('s_mov_b64 exec, 1'); a(f'buffer_store_dwordx2 {vr(TM+10,2)}, v{TM+13}, {sr(SA,4)}, s{T2} offen sc1'); a('s_mov_b64 exec, -1')
        a(f's_cmp_eq_u32 s{sNU}, 3'); a(f's_cselect_b32 s{sNU+11}, s{T0}, {OOB}')
    NS = 22
    def loadP(i, hb):
        if i < cfg.npre or i >= NS or cfg.stg: return
        r = PR + 8*(i % cfg.NP)
        if hb == 0:
            for l in step_off(i, T1): a(l)
        a(f'buffer_load_dwordx4 {vr(r+4*hb,4)}, v{vPA}, {sr(SD,4)}, s{T1} offen offset:{1024*hb} {cfg.pfl}')
    def loadQ(i, hb):
        if i >= NS: return
        k = i % cfg.NQ; r = QR + 8*k
        if hb == 0:
            for l in step_off(i, sSL): a(l)
        a(f'buffer_load_dwordx4 {vr(r+4*hb,4)}, v{vQ0+hb}, {sr(SC,4)}, s{sSL} offen sc1')
    a(f's_lshl_b32 s{T2}, s{sRH}, 10'); a(f'v_add_u32 v{vQ0}, s{T2}, v{vL16}'); a(f'v_xor_b32 v{vQ1}, 1024, v{vQ0}')
    def mf2(i, mt, nt):
        p = PR + 8*(i % cfg.NP); q = QR + 8*(i % cfg.NQ); d = ACC2 + 32*mt + 16*nt
        a(f'{MF32} {vr(d,16)}, {vr(p+4*mt,4)}, {vr(q+4*nt,4)}, {vr(d,16) if i else 0}')
    i00 = 0
    if cfg.own == 'L':
        vA = TM + 4
        a(f's_and_b32 s{T2}, s{sW}, 1'); a(f's_mul_i32 s{T3}, s{T2}, {RW + 1024}'); a(f's_add_u32 s{T3}, s{T3}, {RING + 12288}')
        a(f's_lshr_b32 s{sTMP}, s{sW}, 1'); a(f's_lshl_b32 s{U0}, s{sTMP}, 11'); a(f's_add_u32 s{U0}, s{U0}, s{T3}'); a(f'v_add_u32 v{vA}, s{U0}, v{vL16}')
        a(f's_mul_i32 s{U0}, s{sTMP}, {2*RW - 4096}'); a(f's_add_u32 s{U0}, s{U0}, 4096'); a(f's_add_u32 s{U0}, s{U0}, s{T3}'); a(f'v_add_u32 v{vA+1}, s{U0}, v{vL16}')
        a(f's_mul_i32 s{T2}, s{T2}, {2*RW}'); a(f's_sub_u32 s{T2}, {RW}, s{T2}')
        a(f'v_add_u32 v{vA+2}, s{T2}, v{vA}'); a(f'v_add_u32 v{vA+3}, s{T2}, v{vA+1}')
        kf_spin(a, vCN, kE, TM + 2)
        for i in range(2):
            a(f'ds_read_b128 {vr(QR+8*i,4)}, v{vA+i}'); a(f'ds_read_b128 {vr(QR+8*i+4,4)}, v{vA+2+i}')
        i00 = 2
    elif cfg.own:
        lds_spin(a, vCN, cACT, 4, TM + 2)
        for i in range(2): loadQ(i, 0); loadQ(i, 1)
        a(f's_cmp_eq_u32 s{sOWN}, 0'); h = a.skip_begin('s_cbranch_scc1'); loadQ(2, 0); loadQ(2, 1); a.skip_end(h, drop=True)
        i00 = 2
    if not cfg.np1 and cfg.goAt > 5: wait_go()
    popP(cfg.pollB)
    if cfg.slpB: a(f's_sleep {cfg.slpB}')
    if cfg.brB:
        a(f's_cmp_lg_u32 s{sNU}, 3'); h = a.skip_begin('s_cbranch_scc1')
        a(f'buffer_load_dwordx2 {vr(TM,2)}, v{TM+12}, {sr(SA,4)}, s{T0} offen sc1'); a.skip_end(h, drop=True)
        nb = len(a.vq)
    else: a(f'buffer_load_dwordx2 {vr(TM,2)}, v{TM+12}, {sr(SA,4)}, s{sNU+11} offen sc1', tag='pb')
    if cfg.stg:
        popP(max(0, cfg.stgAt - cfg.np1 - cfg.pollB)); post(kQ)
    popP(99)
    stamp(a, cfg, 'piss', 'G')
    a(f's_mov_b32 s{sU0}, 0')
    a(f's_cmp_lg_u32 s{sNU}, 3'); a(f's_cbranch_scc1 {lnp}')
    vq = list(a.vq)
    if cfg.brB: a(f's_waitcnt vmcnt({len(a.vq) - nb})')
    else: a.wait_tag('pb')
    a.label(lpb)
    a(f'v_xor_b32 v{TM}, s{sNON}, v{TM}'); a(f'v_xor_b32 v{TM+1}, s{sNON+1}, v{TM+1}'); a(f'v_or_b32 v{TM}, v{TM}, v{TM+1}')
    a(f'v_cmp_ne_u32 vcc, 0, v{TM}'); a(f's_cbranch_vccz {lgb}')
    a(f'buffer_load_dwordx2 {vr(TM,2)}, v{TM+12}, {sr(SA,4)}, s{T0} offen sc1')
    a('s_waitcnt vmcnt(0)')
    a(f's_add_u32 s{sU0}, s{sU0}, 1'); a(f's_cmp_lt_u32 s{sU0}, {cfg.spin}'); a(f's_cbranch_scc1 {lpb}')
    a.label(lgb)
    lds_arrive(a, vCN, cGOB, TM+8)
    a.label(lnp)
    a.vq = vq
    for i in range(i00):
        for mt in range(2):
            for nt in range(2): mf2(i, mt, nt)
    if cfg.own == 'L': post(kR)
    if cfg.gateAt == 'B': gate()
    if cfg.stg: a(f's_mul_i32 s{T0}, s{sW}, {NPL*2048}'); a(f'v_add_u32 v{vPA}, s{T0}, v{vL16}')
    lds_spin(a, vCN, cGOB, 1, TM + 2, sleep='B' in cfg.slp)
    stamp(a, cfg, 'goB', 'G')
    if cfg.t3 == -1: post(k3)
    dq, dp = cfg.NQ - 1, cfg.dP
    assert dp < cfg.NP and cfg.npre <= cfg.NP
    for i in range(i00, i00 + max(dq, dp)):
        if i < i00 + dq: loadQ(i, 0); loadQ(i, 1)
        if i < i00 + dp: loadP(i, 0); loadP(i, 1)
    if cfg.gateAt == 'Q': gate()
    for i in range(i00, NS - 2):
        p = PR + 8*(i % cfg.NP); q = QR + 8*(i % cfg.NQ)
        stamp(a, cfg, f'g{i}', 'G')
        if i == cfg.t3: post(k3)
        for mt in range(2):
            for nt in range(2):
                d = ACC2 + 32*mt + 16*nt
                a(f'{MF32} {vr(d,16)}, {vr(p+4*mt,4)}, {vr(q+4*nt,4)}, {vr(d,16) if i else 0}')
                if nt == 0: loadQ(i + dq, mt)
                else: loadP(i + dp, mt)
        if i == 17: final_addr(a, cfg)
        if cfg.stg:
            if i == cfg.plAt: kf_spin(a, vCN, kP, 2)
            if cfg.plAt <= i < cfg.plAt + NPL:
                for hb in range(2): a(f'ds_read_b128 {vr(PR+8*(i-cfg.plAt)+4*hb,4)}, v{vPA} offset:{PST + (i-cfg.plAt)*2048 + 1024*hb}')
    if cfg.own == 'L': kf_spin(a, vCN, kR, 2)
    def quad(k, mt, rr): return ACC2 + 32*mt + 16*(k & 1) + 4*(2*(k >> 1) + rr)
    for k in range(1, 4):
        a(f's_xor_b32 s{T0}, s{sW}, {k}'); a(f's_mul_i32 s{T0}, s{T0}, 12288'); a(f's_add_u32 s{T0}, s{T0}, {RED}'); a(f'v_add_u32 v{4+k}, s{T0}, v{vL16}')
    def redw(k, mt, rr): a(f'ds_write_b128 v{4+k}, {vr(quad(k,mt,rr),4)} offset:{(k-1)*4096 + (2*mt+rr)*1024}')
    for mt in range(2):
        for i in (NS - 2, NS - 1): mf2(i, mt, 1)
    mf2(NS - 2, 0, 0); mf2(NS - 1, 0, 0)
    for k in (1, 3):
        for rr in range(2): redw(k, 0, rr)
    mf2(NS - 2, 1, 0)
    redw(1, 1, 0); redw(1, 1, 1)
    mf2(NS - 1, 1, 0)
    redw(3, 1, 0); redw(3, 1, 1); redw(2, 0, 0); redw(2, 0, 1)
    stamp(a, cfg, 'g2end', 'G')
    redw(2, 1, 0); redw(2, 1, 1)
    if cfg.share:
        for mt in range(2): a(f'ds_write_b128 v10, {vr(quad(0,mt,1),4)} offset:{XT + 1024*mt}')
    enc_spin(a, cfg, 'G')
    a.wait(lg=0); a('s_barrier')
    stamp(a, cfg, 'fbar', 'G')
    final_code(a, cfg, [0] if cfg.share else [0, 1], lambda mt, rr: quad(0, mt, rr), PR, 3)
    stamp(a, cfg, 'end', 'G')
    if cfg.stamps and 'end2' in cfg.gst:
        a('s_waitcnt vmcnt(0)'); stamp(a, cfg, 'end2', 'G')
    if cfg.stamps:
        stamp(a, cfg, 'c_end', 'G'); stampv(a, cfg, 'retry', 'G', sU0); srd(a, SA, sWS, WSZ); stamps_out(a, cfg, 10, SA)
    a('s_endpgm')

def cs_pairs(a, base, step, mults, tmp, outs):
    for g in range(len(mults)//4):
        an, c, s = tmp, tmp + 4, tmp + 8
        for k in range(4):
            m = mults[4*g+k]
            if m: a(f'v_fmamk_f32 v{an+k}, v{step}, {f32(float(m))}, v{base}')
        src = lambda k: an + k if mults[4*g+k] else base
        for k in range(4): a(f'v_cos_f32 v{c+k}, v{src(k)}')
        for k in range(4): a(f'v_sin_f32 v{s+k}, v{src(k)}')
        L = [(kind, dst, p) for p in range(2) for kind, dst in outs(2*g+p)]
        L.sort(key=lambda x: x[0] != 'c')
        for kind, dst, p in L:
            if kind == 'c': a(f'v_cvt_pk_bf16_f32 v{dst}, v{c+2*p}, v{c+2*p+1}')
            elif kind == 's': a(f'v_cvt_pk_bf16_f32 v{dst}, v{s+2*p}, v{s+2*p+1}')
            else: a(f'v_cvt_pk_bf16_f32 v{dst}, -v{s+2*p}, -v{s+2*p+1}')

def gen_F(a, cfg):
    a0 = a
    vN, vQ, vL16, vCN, vONE = 2, 3, 12, 4, 5
    vE2, vMA, vMB, vNf, vQf, vN4 = 6, 7, 8, 9, 10, 15
    M1, M2, M4, M5, N8, N64, WF, IN, WK, PK = 16, 48, 72, 96, 128, 152, 184, 200, 232, 248
    sB, sK1, sROT, sPAIR = 58, 59, 60, 61
    mK0, mK5, mK04 = 62, 64, 66
    sWD = 68; sW2D = 44
    sE2, sE1, sIH, sKH = 70, 72, 74, 75
    a0.label('L_F')
    task_id(a)
    a('s_waitcnt lgkmcnt(0)'); a('s_barrier')
    t = WK
    a(f'v_and_b32 v{vN}, 15, v1'); a(f'v_lshrrev_b32 v{vQ}, 4, v1')
    if cfg.prio0: a(f's_setprio {cfg.prio0}')
    if cfg.w1t:
        srd(a, SB, sW1, 512*2752)
        a(f's_mul_i32 s{T0}, s2, 5504'); a(f's_mul_i32 s{T1}, s{sW}, {22*64}'); a(f's_add_u32 s{T0}, s{T0}, s{T1}'); a(f'v_lshlrev_b32 v{t}, 6, v1')
        a(f's_mov_b64 exec, {(1 << 22) - 1}'); a(f'buffer_load_dword v199, v{t}, {sr(SB,4)}, s{T0} offen'); a('s_mov_b64 exec, -1')
    if cfg.stgBy == 'F':
        stg = Staging(a, cfg, IN); stg.w2(); stg.addr(); stg.w()
    if cfg.prio0: a('s_setprio 0')
    stamp(a, cfg, 'iss', 'F')
    a(f's_load_dwordx2 {sr(sNON,2)}, {sr(sWS,2)}, {NONCE}')
    srd(a, SA, sWS, WSZ)
    a(f'v_mov_b32 v{vONE}, 1')
    if 'G' in cfg.abl:
        lds_arrive(a, vCN, cGO, vONE); a(f'v_add_u32 v14, s{sW}, v{vCN}'); a(f'ds_write_b8 v14, v{vONE} offset:{4*kS}'); a.wait(lg=0); nonce(a); a('s_branch L_FQ')
    LW, LM, P0, P1 = M4, 188, 168, 176
    vSG, vAL, vAU, vMA_, vMB_, vT2 = M5, M5 + 3, M5 + 4, M5 + 5, M5 + 6, M5 + 7
    vWD, vMD, vD2 = 192, 193, 194
    mZ, mP = 76, 78
    def perm_addr(a):
        t = WK
        vK, vC = t, t + 1
        a(f's_cmp_eq_u32 s{sG0}, 0'); a(f's_cselect_b64 {sr(mZ,2)}, -1, 0')
        a(f'v_lshrrev_b32 v{vK}, 3, v1'); a(f'v_and_b32 v{t+2}, 7, v1'); a(f'v_lshl_add_u32 v{vC}, v{t+2}, 3, v{vK}')
        a(f's_lshl_b32 s{T2}, s{sW}, 6'); a(f'v_add_u32 v{vC}, s{T2}, v{vC}')
        a(f'v_mul_u32_u24 v{vWD}, {cfg.SW}, v{vK}'); a(f'v_lshl_add_u32 v{vWD}, v{t+2}, 4, v{vWD}'); a(f's_lshl_b32 s{T1}, s{sW}, 7'); a(f'v_add_u32 v{vWD}, s{T1}, v{vWD}')
        a(f'v_cmp_eq_u32 vcc, 0, v{vC}'); a(f'v_mov_b32 v{t+7}, {OOB}'); a(f'v_cndmask_b32 v{vWD}, v{vWD}, v{t+7}, vcc')
        a(f's_lshl_b32 s{T0}, s{sG0}, 1'); a(f's_and_b32 s{T0}, s{T0}, 15'); a(f's_sub_u32 s{T1}, 16, s{T0}'); a(f's_and_b32 s{T1}, s{T1}, 15')
        a(f's_add_u32 s{T0}, s{T0}, {FA}'); a(f's_add_u32 s{T1}, s{T1}, {FA + 8*WP + 512}')
        a(f'v_cmp_lt_u32 vcc, 4, v{vK}'); a(f's_and_b64 vcc, vcc, {sr(mZ,2)}'); a(f'v_mov_b32 v{t+3}, {16*WP}'); a(f'v_cndmask_b32 v{t+4}, 0, v{t+3}, vcc')
        a(f'v_lshlrev_b32 v{vC}, 1, v{vC}'); a(f'v_add3_u32 v{vAL}, v{vC}, s{T0}, v{t+4}')
        a(f'v_sub_u32 v{vAU}, s{T1}, v{vC}'); a(f'v_add_u32 v{vAU}, v{vAU}, v{t+4}')
        a(f'v_and_b32 v{t+5}, 3, v{vK}'); a(f'v_cmp_eq_u32 vcc, 0, v{t+5}'); a(f's_and_b64 {sr(mP,2)}, vcc, {sr(mZ,2)}')
        a(f'v_add_u32 v{t+5}, v{vAL}, v{t+3}'); a(f'v_cndmask_b32 v{vAU}, v{vAU}, v{t+5}, {sr(mP,2)}')
        a(f'v_mov_b32 v{vSG}, 0x80000000'); a(f'v_cndmask_b32 v{vSG}, v{vSG}, 0, {sr(mP,2)}')
        a(f'v_bfe_u32 v{t}, v1, 2, 1'); a(f'v_bfe_u32 v{t+1}, v1, 3, 1'); a(f'v_and_b32 v{t+2}, 3, v1')
        a(f'v_mul_u32_u24 v{t+4}, {16*WP}, v{t}'); a(f'v_cndmask_b32 v{t+4}, 0, v{t+4}, {sr(mZ,2)}')
        a(f'v_cndmask_b32 v{t+5}, v{t}, v{t+1}, {sr(mZ,2)}'); a(f'v_lshlrev_b32 v{t+5}, 9, v{t+5}')
        a(f'v_mul_u32_u24 v{t+6}, {WP}, v{t+2}'); a(f'v_add3_u32 v{t+4}, v{t+4}, v{t+5}, v{t+6}')
        a(f'v_add_u32 v{vMA_}, s{T0}, v{t+4}'); a(f's_sub_u32 s{T1}, s{T1}, 512'); a(f'v_add_u32 v{vMB_}, s{T1}, v{t+4}')
        a(f's_mul_i32 s{T0}, s{sG0}, {8*cfg.SW}'); a(f's_lshl_b32 s{T1}, s{sJ}, 10'); a(f's_add_u32 s{sWD}, s{T0}, s{T1}'); a(f's_add_u32 s{sWD}, s{sWD}, {WB}')
        a(f'v_lshlrev_b32 v{t+4}, 9, v{t}'); a(f'v_add_u32 v{t+4}, s{sWD}, v{t+4}')
        a(f's_lshl_b32 s{T1}, s{sJ}, 4'); a(f's_add_u32 s{T1}, s{T1}, {WBX}'); a(f'v_lshlrev_b32 v{t+5}, 7, v{t}'); a(f'v_add_u32 v{t+5}, s{T1}, v{t+5}')
        a(f'v_cmp_eq_u32 vcc, 0, v{t+1}'); a(f'v_cndmask_b32 v{vMD}, v{t+5}, v{t+4}, vcc'); a(f'v_lshl_add_u32 v{vMD}, v{t+2}, 2, v{vMD}')
        a(f's_cmp_eq_u32 s{sG0}, 0'); a(f's_cselect_b32 s{T1}, 16, 8'); a(f'v_cmp_gt_u32 vcc, s{T1}, v1'); a(f'v_cndmask_b32 v{vMD}, v{t+7}, v{vMD}, vcc')
        a(f'v_bfe_u32 v{t}, v1, 2, 2'); a(f'v_lshlrev_b32 v{vT2}, 10, v{t}'); a(f'v_bfe_u32 v{t}, v1, 1, 1'); a(f'v_lshl_add_u32 v{vT2}, v{t}, 7, v{vT2}')
        a(f'v_and_b32 v{t}, 1, v1'); a(f'v_lshl_add_u32 v{vT2}, v{t}, 3, v{vT2}'); a(f'v_lshl_add_u32 v{vT2}, v{vQ}, 4, v{vT2}')
        a(f's_lshl_b32 s{T0}, s{sW}, 8'); a(f'v_add_u32 v{vT2}, s{T0}, v{vT2}')
        a(f's_mov_b32 s{T1}, {REG}'); a(f'v_mul_lo_u32 v{vD2}, v{vQ}, s{T1}'); a(f'v_and_b32 v{t}, 1, v1'); a(f'v_lshl_add_u32 v{vD2}, v{t}, 10, v{vD2}')
        a(f'v_bfe_u32 v{t}, v1, 1, 3'); a(f'v_lshl_add_u32 v{vD2}, v{t}, 4, v{vD2}'); a(f's_lshl_b32 s{T0}, s{sW}, 7'); a(f'v_add_u32 v{vD2}, s{T0}, v{vD2}')
        a(f's_lshr_b32 s{T2}, s{sTK}, 1'); a(f's_lshl_b32 s{T2}, s{T2}, 11'); a(f's_and_b32 s{T1}, s{sTK}, 1'); a(f's_lshl_b32 s{T1}, s{T1}, 9'); a(f's_add_u32 s{T2}, s{T2}, s{T1}')
        a(f's_add_u32 s{sW2D}, s{T2}, {W2P}'); a(f's_add_u32 s{sW2D+1}, s{sW2D}, {4*REG}')
    def job_r(a):
        if cfg.paLate: perm_addr(a)
        kf_spin(a, vCN, kW, IN, sleep=True); stamp(a, cfg, 'kW', 'F')
        for up in range(2):
            for ar in range(2):
                for r in range(4): a(f'ds_read_u16 v{LW+8*up+4*ar+r}, v{vAU if up else vAL} offset:{(4*ar+r)*WP}')
            if up == 0:
                for u in range(2):
                    for hf in range(2): a(f'ds_read_b64_tr_b16 {vr(P0+4*u+2*hf,2)}, v{vT2} offset:{FB + 4096*hf + 64*u}')
        for r in range(4): a(f'v_lshl_or_b32 v{P1+r}, v{LW+4+r}, 16, v{LW+r}')
        a(f'ds_read_u16 v{LM}, v{vMA_}'); a(f'ds_read_u16 v{LM+1}, v{vMA_} offset:{4*WP}'); a(f'ds_read_u16 v{LM+2}, v{vMB_}'); a(f'ds_read_u16 v{LM+3}, v{vMB_} offset:{4*WP}')
        for r in range(4):
            a(f'v_lshl_or_b32 v{P1+4+r}, v{LW+12+r}, 16, v{LW+8+r}'); a(f'v_xor_b32 v{P1+4+r}, v{P1+4+r}, v{vSG}')
        for k in range(4): a(f'v_lshlrev_b32 v{LM+k}, 16, v{LM+k}')
        a(f'v_add_f32 v{LM}, v{LM}, v{LM+2}'); a(f'v_sub_f32 v{LM+1}, v{LM+1}, v{LM+3}')
        a(f'v_mul_f32 v{LM}, 0.5, v{LM}'); a(f'v_mul_f32 v{LM+1}, 0.5, v{LM+1}'); a(f'v_cvt_pk_bf16_f32 v{LM}, v{LM}, v{LM+1}')
    mark = {}
    def job_w(a):
        a(f's_cmp_ge_u32 s{sTK}, 172'); h = a.skip_begin('s_cbranch_scc1')
        for u in range(2): a(f'buffer_store_dwordx4 {vr(P0+4*u,4)}, v{vD2}, {sr(SA,4)}, s{sW2D+u} offen sc1')
        a.skip_end(h, drop=True)
        mark['w'] = len(a.vq)
    def job_b(a):
        a(f'buffer_store_dwordx4 {vr(P1,4)}, v{vWD}, {sr(SA,4)}, s{sWD} offen sc1')
        a(f'buffer_store_dwordx4 {vr(P1+4,4)}, v{vWD}, {sr(SA,4)}, s{sWD} offen offset:512 sc1')
        a(f's_cmp_lg_u32 s{sW}, 3'); h = a.skip_begin('s_cbranch_scc1')
        a(f'buffer_store_dword v{LM}, v{vMD}, {sr(SA,4)}, 0 offen sc1')
        a.skip_end(h, drop=True)
    def job_c(a):
        if not cfg.clrF: return
        for k in range(4): a(f'v_mov_b32 v{P1+8+k}, -1')
        for tt in range(2): a(f'buffer_store_dwordx4 {vr(P1+8,4)}, v{vE2}, {sr(SA,4)}, s{sE2+tt} offen sc1')
    def job_h(a):
        if cfg.hold: a(f'v_add_u32 v14, s{sW}, v{vCN}'); a(f'ds_write_b8 v14, v{vONE} offset:{4*kS}')
        stamp(a, cfg, 'wiss', 'F')
    def signal(a, base, stride, cnt, younger):
        f0 = WK
        a(f'v_mov_b32 v{f0}, s{sNON}'); a(f'v_mov_b32 v{f0+1}, s{sNON+1}'); a(f'v_mov_b32 v{f0+2}, 0')
        a(f's_mul_i32 s{T0}, s2, {stride}'); a(f's_add_u32 s{T0}, s{T0}, {base}')
        a(f's_waitcnt vmcnt({younger})')
        a('s_mov_b64 exec, 1'); a(f'ds_add_rtn_u32 v{f0+3}, v{vCN}, v{vONE} offset:{cnt}')
        a(f'v_readfirstlane_b32 s{T1}, v{f0+3}')
        a(f's_cmp_lg_u32 s{T1}, 3'); h = a.skip_begin('s_cbranch_scc1')
        a(f'buffer_store_dwordx2 {vr(f0,2)}, v{f0+2}, {sr(SA,4)}, s{T0} offen sc1')
        a.skip_end(h, drop=True)
        a('s_mov_b64 exec, -1')
    def poll(a, base, stride, cnt, name, pr, hook=None):
        lgo = a.lab('go'); lp = a.lab('poll')
        a(f's_mul_i32 s{T0}, s{sW}, {64*stride}'); a(f's_add_u32 s{T0}, s{T0}, {base}'); a(f's_mov_b32 s{T1}, 0'); a(f'v_mul_u32_u24 v{pr+2}, {stride}, v1')
        a.label(lp)
        a(f'buffer_load_dwordx2 {vr(pr,2)}, v{pr+2}, {sr(SA,4)}, s{T0} offen sc1')
        if hook: a('s_waitcnt vmcnt(1)'); hook(a)
        a('s_waitcnt vmcnt(0)')
        a(f'v_xor_b32 v{pr}, s{sNON}, v{pr}'); a(f'v_xor_b32 v{pr+1}, s{sNON+1}, v{pr+1}'); a(f'v_or_b32 v{pr}, v{pr}, v{pr+1}')
        a(f'v_cmp_ne_u32 vcc, 0, v{pr}')
        a(f's_cbranch_vccz {lgo}')
        a(f's_sleep {cfg.slpA}'); a(f's_add_u32 s{T1}, s{T1}, 1'); a(f's_cmp_lt_u32 s{T1}, {cfg.spin}'); a(f's_cbranch_scc1 {lp}')
        a.label(lgo)
        lds_arrive(a, vCN, cnt, vONE)
        stampv(a, cfg, name, 'F', T1)
    F64, F8 = 128, 144
    a(f's_and_b32 s{sIH}, s{sW}, 1'); a(f's_lshr_b32 s{sKH}, s{sW}, 1')
    a(f'v_cvt_f32_u32 v{vNf}, v{vN}'); a(f'v_cvt_f32_u32 v{vQf}, v{vQ}')
    a(f's_lshl_b32 s{T0}, s{sKH}, 4'); a(f'v_add_u32 v{t}, s{T0}, v{vN}'); a(f'v_cmp_eq_u32 {sr(mK0,2)}, 0, v{t}')
    a(f'v_cvt_f32_u32 v{t}, v{t}'); a(f'v_mul_f32 v{t}, {f32(1/64)}, v{t}'); a(f'v_mul_f32 v{t+1}, {f32(8.0)}, v{vQf}'); a(f'v_mul_f32 v{t+1}, v{t+1}, v{t}')
    cs_pairs(a, t+1, t, [32*st + e for st in range(2) for e in range(8)], t+2,
             lambda pi: [('c', F64 + 8*(pi//4) + pi % 4), ('m', F64 + 8*(pi//4) + 4 + pi % 4)])
    a(f'v_mov_b32 v{t}, 0xbf803f80')
    for st in range(2):
        for k in range(4): a(f'v_cndmask_b32 v{F64+8*st+4+k}, v{F64+8*st+4+k}, v{t}, {sr(mK0,2)}')
    a(f'v_and_b32 v{t}, 1, v1'); a(f'v_lshlrev_b32 v{t}, 4, v{t}'); a(f'v_mov_b32 v{t+1}, 0xffff'); a(f'v_lshlrev_b32 v{t}, v{t}, v{t+1}')
    a(f'v_and_b32 v{t+1}, 2, v1'); a(f'v_cmp_eq_u32 vcc, 0, v{t+1}')
    a(f'v_lshrrev_b32 v{vN4}, 2, v{vN}'); a(f'v_cvt_f32_u32 v{vN4}, v{vN4}'); a(f'v_mul_f32 v{vN4}, {f32(0.125)}, v{vN4}')
    a(f'v_cndmask_b32 v{vMA}, 0, v{t}, vcc'); a(f'v_xor_b32 v{vMB}, v{vMA}, v{t}')
    def dft8(a, t, emit):
        a(f'v_add_f32 v{t}, 0.5, v{vN4}'); a(f'v_add_f32 v{t+1}, 4.0, v{vQf}')
        for i in range(2):
            for k in range(2): a(f'v_mul_f32 v{t+2+2*i+k}, v{t if i else vN4}, v{t+1 if k else vQf}')
        for u in range(4): a(f'v_cos_f32 v{t+6+u}, v{t+2+u}')
        for u in range(4): a(f'v_sin_f32 v{t+10+u}, v{t+2+u}')
        for u in range(4): a(f'v_cvt_pk_bf16_f32 v{t+6+u}, v{t+6+u}, v{t+6+u}')
        for u in range(4): a(f'v_cvt_pk_bf16_f32 v{t+2+u}, -v{t+10+u}, -v{t+10+u}')
        for u in range(4): a(f'v_cvt_pk_bf16_f32 v{t+10+u}, v{t+10+u}, v{t+10+u}')
        for u in range(4):
            for kind, src in (('c', t+6+u), ('m', t+2+u), ('s', t+10+u)):
                d = emit(u >> 1, u & 1, kind)
                a(f'v_and_b32 v{d}, v{src}, v{vMA}'); a(f'v_and_b32 v{d+1}, v{src}, v{vMB}')
    a(f's_mul_i32 s{T0}, s{sIH}, {f32(0.5)}'); a(f'v_add_f32 v{t}, s{T0}, v{vN4}'); a(f'v_add_f32 v{t+1}, 4.0, v{vQf}')
    a(f'v_mul_f32 v{t+2}, v{t}, v{vQf}'); a(f'v_mul_f32 v{t+3}, v{t}, v{t+1}')
    for u in range(2): a(f'v_cos_f32 v{t+4+u}, v{t+2+u}')
    for u in range(2): a(f'v_sin_f32 v{t+6+u}, v{t+2+u}')
    for u in range(2): a(f'v_cvt_pk_bf16_f32 v{t+4+u}, v{t+4+u}, v{t+4+u}')
    for u in range(2): a(f'v_cvt_pk_bf16_f32 v{t+2+u}, -v{t+6+u}, -v{t+6+u}')
    for u in range(2): a(f'v_cvt_pk_bf16_f32 v{t+6+u}, v{t+6+u}, v{t+6+u}')
    for u in range(2):
        for o_, src in ((0, t+4+u), (8, t+2+u), (4, t+6+u)):
            a(f'v_and_b32 v{F8+o_+2*u}, v{src}, v{vMA}'); a(f'v_and_b32 v{F8+o_+2*u+1}, v{src}, v{vMB}')
    stamp(a, cfg, 'con1', 'F')
    vTR, vE1 = 11, 13
    a(f'v_lshlrev_b32 v{t}, 3, v{vQ}'); a(f'v_bfe_u32 v{t+1}, v1, 2, 2'); a(f'v_add_u32 v{t}, v{t}, v{t+1}'); a(f'v_mul_u32_u24 v{t}, {XP}, v{t}')
    a(f'v_and_b32 v{t+1}, 3, v1'); a(f'v_lshl_add_u32 v{t}, v{t+1}, 7, v{t}')
    a(f's_lshl_b32 s{T0}, s{sJ}, 4'); a(f'v_add_u32 v{vTR}, s{T0}, v{t}')
    a(f'v_lshrrev_b32 v{t}, 2, v{vN}'); a(f'v_and_b32 v{t+1}, 2, v{vQ}'); a(f'v_lshl_add_u32 v{t}, v{t}, 3, v{t+1}')
    a(f's_lshl_b32 s{T0}, s{sKH}, 5'); a(f's_lshl_b32 s{T1}, s{sIH}, 2'); a(f's_add_u32 s{T0}, s{T0}, s{T1}'); a(f'v_add_u32 v{t}, s{T0}, v{t}')
    a(f'v_mul_u32_u24 v{t}, {cfg.S1}, v{t}'); a(f'v_and_b32 v{t+1}, 3, v{vN}'); a(f'v_lshl_add_u32 v{t}, v{t+1}, 5, v{t}')
    a(f'v_and_b32 v{t+1}, 1, v{vQ}'); a(f'v_lshl_add_u32 v{vE1}, v{t+1}, 4, v{t}')
    a(f's_lshl_b32 s{T0}, s{sG0}, 3'); a(f's_add_u32 s{sB}, s{T0}, s{sJ}')
    a(f's_lshl_b32 s{T0}, s{sB}, 7'); a(f's_add_u32 s{sE1}, s{T0}, {E1}'); a(f's_add_u32 s{sE1+1}, s{sE1}, {cfg.S1}')
    a(f'v_cmp_eq_u32 vcc, 0, v{vQ}'); a(f's_and_b64 {sr(mK04,2)}, vcc, {sr(mK0,2)}'); a(f's_andn2_b64 {sr(mK5,2)}, {sr(mK0,2)}, vcc')
    a(f's_cmp_eq_u32 s{sIH}, 0'); a(f's_cselect_b64 {sr(mK5,2)}, 0, {sr(mK5,2)}')
    if not cfg.paLate: perm_addr(a)
    a(f's_cmp_eq_u32 s{sG0}, 0'); a(f's_cselect_b32 s{T0}, 1, 0')
    a(f's_and_b32 s{T1}, s{sJ}, 3'); a(f's_cmp_eq_u32 s{T1}, 0'); a(f's_cselect_b32 s{sPAIR}, s{T0}, 0')
    a(f's_cmp_gt_u32 s{sJ}, 4'); a(f's_cselect_b32 s{T1}, s{T0}, 0')
    a(f's_mul_i32 s{sROT}, s{T1}, {f32(0.25)}')
    a(f's_lshr_b32 s{T2}, s{sW}, 1')
    a(f's_and_b32 s{T2}, s{T2}, s{sPAIR}'); a(f's_or_b32 s{T1}, s{T1}, s{T2}'); a(f's_lshl_b32 s{T1}, s{T1}, 5')
    a(f's_add_u32 s{sK1}, s{sG0}, s{T1}')
    nonce(a)
    t = IN
    def con_M1(a):
        if 'f' in cfg.abl: return
        a(f's_lshl_b32 s{T0}, s{sPAIR}, 1'); a(f's_andn2_b32 s{T0}, s{sW}, s{T0}'); a(f's_lshl_b32 s{T0}, s{T0}, 7'); a(f's_add_u32 s{T0}, s{T0}, s{sJ}')
        a(f'v_lshlrev_b32 v{t}, 3, v{vN}'); a(f'v_add_u32 v{t}, s{T0}, v{t}'); a(f'v_cvt_f32_u32 v{t}, v{t}'); a(f'v_mul_f32 v{t}, {f32(1/512)}, v{t}')
        a(f'v_mul_f32 v{t+1}, 4.0, v{vQf}'); a(f'v_mul_f32 v{t+1}, v{t+1}, v{t}')
        cs_pairs(a, t+1, t, [16*sg + e for sg in range(4) for e in range(4)], t+2,
                 lambda pi: [('c', M1 + 8*(pi//2) + pi % 2), ('s', M1 + 8*(pi//2) + 2 + pi % 2), ('m', M1 + 8*(pi//2) + 4 + pi % 2), ('c', M1 + 8*(pi//2) + 6 + pi % 2)])
    def con_M2(a):
        if 'f' in cfg.abl: return
        for t2 in range(2):
            a(f'v_lshlrev_b32 v{t}, 6, v{vN}'); a(f's_add_u32 s{T0}, s{sK1}, {1024*t2}'); a(f'v_add_u32 v{t}, s{T0}, v{t}'); a(f'v_cvt_f32_u32 v{t}, v{t}'); a(f'v_mul_f32 v{t}, {f32(1/2048)}, v{t}')
            a(f'v_mul_f32 v{t+1}, 4.0, v{vQf}'); a(f'v_mul_f32 v{t+1}, v{t+1}, v{t}')
            cs_pairs(a, t+1, t, [16*tt + r for tt in range(2) for r in range(4)], t+2,
                     lambda pi: [('c', M2 + 12*t2 + pi), ('s', M2 + 12*t2 + 4 + pi), ('m', M2 + 12*t2 + 8 + pi)])
    def con_M4(a):
        if 'f' in cfg.abl: return
        a(f'v_lshlrev_b32 v{t+14}, 8, v{vQ}'); a(f'v_add_u32 v{t+14}, s{sK1}, v{t+14}'); a(f'v_cvt_f32_u32 v{t+14}, v{t+14}'); a(f'v_mul_f32 v{t+14}, {f32(1/64)}, v{t+14}')
        for tt in range(2):
            a(f'v_add_f32 v{t}, {f32(16.0*tt)}, v{vNf}'); a(f'v_mul_f32 v{t}, {f32(1/32)}, v{t}')
            a(f'v_fma_f32 v{t+1}, v{t}, v{t+14}, s{sROT}')
            cs_pairs(a, t+1, t, [16*t2 + r for t2 in range(2) for r in range(4)], t+2,
                     lambda pi: [('c', M4 + 12*tt + pi), ('s', M4 + 12*tt + 4 + pi), ('m', M4 + 12*tt + 8 + pi)])
    def con_M5(a):
        if 'f' in cfg.abl: return
        a(f's_lshl_b32 s{T0}, s{sW}, 4'); a(f'v_add_u32 v{t}, s{T0}, v{vN}'); a(f'v_cvt_f32_u32 v{t}, v{t}'); a(f'v_mul_f32 v{t}, {f32(1/64)}, v{t}')
        a(f'v_lshlrev_b32 v{t+1}, 5, v{vQ}'); a(f'v_add_u32 v{t+1}, s{sJ}, v{t+1}'); a(f'v_cvt_f32_u32 v{t+1}, v{t+1}'); a(f'v_mul_f32 v{t+1}, {f32(0.125)}, v{t+1}'); a(f'v_mul_f32 v{t+1}, v{t+1}, v{t}')
        cs_pairs(a, t+1, t, [16*sg + e for sg in range(4) for e in range(4)], t+2,
                 lambda pi: [('c', M5 + 8*(pi//2) + pi % 2), ('m', M5 + 8*(pi//2) + 2 + pi % 2), ('s', M5 + 8*(pi//2) + 4 + pi % 2), ('c', M5 + 8*(pi//2) + 6 + pi % 2)])
    conj = {'1': con_M1, '2': con_M2, '4': con_M4, '5': con_M5}
    for c in cfg.pre: conj[c](a)
    if cfg.prioF: a(f's_setprio {cfg.prioF}')
    stamp(a, cfg, 'perm', 'F')
    stamp(a, cfg, 'preX', 'F')
    if cfg.stgBy == 'F':
        a('s_waitcnt vmcnt(0)'); a(f'v_add_u32 v14, s{sW}, v{vCN}'); a(f'ds_write_b8 v14, v{vONE} offset:{4*kW}')
    kf_spin(a, vCN, kX, IN, sleep='X' in cfg.slp)
    stamp(a, cfg, 'X', 'F')
    assert not cfg.pre
    DA, C1, PB, BM, C2, Z, O = IN, M1, M2, M2 + 16, WK, IN, IN + 16
    for ih in range(2):
        for st in range(2):
            for tt in range(2):
                for hf in range(2):
                    a(f'ds_read_b64_tr_b16 {vr(DA+16*ih+8*st+4*tt+2*hf,2)}, v{vTR} offset:{XT + (32*st+4*hf)*XP + 512*tt + 8*ih}')
    for ih in range(2):
        for st in range(2):
            for tt in range(2):
                for c in range(2):
                    d = C1 + 16*ih + 8*c + 4*tt
                    a(f'{MF16} {vr(d,4)}, {vr(DA+16*ih+8*st+4*tt,4)}, {vr(F64+8*st+4*c,4)}, {vr(d,4) if st else 0}')
    cc, ss, mm = F8, F8 + 4, F8 + 8
    for ih in range(2):
        for k in range(8): a(f'v_cvt_pk_bf16_f32 v{PB+8*ih+k}, v{C1+16*ih+2*k}, v{C1+16*ih+2*k+1}')
        for k in range(4): a(f'v_cndmask_b32 v{BM+4*ih+k}, v{PB+8*ih+4+k}, 0, {sr(mK0,2)}')
        a(f'{MF16} {vr(C2+8*ih,4)}, {vr(cc,4)}, {vr(PB+8*ih,4)}, 0')
        a(f'{MF16} {vr(C2+8*ih+4,4)}, {vr(mm,4)}, {vr(PB+8*ih,4)}, 0')
        a(f'{MF16} {vr(Z+8*ih,4)}, {vr(cc,4)}, {vr(PB+8*ih+4,4)}, 0')
        a(f'{MF16} {vr(Z+8*ih+4,4)}, {vr(mm,4)}, {vr(PB+8*ih+4,4)}, 0')
        a(f'{MF16} {vr(C2+8*ih,4)}, {vr(ss,4)}, {vr(BM+4*ih,4)}, {vr(C2+8*ih,4)}')
        a(f'{MF16} {vr(C2+8*ih+4,4)}, {vr(cc,4)}, {vr(BM+4*ih,4)}, {vr(C2+8*ih+4,4)}')
    for ih in range(2):
        for k in range(4): a(f'v_cvt_pk_bf16_f32 v{PK+4*ih+k}, v{Z+8*ih+2*k}, v{Z+8*ih+2*k+1}')
        for k in range(4): a(f'v_cvt_pk_bf16_f32 v{O+4*ih+k}, v{C2+8*ih+2*k}, v{C2+8*ih+2*k+1}')
        for k in range(2): a(f'v_cndmask_b32 v{O+4*ih+2+k}, v{O+4*ih+2+k}, v{PK+4*ih+k}, {sr(mK04,2)}')
        for k in range(4): a(f'v_cndmask_b32 v{O+4*ih+k}, v{O+4*ih+k}, v{PK+4*ih+k}, {sr(mK5,2)}')
        for k in range(4): a(f'v_or_b32 v{O+4*ih+k}, 1, v{O+4*ih+k}')
    for k in range(4): a(f'v_permlane16_swap_b32 v{O+k}, v{O+4+k}')
    def job_E(a):
        for t2 in range(2): a(f'buffer_store_dwordx4 {vr(O+4*t2,4)}, v{vE1}, {sr(SA,4)}, s{sE1+t2} offen sc1', tag='e1')
    def job_d(a):
        stamp(a, cfg, 'pred', 'F'); kf_spin(a, vCN, kD, IN, sleep=True); stamp(a, cfg, 'd', 'F')
    stamp(a, cfg, 'fft1', 'F')
    HB, XS = N64, N64 + 16
    def fixups(a):
        t = IN + 4
        a(f's_cmp_eq_u32 s{sPAIR}, 0'); h = a.skip_begin('s_cbranch_scc1')
        a(f's_cmp_lg_u32 s{sJ}, 0'); h2 = a.skip_begin('s_cbranch_scc1')
        a(f's_and_b32 s{T0}, s{sW}, 1'); a(f'v_or_b32 v{t}, s{T0}, v{vN}'); a(f'v_cmp_eq_u32 vcc, 0, v{t}'); a(f'v_mov_b32 v{t}, 0xbf803f80')
        for sg in range(4):
            for k in range(2): a(f'v_cndmask_b32 v{M1+8*sg+4+k}, v{M1+8*sg+4+k}, v{t}, vcc')
        a(f'v_cmp_eq_u32 vcc, 0, v{vQ}'); a(f'v_mov_b32 v{t+2}, 0xffff')
        a(f'v_mov_b32 v{t}, 0x3f00'); a(f'v_bfi_b32 v{t}, v{t+2}, v{t}, v{M5}'); a(f'v_cndmask_b32 v{M5}, v{M5}, v{t}, vcc')
        a(f'v_and_b32 v{t}, 1, v{vN}'); a(f'v_lshlrev_b32 v{t}, 15, v{t}'); a(f'v_or_b32 v{t}, 0x3f00, v{t}'); a(f'v_bfi_b32 v{t}, v{t+2}, v{t}, v{M5+2}'); a(f'v_cndmask_b32 v{M5+2}, v{M5+2}, v{t}, vcc')
        a.skip_end(h2)
        for sg in range(2):
            for k in range(4):
                a(f'v_mov_b32 v{M5+8*(sg+2)+4+k}, v{M5+8*sg+k}'); a(f'v_mov_b32 v{M5+8*(sg+2)+k}, 0'); a(f'v_mov_b32 v{M5+8*sg+4+k}, 0')
        a(f's_cmp_ge_u32 s{sW}, 2'); a(f's_cselect_b64 vcc, -1, 0')
        for sg in range(4):
            for k in range(2):
                for o in (0, 4):
                    a(f'v_cndmask_b32 v{M1+8*sg+o+2+k}, 0, v{M1+8*sg+o+k}, vcc'); a(f'v_cndmask_b32 v{M1+8*sg+o+k}, v{M1+8*sg+o+k}, 0, vcc')
        a.skip_end(h)
    vIN, vWB, sI, sWb, WR = 13, 11, 72, 74, N8
    def job_k(a):
        a(f'v_lshrrev_b32 v{vE2}, 1, v{vQ}'); a(f'v_lshlrev_b32 v{vE2}, 7, v{vE2}'); a(f'v_lshl_add_u32 v{vE2}, v{vN}, 10, v{vE2}'); a(f'v_and_b32 v{vIN}, 1, v{vQ}'); a(f'v_lshl_add_u32 v{vE2}, v{vIN}, 4, v{vE2}')
        a(f's_lshr_b32 s{T0}, s{sG0}, 2'); a(f's_lshl_b32 s{T0}, s{T0}, 3'); a(f's_add_u32 s{T0}, s{T0}, s{sJ}'); a(f's_mul_i32 s{T0}, s{T0}, {cfg.S1}')
        a(f's_and_b32 s{T1}, s{sG0}, 3'); a(f's_lshl_b32 s{T1}, s{T1}, 5'); a(f's_add_u32 s{T0}, s{T0}, s{T1}'); a(f's_lshl_b32 s{T1}, s{sW}, 8'); a(f's_add_u32 s{T0}, s{T0}, s{T1}')
        a(f's_add_u32 s{sE2}, s{T0}, {E1}'); a(f's_add_u32 s{sE2+1}, s{sE2}, 16384')
        a(f'v_lshlrev_b32 v{vWB}, 10, v{vQ}'); a(f'v_lshl_add_u32 v{vWB}, v{vN}, 4, v{vWB}')
        a(f's_mul_i32 s{T0}, s{sB}, {cfg.SW}'); a(f's_add_u32 s{T0}, s{T0}, s{T1}'); a(f's_add_u32 s{sWb}, s{T0}, {WB}'); a(f's_add_u32 s{sWb+1}, s{sWb}, 4096')
        stamp(a, cfg, 'prepoll', 'F')
        if cfg.pollAt is not None: kf_spin(a, vCN, cfg.pollAt, IN + 4, sleep=True)
        stamp(a, cfg, 'poll', 'F')
    def job_a(a):
        poll(a, FLAGA, cfg.FS, cGO, 'pollsA', IN, job_N if ('M' in cfg.ford and 'N' not in cfg.ford) else None)
        lds_spin(a, vCN, cGO, 4, IN + 3, sleep='A' in cfg.slp)
        stamp(a, cfg, 'go', 'F')
    def job_i(a):
        for tt in range(2):
            a(f's_lshl_b32 s{T0}, s{sW}, 11'); a(f's_add_u32 m0, s{T0}, {FA + 1024*tt}')
            a(f'buffer_load_dwordx4 v{vE2}, {sr(SA,4)}, s{sE2+tt} offen sc1 lds', tag='in')
    def job_X(a):
        if 'B' in cfg.ford:
            if 'in' not in mark:
                a.wait_tag('in'); lds_arrive(a, vCN, cF1, vONE); mark['in'] = True
            kf_spin(a, vCN, kM, IN + 4, sleep=True); stamp(a, cfg, 'poll2', 'F')
            poll(a, FLAGA2, cfg.FS2, cGO2, 'pollsA2', IN)
            lds_spin(a, vCN, cGO2, 4, IN + 3, sleep=True)
            stamp(a, cfg, 'go2', 'F')
    def job_Y(a):
        for t2 in range(2): a(f'buffer_load_dwordx4 {vr(WR+4*t2,4)}, v{vWB}, {sr(SA,4)}, s{sWb+t2} offen sc1')
        a(f's_cmp_lg_u32 s{sB}, 0'); h = a.skip_begin('s_cbranch_scc1')
        a(f'v_lshlrev_b32 v{vWB}, 4, v{vQ}'); a(f's_lshr_b32 s{T0}, s{sW}, 1'); a(f's_lshl_b32 s{T0}, s{T0}, 7'); a(f's_add_u32 s{T0}, s{T0}, {WBX}')
        for t2 in range(2): a(f'buffer_load_dwordx4 {vr(XS+4*t2,4)}, v{vWB}, {sr(SA,4)}, s{T0} offen offset:{64*t2} sc1')
        a.skip_end(h, drop=True)
    def job_I(a):
        if 'in' not in mark:
            a.wait_tag('in'); lds_arrive(a, vCN, cF1, vONE)
    def job_M(a):
        if not cfg.nF: return
        sK, sAO, SCF = 76, 44, 40
        RW = NSLOT*3072; H, X, TMF = N8, N8 + 24, IN
        a(f's_mul_i32 s{T0}, s{sG0}, {REG}'); a(f's_add_u32 s{T0}, s{T0}, {ACT}'); srd(a, SCF, sWS, REG, f's{T0}')
        a(f's_min_u32 s{T0}, s{sJ}, 3'); a(f's_mul_i32 s{T1}, s{sJ}, 5'); a(f's_add_u32 s{T0}, s{T0}, s{T1}'); a(f's_lshr_b32 s{T1}, s{sW}, 1'); a(f's_mul_i32 s{T1}, s{T1}, 3'); a(f's_add_u32 s{T0}, s{T0}, s{T1}')
        a(f's_lshl_b32 s{T0}, s{T0}, 12'); a(f's_add_u32 s{sAO}, s{T0}, 4096'); a(f's_add_u32 s{sAO+1}, s{T0}, 8192')
        a(f's_cmp_ge_u32 s{sJ}, 3'); a(f's_cselect_b32 s{T1}, s{T1}, 0'); a(f's_cmp_eq_u32 s{T1}, 0'); a(f's_cselect_b32 s{sAO+1}, s{sAO+1}, {OOB}')
        a(f's_mov_b32 s{sK}, {f32(-1.4426950408889634)}'); a(f's_mov_b32 s{sK+1}, {f32(-1.4426950408889634)}'); a(f's_mov_b32 s{sK+2}, 0.5'); a(f's_mov_b32 s{sK+3}, 0.5')
        a(f's_mul_i32 s{T0}, s{sW}, {RW}'); a(f's_add_u32 s{T0}, s{T0}, {RING}'); a(f'v_add_u32 v{WK}, s{T0}, v{vL16}')
        a(f's_xor_b32 s{T0}, s{sW}, 1'); a(f's_mul_i32 s{T0}, s{T0}, {RW}'); a(f's_add_u32 s{T0}, s{T0}, {RING}'); a(f'v_add_u32 v{WK+1}, s{T0}, v{vL16}')
        a(f's_and_b32 s{T0}, s{sW}, 1'); a(f's_lshl_b32 s{T0}, s{T0}, 10'); a(f'v_add_u32 v{WK+2}, s{T0}, v{vL16}')
        kf_spin(a, vCN, kK, IN, sleep=True); stamp(a, cfg, 'kK', 'F')
        for k in range(2*cfg.nF):
            q = 12 - 2*cfg.nF + k
            a(f'ds_read_b128 {vr(H+4*k,4)}, v{WK} offset:{1024*(q + 2*cfg.nF)}'); a(f'ds_read_b128 {vr(X+4*k,4)}, v{WK+1} offset:{1024*q}')
        for k in range(cfg.nF):
            hh = 6 - cfg.nF + k; h = H + 8*k; o = TMF + 16 + 4*k
            for kk in range(4): a(f'v_pk_add_f32 {vr(h+2*kk,2)}, {vr(h+2*kk,2)}, {vr(X+8*k+2*kk,2)}')
            mish8(a, h, TMF, TMF + 8, o, sK)
            a(f'buffer_store_dwordx4 {vr(o,4)}, v{WK+2}, {sr(SCF,4)}, s{sAO + (hh >> 1) - 1} offen offset:{2048*(hh & 1)} sc1', tag='act')
        stamp(a, cfg, 'fmish', 'F')
    def job_N(a):
        if not cfg.nF: return
        a.wait_tag('act') if any(e['tag'] == 'act' for e in a.vq) else None
        a(f'v_add_u32 v14, s{sW}, v{vCN}'); a(f'ds_write_b8 v14, v{vONE} offset:{4*kF}')
    def job_A(a):
        signal(a, FLAGA, cfg.FS, cFA, 0); stamp(a, cfg, 'flag', 'F')
    def job_B(a):
        signal(a, FLAGA2, cfg.FS2, cFA2, 0); stamp(a, cfg, 'flag2', 'F')
    def unpackW(a, dst, src):
        a(f's_mov_b32 s{T0}, {f32(2.0**-19)}')
        for k in range(8):
            a(f'v_lshlrev_b32 v{dst+2*k}, 16, v{src+k}'); a(f'v_and_b32 v{dst+2*k+1}, 0xffff0000, v{src+k}')
        for k in range(16): a(f'v_mul_f32 v{dst+k}, s{T0}, v{dst+k}')
    jobs = dict(M=job_M, N=job_N, E=job_E, d=job_d, r=job_r, w=job_w, b=job_b, c=job_c, h=job_h, A=job_A, B=job_B, k=job_k, a=job_a, i=job_i, X=job_X, Y=job_Y, I=job_I, g=lambda a: gate_code(a, cfg, 128, WK + 8, WK + 4))
    jobs.update(conj)
    o = cfg.ford
    assert set(cfg.pre) <= set('12') and sorted(set('1245') - set(cfg.pre)) == sorted(c for c in o if c in '1245')
    before = lambda x, y: o.index(x) < o.index(y)
    assert all(before(*p) for p in ('rw', 'rb', 'r4', 'r5', 'bY', 'wY', 'cY', 'ka', 'ai', 'iX', 'XY', 'iI', 'ra', 'Aa', 'EA', 'Ek'))
    assert ('B' in o and before('b', 'B') and before('c', 'B') and before('w', 'B') and before('B', 'X')) or (before('b', 'A') and before('c', 'A') and before('w', 'A'))
    assert ('g' in o) == (cfg.gateAt == 'F') and ('g' not in o or all(before(*p) for p in ('wg', 'bg', 'cg', 'gY')))
    assert (cfg.nF > 0) == ('M' in o) and (not cfg.nF or (all(before(*p) for p in ('EM', 'wM', 'bM', 'AM')) and ('g' not in o or before('g', 'M')) and (before('M', 'N') if 'N' in o else before('M', 'a')) and before('M', 'Y')))
    for c in o: jobs[c](a)
    fixups(a)
    if not cfg.unpLate: unpackW(a, WF, WR)
    lds_spin(a, vCN, cF1, 4, IN)
    stamp(a, cfg, 'in', 'F')
    for u in range(8): a(f'ds_read_b128 {vr(IN+4*u,4)}, v{vL16} offset:{FA + 1024*u}')
    C1 = WK
    for sg in range(4):
        for tt in range(2):
            for c in range(2):
                d = C1 + 8*c + 4*tt
                a(f'{MF16} {vr(d,4)}, {vr(IN+8*sg+4*tt,4)}, {vr(M1+8*sg+4*c,4)}, {vr(d,4) if sg else 0}')
    for c in range(2):
        for k in range(4): a(f'v_cvt_pk_bf16_f32 v{PK+4*c+k}, v{C1+8*c+2*k}, v{C1+8*c+2*k+1}')
    if cfg.unpLate: unpackW(a, WF, WR)
    lsp = a.lab('special'); ljn = a.lab('join')
    a(f's_cmp_eq_u32 s{sB}, 0'); a(f's_cbranch_scc1 {lsp}')
    snap = (list(a.hist), list(a.vq), list(a.lq))
    Cre, Cim, Yre, Yim = IN, IN + 8, IN + 16, IN + 24
    for t2 in range(2):
        a(f'{MF16} {vr(Cre+4*t2,4)}, {vr(M2+12*t2,4)}, {vr(PK,4)}, 0')
        a(f'{MF16} {vr(Cim+4*t2,4)}, {vr(M2+12*t2+8,4)}, {vr(PK,4)}, 0')
    for t2 in range(2):
        a(f'{MF16} {vr(Cre+4*t2,4)}, {vr(M2+12*t2+4,4)}, {vr(PK+4,4)}, {vr(Cre+4*t2,4)}')
        a(f'{MF16} {vr(Cim+4*t2,4)}, {vr(M2+12*t2,4)}, {vr(PK+4,4)}, {vr(Cim+4*t2,4)}')
    for k in range(8):
        a(f'v_mul_f32 v{Yre+k}, v{Cre+k}, v{WF+2*k}'); a(f'v_mul_f32 v{Yim+k}, v{Cre+k}, v{WF+2*k+1}')
    for k in range(8):
        a(f'v_fma_f32 v{Yre+k}, -v{Cim+k}, v{WF+2*k+1}, v{Yre+k}'); a(f'v_fmac_f32 v{Yim+k}, v{Cim+k}, v{WF+2*k}')
    for k in range(4): a(f'v_cvt_pk_bf16_f32 v{PK+k}, v{Yre+2*k}, v{Yre+2*k+1}')
    for k in range(4): a(f'v_cvt_pk_bf16_f32 v{PK+4+k}, v{Yim+2*k}, v{Yim+2*k+1}')
    a.label(ljn)
    C3 = WK
    for tt in range(2):
        a(f'{MF16} {vr(C3+8*tt,4)}, {vr(PK,4)}, {vr(M4+12*tt,4)}, 0')
        a(f'{MF16} {vr(C3+8*tt+4,4)}, {vr(PK,4)}, {vr(M4+12*tt+4,4)}, 0')
    for tt in range(2):
        a(f'{MF16} {vr(C3+8*tt,4)}, {vr(PK+4,4)}, {vr(M4+12*tt+8,4)}, {vr(C3+8*tt,4)}')
        a(f'{MF16} {vr(C3+8*tt+4,4)}, {vr(PK+4,4)}, {vr(M4+12*tt,4)}, {vr(C3+8*tt+4,4)}')
    a(f's_lshl_b32 s{T0}, s{sW}, 11'); a(f'v_add_u32 v{vIN}, s{T0}, v{vL16}')
    for k in range(8): a(f'v_cvt_pk_bf16_f32 v{PK+k}, v{C3+2*k}, v{C3+2*k+1}')
    for tt in range(2): a(f'ds_write_b128 v{vIN}, {vr(PK+4*tt,4)} offset:{FB + 1024*tt}')
    a.wait(lg=0)
    lds_arrive(a, vCN, cF2, vONE)
    lds_spin(a, vCN, cF2, 4, IN)
    for u in range(8): a(f'ds_read_b128 {vr(IN+4*u,4)}, v{vL16} offset:{FB + 1024*u}')
    C4 = WK
    for sg in range(4):
        for tt in range(2):
            for c in range(2):
                d = C4 + 8*tt + 4*c
                a(f'{MF16} {vr(d,4)}, {vr(M5+8*sg+4*c,4)}, {vr(IN+8*sg+4*tt,4)}, {vr(d,4) if sg else 0}')
    for k in range(8): a(f'v_cvt_pk_bf16_f32 v{PK+k}, v{C4+2*k}, v{C4+2*k+1}')
    for k in range(8): a(f'v_and_b32 v{PK+k}, -2, v{PK+k}')
    for tt in range(2): a(f'buffer_store_dwordx4 {vr(PK+4*tt,4)}, v{vE2}, {sr(SA,4)}, s{sE2+tt} offen sc1', tag='e2')
    stamp(a, cfg, 'e2st', 'F')
    t = IN
    dft8(a, t, lambda dh, st, kind: N8 + 12*dh + 6*st + {'s': 0, 'c': 2, 'm': 4}[kind])
    vL3, vX3 = 11, 13
    a(f'v_cmp_eq_u32 vcc, 0, v{vQ}')
    a(f'v_and_b32 v{t}, 7, v1'); a(f's_lshl_b32 s{T0}, s{sW}, 3'); a(f'v_add_u32 v{t}, s{T0}, v{t}')
    a(f'v_cmp_eq_u32 {sr(mK0,2)}, 0, v{t}'); a(f's_andn2_b64 {sr(mK5,2)}, {sr(mK0,2)}, vcc'); a(f's_mov_b64 {sr(mK04,2)}, vcc')
    a(f'v_lshrrev_b32 v{t}, 2, v{t}'); a(f'v_lshl_add_u32 v{t}, v{t}, 3, v{vQ}'); a(f'v_mul_u32_u24 v{t}, {cfg.S1}, v{t}'); a(f'v_and_b32 v{t+1}, 3, v1'); a(f'v_lshl_add_u32 v{t}, v{t+1}, 5, v{t}')
    a(f'v_bfe_u32 v{t+1}, v1, 3, 1'); a(f'v_lshl_add_u32 v{vL3}, v{t+1}, 4, v{t}')
    a(f's_lshl_b32 s{T0}, s{sB}, 7'); a(f's_add_u32 s{sI}, s{T0}, {E1}'); a(f's_add_u32 s{sI+1}, s{sI}, {4*cfg.S1}')
    a(f'v_lshrrev_b32 v{t}, 1, v{vQ}'); a(f'v_lshlrev_b32 v{t}, 12, v{t}'); a(f'v_and_b32 v{t+1}, 1, v{vQ}'); a(f'v_lshl_add_u32 v{t}, v{t+1}, 8, v{t}')
    a(f'v_lshl_add_u32 v{t}, v{vN}, 4, v{t}'); a(f's_lshl_b32 s{T1}, s{sW}, 9'); a(f'v_add_u32 v{vX3}, s{T1}, v{t}')
    def n64(nt):
        a(f'v_add_f32 v{t}, {f32(16.0*nt)}, v{vNf}'); a(f'v_mul_f32 v{t}, {f32(1/64)}, v{t}')
        a(f'v_mul_f32 v{t+1}, 4.0, v{vQf}'); a(f'v_mul_f32 v{t+1}, v{t+1}, v{t}')
        cs_pairs(a, t+1, t, [16*st + r for st in range(2) for r in range(4)], t+2,
                 lambda pi: [('c', N64 + 8*nt + 4*(pi//2) + pi % 2), ('m', N64 + 8*nt + 4*(pi//2) + 2 + pi % 2)])
    for nt in range(cfg.n64pre): n64(nt)
    a.wait_tag('e2')
    stamp(a, cfg, 'e2dr', 'F')
    D3 = WF
    def ld3():
        for st in range(2): a(f'buffer_load_dwordx4 {vr(D3+4*st,4)}, v{vL3}, {sr(SA,4)}, s{sI+st} offen sc1')
    if cfg.t3 is None:
        if cfg.slp3: a(f's_sleep {cfg.slp3}')
        ld3()
    for nt in range(cfg.n64pre, 4): n64(nt)
    a(f'v_mov_b32 v{t+2}, 0xffff')
    a(f'v_and_b32 v{t}, 1, v{vN}'); a(f'v_lshlrev_b32 v{t}, 15, v{t}'); a(f'v_or_b32 v{t}, 0x3f80, v{t}')
    for nt in range(4):
        a(f'v_bfi_b32 v{t+1}, v{t+2}, v{t}, v{N64+8*nt+2}'); a(f'v_cndmask_b32 v{N64+8*nt+2}, v{N64+8*nt+2}, v{t+1}, {sr(mK04,2)}')
    if cfg.stg:
        assert cfg.gateAt == 'F' and cfg.npre == 22 - NPL
        a(f's_mul_i32 s{T0}, s{sJ}, {REG}'); a(f's_add_u32 s{T0}, s{T0}, {W2P}')
        srd(a, SB, sWS, REG, f's{T0}')
        a(f'v_and_b32 v{IN}, 31, v1'); a(f's_lshr_b32 s{T0}, s{sW}, 1'); a(f's_lshl_b32 s{T0}, s{T0}, 4'); a(f'v_xor_b32 v{IN}, s{T0}, v{IN}')
        a(f'v_lshrrev_b32 v{IN+1}, 5, v1'); a(f'v_lshlrev_b32 v{IN+1}, 9, v{IN+1}'); a(f'v_lshl_add_u32 v{IN}, v{IN}, 4, v{IN+1}')
        a(f's_lshl_b32 s{T0}, s{sW}, 11'); a(f'v_add_u32 v14, s{T0}, v{IN}'); a(f's_mul_i32 s{T1}, s{sW}, {NPL*2048}')
        kf_spin(a, vCN, kQ, IN, sleep=True)
        a(f's_setprio {cfg.prioS}')
        for i in range(NPL):
            a(f's_add_u32 m0, s{T1}, {PST + i*2048}'); a(f's_mov_b32 s{T0}, {(22 - NPL + i)*8192}')
            for hb in range(2): a(f'buffer_load_dwordx4 v14, {sr(SB,4)}, s{T0} offen offset:{1024*hb} {cfg.pfl} lds', tag='pl')
        a(f's_setprio {cfg.prioF}')
        stamp(a, cfg, 'pst', 'F')
        a.wait_tag('pl'); a(f'v_add_u32 v14, s{sW}, v{vCN}'); a(f'ds_write_b8 v14, v{vONE} offset:{4*kP}')
    if cfg.t3 is not None:
        kf_spin(a, vCN, k3, IN, sleep=True); stamp(a, cfg, 'try3', 'F')
        ld3()
    l3 = a.lab('e2poll'); l3ok = a.lab('e2ok')
    a(f's_mov_b32 s{T1}, 0')
    a.wait(vm=0)
    a.label(l3)
    a(f'v_or3_b32 v{IN+8}, v{D3}, v{D3+1}, v{D3+2}'); a(f'v_or3_b32 v{IN+9}, v{D3+3}, v{D3+4}, v{D3+5}')
    a(f'v_or3_b32 v{IN+8}, v{IN+8}, v{D3+6}, v{D3+7}'); a(f'v_or_b32 v{IN+8}, v{IN+8}, v{IN+9}'); a(f'v_and_b32 v{IN+8}, 1, v{IN+8}')
    a(f'v_cmp_ne_u32 vcc, 0, v{IN+8}')
    a(f's_cbranch_vccz {l3ok}')
    if cfg.slpC: a(f's_sleep {cfg.slpC}')
    ld3()
    a('s_waitcnt vmcnt(0)')
    a(f's_add_u32 s{T1}, s{T1}, 1'); a(f's_cmp_lt_u32 s{T1}, {cfg.spin}'); a(f's_cbranch_scc1 {l3}')
    a.label(l3ok)
    stamp(a, cfg, 'e2ok', 'F'); stampv(a, cfg, 'polls', 'F', T1)
    VI, VR = IN + 8, IN + 12
    for k in range(4):
        a(f'v_cndmask_b32 v{VI+k}, v{D3+k}, 0, {sr(mK5,2)}'); a(f'v_cndmask_b32 v{VR+k}, v{D3+4+k}, 0, {sr(mK5,2)}')
    C5 = WK
    for dh in range(2):
        a(f'{MF16} {vr(C5+8*dh,4)}, {vr(D3,4)}, {vr(N8+12*dh+2,4)}, 0')
        a(f'{MF16} {vr(C5+8*dh+4,4)}, {vr(D3+4,4)}, {vr(N8+12*dh+6,4)}, 0')
    for dh in range(2):
        a(f'{MF16} {vr(C5+8*dh,4)}, {vr(VR,4)}, {vr(N8+12*dh+8,4)}, {vr(C5+8*dh,4)}')
        a(f'{MF16} {vr(C5+8*dh+4,4)}, {vr(VI,4)}, {vr(N8+12*dh,4)}, {vr(C5+8*dh+4,4)}')
    for k in range(8): a(f'v_cvt_pk_bf16_f32 v{PK+k}, v{C5+2*k}, v{C5+2*k+1}')
    for dh in range(2): a(f'ds_write_b128 v{vX3}, {vr(PK+4*dh,4)} offset:{FA + 2048*dh}')
    a.wait(lg=0)
    lds_arrive(a, vCN, cF3, vONE)
    a(f's_and_b32 s{T0}, s{sW}, 1'); a(f's_lshl_b32 s{T0}, s{T0}, 12'); a(f's_lshr_b32 s{T1}, s{sW}, 1'); a(f's_lshl_b32 s{T2}, s{T1}, 11'); a(f's_add_u32 s{T0}, s{T0}, s{T2}')
    a(f'v_add_u32 v{vX3}, s{T0}, v{vL16}')
    a(f's_lshl_b32 s{T1}, s{T1}, 2'); a(f'v_add_u32 v{IN+9}, s{T1}, v{vQ}'); a(f'v_and_b32 v{IN+10}, 7, v{vN}'); a(f'v_xor_b32 v{IN+9}, v{IN+9}, v{IN+10}')
    a(f'v_lshlrev_b32 v{IN+9}, 5, v{IN+9}'); a(f'v_lshl_add_u32 v{IN+9}, v{vN}, 8, v{IN+9}')
    a(f's_and_b32 s{T0}, s{sW}, 1'); a(f's_lshl_b32 s{T0}, s{T0}, 4'); a(f'v_add_u32 v{vL3}, s{T0}, v{IN+9}')
    a(f'v_lshlrev_b32 v{IN+10}, 2, v{vN}')
    for nt in range(4): a(f'ds_read_b32 v{IN+12+nt}, v{IN+10} offset:{GL + 64*nt}')
    lds_spin(a, vCN, cF3, 4, IN+8)
    for st in range(2): a(f'ds_read_b128 {vr(IN+4*st,4)}, v{vX3} offset:{FA + 1024*st}')
    a.wait(lg=0); lds_arrive(a, vCN, cFC, vONE)
    for st in range(2):
        for nt in range(4):
            a(f'{MF16} {vr(C5+4*nt,4)}, {vr(IN+4*st,4)}, {vr(N64+8*nt+4*st,4)}, {vr(C5+4*nt,4) if st else 0}')
    lds_spin(a, vCN, cFC, 4, IN+8)
    for nt in range(4):
        for k in range(4): a(f'v_mul_f32 v{C5+4*nt+k}, v{IN+12+nt}, v{C5+4*nt+k}')
        a(f'ds_write_b128 v{vL3}, {vr(C5+4*nt,4)} offset:{GAL + 4096*nt}')
    if cfg.share:
        final_addr(a, cfg); srd(a, SE, sOUT, 2*MB)
    a.wait(lg=0)
    a.label('L_FQ')
    if cfg.diagt:
        a.label('L_DT'); a('s_memrealtime s[10:11]'); a('s_waitcnt lgkmcnt(0)'); a('s_sub_u32 s10, s10, s98'); a(f's_cmp_lt_u32 s10, {cfg.diagt}'); a('s_cbranch_scc1 L_DT')
    if cfg.diagx:
        a(f'v_mov_b32 v{IN+1}, 0'); a(f'buffer_load_dword v{IN}, v{IN+1}, {sr(SE,4)}, 0 offen sc1'); a(f'v_readfirstlane_b32 s6, v{IN}'); a('s_bcnt1_i32_b32 s6, s6')
        a('s_cmp_le_u32 s6, 1'); a('s_cbranch_scc1 L_DX'); a('s_memrealtime s[8:9]'); a('s_waitcnt lgkmcnt(0)')
        a.label('L_DY'); a('s_memrealtime s[10:11]'); a('s_waitcnt lgkmcnt(0)'); a('s_sub_u32 s10, s10, s8'); a('s_cmp_lt_u32 s10, 3000'); a('s_cbranch_scc1 L_DY')
        a.label('L_DX')
    stamp(a, cfg, 'Fend', 'F')
    a(f's_or_b32 s{T0}, s2, s{sW}'); a(f's_cmp_eq_u32 s{T0}, 0'); a(f's_cselect_b32 s{T0}, {NONCE}, {OOB}')
    a(f'v_mov_b32 v{IN}, s{sNON}'); a(f'v_mov_b32 v{IN+1}, s{sNON+1}'); a(f'v_mov_b32 v{IN+2}, 0'); a('s_mov_b64 exec, 1')
    a(f'buffer_store_dwordx2 {vr(IN,2)}, v{IN+2}, {sr(SA,4)}, s{T0} offen')
    a('s_mov_b64 exec, -1')
    enc_spin(a, cfg, 'F')
    a('s_barrier')
    if cfg.share: final_code(a, cfg, [1], lambda mt, rr: 100 + 4*mt, 16, 4)
    if cfg.stamps: stamps_out(a, cfg, 10, SA)
    a('s_endpgm')
    a.label(lsp)
    a.hist, a.vq, a.lq = snap
    P1_, M3_, P2_, P4_ = IN, IN + 8, IN + 16, IN + 24
    for t2 in range(2):
        a(f'{MF16} {vr(P1_+4*t2,4)}, {vr(M2+12*t2,4)}, {vr(PK,4)}, 0')
        a(f'{MF16} {vr(M3_+4*t2,4)}, {vr(M2+12*t2+8,4)}, {vr(PK,4)}, 0')
        a(f'{MF16} {vr(P2_+4*t2,4)}, {vr(M2+12*t2+4,4)}, {vr(PK+4,4)}, 0')
        a(f'{MF16} {vr(P4_+4*t2,4)}, {vr(M2+12*t2,4)}, {vr(PK+4,4)}, 0')
    a('s_waitcnt vmcnt(0)')
    unpackW(a, HB, XS)
    a(f's_and_b32 s{T0}, s{sW}, 1'); a(f'v_or_b32 v{WK}, s{T0}, v{vN}'); a(f'v_cmp_eq_u32 vcc, 0, v{WK}')
    for k in range(16): a(f'v_cndmask_b32 v{HB+k}, v{WF+k}, v{HB+k}, vcc')
    for k in range(8):
        x, y = WK + 2*(k & 1), WK + 1 + 2*(k & 1)
        a(f'v_mul_f32 v{x}, v{P1_+k}, v{WF+2*k}'); a(f'v_mul_f32 v{y}, v{P1_+k}, v{WF+2*k+1}')
        a(f'v_fma_f32 v{x}, -v{M3_+k}, v{WF+2*k+1}, v{x}'); a(f'v_fmac_f32 v{y}, v{M3_+k}, v{WF+2*k}')
        a(f'v_fma_f32 v{x}, -v{P4_+k}, v{HB+2*k+1}, v{x}'); a(f'v_fmac_f32 v{y}, v{P4_+k}, v{HB+2*k}')
        a(f'v_fma_f32 v{P1_+k}, v{P2_+k}, v{HB+2*k}, v{x}'); a(f'v_fma_f32 v{M3_+k}, v{P2_+k}, v{HB+2*k+1}, v{y}')
    for k in range(4): a(f'v_cvt_pk_bf16_f32 v{PK+k}, v{P1_+2*k}, v{P1_+2*k+1}')
    for k in range(4): a(f'v_cvt_pk_bf16_f32 v{PK+4+k}, v{M3_+2*k}, v{M3_+2*k+1}')
    a('s_nop 1')
    a(f's_branch {ljn}')

HEADER = open('gated_mix__spectral_gfnet__dense_activation_mish__prompt.s.ref').read().split('; Override')[0] if True else ''
def build(cfg):
    import align
    t = build0(cfg)
    if 's' in cfg.abl: t = fake16(t)
    if 'k' in cfg.abl: t = fake16(t, 0, 99)
    if 'l' in cfg.abl: t = fake16(t, 100, 999)
    return align.run(t)[0] if getattr(cfg, 'align', True) else t
def fake16(t, lo=0, hi=999):
    import re
    out = []; k = 0
    for l in t.split('\n'):
        m = re.match(r'\s*v_mfma_f32_32x32x16_bf16 v\[(\d+):\d+\], (v\[\d+:\d+\]), (v\[\d+:\d+\]), (\S+)', l)
        if m: k += 1
        if m and lo <= k <= hi:
            d = int(m.group(1))
            for h in range(2):
                dd = d + 4*((2*k + h) % 4)
                out.append(f'    v_mfma_f32_16x16x32_bf16 v[{dd}:{dd+3}], {m.group(2)}, {m.group(3)}, v[{dd}:{dd+3}]')
        else: out.append(l)
    return '\n'.join(out)
def build0(cfg):
    Stream.gid = 0
    a = Stream(); prologue(a, cfg)
    g = Stream(); g.hist, g.vq, g.lq, g.smem, g.smem_w = list(a.hist), list(a.vq), list(a.lq), a.smem, set(a.smem_w); gen_G(g, cfg)
    f = Stream(); f.hist, f.vq, f.lq, f.smem, f.smem_w = list(a.hist), list(a.vq), list(a.lq), a.smem, set(a.smem_w); gen_F(f, cfg)
    assert g.text().count('s_barrier') == f.text().count('s_barrier'), 'barrier mismatch'
    return f"""{HEADER}; One persistent launch: 256 workgroups x 8 waves (waves 0-3: MLP, waves 4-7: spectral branch). Generated by my own script.
; @launch grid=(256,1,1) block=(512,1,1) lds={LDSZ}
.amdgcn_target "amdgcn-amd-amdhsa--gfx950"
.text
.globl {KN}
.p2align 8
.type {KN},@function
{KN}:
{a.text()}{g.text()}{f.text()}L_END:
    s_endpgm
.section .rodata,"a"
.p2align 6
.amdhsa_kernel {KN}
  .amdhsa_next_free_vgpr 256
  .amdhsa_next_free_sgpr 102
  .amdhsa_accum_offset 256
  .amdhsa_group_segment_fixed_size 0
  .amdhsa_kernarg_size 88
  .amdhsa_user_sgpr_count 2
  .amdhsa_user_sgpr_kernarg_segment_ptr 1
  .amdhsa_system_sgpr_workgroup_id_x 1
  .amdhsa_float_denorm_mode_32 3
.end_amdhsa_kernel
"""
if __name__ == '__main__':
    cfg = Cfg()
    out = sys.argv[1]
    for kv in sys.argv[2:]:
        k, v = kv.split('='); setattr(cfg, k, eval(v))
    open(out, 'w').write(build(cfg))
```
